```python
import torch

def _softmax(x, axis=-1):
    return torch.softmax(x, dim=axis)
def _gelu(x):
    return torch.nn.functional.gelu(x, approximate="tanh")
def _silu(x):
    return torch.nn.functional.silu(x)
def _sigmoid(x):
    return torch.sigmoid(x)
def _layernorm(x, axis=-1, eps=1e-5):
    m = x.mean(dim=axis, keepdim=True)
    v = x.var(dim=axis, keepdim=True, unbiased=False)
    return (x - m) / torch.sqrt(v + eps)
def _scatter_add(tgt, idx, src, axis=0):
    return tgt.clone().index_add_(axis, idx, src)
def _segment_sum(src, seg, n):
    out = torch.zeros((n,) + src.shape[1:], dtype=src.dtype)
    return out.index_add_(0, seg, src)
def _pad(x, pw):
    flat = tuple(v for pair in reversed(pw) for v in pair)
    return torch.nn.functional.pad(x, flat)

kernel_name = 'parallel_sum__gqa_block_cached__mixer_channel_mlp__decode'

def setup_inputs():

    _w = (lambda a: (lambda t: t.to(torch.bfloat16) if t.is_floating_point() else t)(torch.as_tensor(a)))
    def _A_setup():
        B, Sq, D = 8, 1, 448
        Hq, Hkv, Sk, Dh = 16, 8, 4096, 256
        assert Hq % Hkv == 0, (Hq, Hkv)
        return {
            "x": _w((lambda *s: torch.randn(*s, dtype=torch.bfloat16) * 0.05)(B, Sq, D)),
            "k_cache": _w((lambda *s: torch.randn(*s, dtype=torch.bfloat16) * 3.2)(B, Hkv, Sk, Dh)),
            "v_cache": _w((lambda *s: torch.randn(*s, dtype=torch.bfloat16) * 0.4)(B, Hkv, Sk, Dh)),
            "wq": _w((lambda *s: torch.randn(*s, dtype=torch.bfloat16) * 3.2)(D, Hq * Dh) * (D ** -0.5)),
            "wo": _w((lambda *s: torch.randn(*s, dtype=torch.bfloat16) * 0.4)(Hq * Dh, D) * ((Hq * Dh) ** -0.5)),
        }
    _A_in = _A_setup()

    def _B_setup():
        B, S, D, F = 8, 1, 448, 1792
        return {
            "x": _w((lambda *s: torch.randn(*s, dtype=torch.bfloat16) * 0.05)(B, S, D)),
            "w1": _w((lambda *s: torch.randn(*s, dtype=torch.bfloat16) * 3.2)(D, F) * (D ** -0.5)),
            "b1": _w((lambda *s: torch.randn(*s, dtype=torch.bfloat16) * 0.8)(F)),
            "w2": _w((lambda *s: torch.randn(*s, dtype=torch.bfloat16) * 0.1)(F, D) * (F ** -0.5)),
            "b2": _w((lambda *s: torch.randn(*s, dtype=torch.bfloat16) * 0.1)(D)),
        }
    _B_in = _B_setup()

    return {
        "A_x": _A_in["x"],
        "A_k_cache": _A_in["k_cache"],
        "A_v_cache": _A_in["v_cache"],
        "A_wq": _A_in["wq"],
        "A_wo": _A_in["wo"],
        "B_x": _B_in["x"],
        "B_w1": _B_in["w1"],
        "B_b1": _B_in["b1"],
        "B_w2": _B_in["w2"],
        "B_b2": _B_in["b2"],
    }

def reference(A_x, A_k_cache, A_v_cache, A_wq, A_wo, B_x, B_w1, B_b1, B_w2, B_b2):
    def _A_ref(x, k_cache, v_cache, wq, wo):
        B, Sq, D = x.shape
        Hq, Dh = 16, 256
        Hkv = k_cache.shape[1]
        rep = Hq // Hkv
        q = (lambda x, *d: x.permute(*d))((x @ wq).reshape(B, Sq, Hq, Dh), 0, 2, 1, 3)
        k = (lambda x, n, axis: torch.repeat_interleave(x, n, dim=axis))(k_cache, rep, axis=1)
        v = (lambda x, n, axis: torch.repeat_interleave(x, n, dim=axis))(v_cache, rep, axis=1)
        scores = torch.einsum("bhqd,bhkd->bhqk", q, k) * (Dh ** -0.5)
        p = _softmax(scores, axis=-1)
        o = torch.einsum("bhqk,bhkd->bhqd", p, v)
        return (lambda x, *d: x.permute(*d))(o, 0, 2, 1, 3).reshape(B, Sq, Hq * Dh) @ wo

    def _B_ref(x, w1, b1, w2, b2):
        y = _layernorm(x, axis=-1)
        h = _gelu(torch.einsum("bsd,df->bsf", y, w1) + b1)
        return torch.einsum("bsf,fd->bsd", h, w2) + b2

    x = A_x
    xn = _layernorm(x, axis=-1)
    return x + _A_ref(xn, A_k_cache, A_v_cache, A_wq, A_wo) + _B_ref(xn, B_w1, B_b1, B_w2, B_b2)
```

```python
import re

REG = re.compile(r'^-?\|?(?:abs\()?([vas])(?:(\d+)|\[(\d+):(\d+)\])\)?\|?$')
TRANS = ('v_exp_f32', 'v_log_f32', 'v_rcp_f32', 'v_rsq_f32', 'v_sqrt_f32', 'v_sin_f32', 'v_cos_f32')


def regs(tok):
    tok = tok.strip()
    if tok == 'vcc':
        return {('s', 'vcc')}
    if tok in ('vcc_lo', 'vcc_hi'):
        return {('s', 'vcc')}
    if tok == 'exec':
        return {('s', 'exec')}
    if tok == 'm0':
        return {('s', 'm0')}
    m = REG.match(tok)
    if not m:
        return set()
    f = m.group(1)
    if m.group(2) is not None:
        return {(f, int(m.group(2)))}
    return {(f, i) for i in range(int(m.group(3)), int(m.group(4)) + 1)}


class Ins:
    def __init__(self, text):
        self.text = text
        t = text.split(';')[0].strip()
        self.label = None
        self.mn = None
        self.kind = None
        self.rd = set()
        self.wr = set()
        self.ws = 0
        self.target = None
        if not t or t.startswith('.'):
            self.kind = 'nop0'
            return
        if t.endswith(':'):
            self.label = t[:-1]
            self.kind = 'label'
            return
        parts = t.split(None, 1)
        mn = parts[0]
        self.mn = mn
        rest = parts[1] if len(parts) > 1 else ''
        ops = []
        depth = 0
        cur = ''
        for ch in rest:
            if ch in '[(':
                depth += 1
            if ch in '])':
                depth -= 1
            if ch == ',' and depth == 0:
                ops.append(cur.strip())
                cur = ''
            else:
                cur += ch
        if cur.strip():
            ops.append(cur.strip())
        mods = ''
        if ops:
            last = ops[-1].split(None, 1)
            if len(last) > 1:
                ops[-1] = last[0]
                mods = last[1]
        self.ops = ops
        self.mods = mods
        self.ws = 1
        R = [regs(o) for o in ops]
        self.dpp = ('row_' in mods or 'quad_perm' in mods or 'wave_' in mods)
        if mn == 's_nop':
            self.kind = 'snop'
            self.ws = int(ops[0], 0) + 1
        elif mn.startswith('v_mfma'):
            self.kind = 'mfma'
            assert '16x16x32' in mn, mn
            self.D, self.A, self.B, self.C = R[0], R[1], R[2], R[3]
            self.wr = set(R[0])
            self.rd = R[1] | R[2] | R[3]
        elif mn.startswith('v_'):
            self.kind = 'valu'
            base = mn.replace('_e32', '').replace('_e64', '').replace('_dpp', '')
            self.base = base
            self.trans = base in TRANS
            self.wr = set(R[0])
            n = 1
            if base in ('v_add_co_u32', 'v_sub_co_u32', 'v_addc_co_u32', 'v_subb_co_u32'):
                self.wr |= R[1]
                n = 2
            for r in R[n:]:
                self.rd |= r
            if base.startswith('v_permlane'):
                self.wr |= R[1]
                self.rd |= R[0]
            if base in ('v_fmac_f32', 'v_dot2c_f32_bf16', 'v_writelane_b32'):
                self.rd |= R[0]
        elif mn.startswith('ds_'):
            self.kind = 'ds'
            if mn.startswith('ds_read') or mn.startswith('ds_bpermute') or mn.startswith('ds_swizzle') or '_rtn' in mn:
                self.wr = set(R[0])
                for r in R[1:]:
                    self.rd |= r
            else:
                for r in R:
                    self.rd |= r
        elif mn.startswith('buffer_') or mn.startswith('global_'):
            self.kind = 'vmem'
            self.lds = bool(re.search(r'\blds\b', mods)) or '_lds_' in mn
            self.wide = mn.endswith('x4') or mn.endswith('x3')
            self.store = 'store' in mn
            self.data = set()
            if mn in ('buffer_wbl2', 'buffer_inv'):
                pass
            elif 'load' in mn and not self.lds:
                self.wr = set(R[0])
                for r in R[1:]:
                    self.rd |= r
            else:
                for r in R:
                    self.rd |= r
                if self.store:
                    self.data = R[0] if mn.startswith('buffer_') else R[1]
                if 'atomic' in mn and 'sc0' in mods:
                    self.wr = set(R[0])
            if self.lds:
                self.rd |= {('s', 'm0')}
        elif mn.startswith('s_'):
            self.kind = 'salu'
            if mn in ('s_branch',) or mn.startswith('s_cbranch'):
                self.kind = 'branch'
                self.target = ops[0]
            elif mn in ('s_waitcnt', 's_barrier', 's_sleep', 's_setprio', 's_endpgm') or mn.startswith('s_cmp') or mn.startswith('s_bitcmp'):
                for r in R:
                    self.rd |= r
            else:
                self.wr = set(R[0]) if R else set()
                for r in R[1:]:
                    self.rd |= r
                if 'saveexec' in mn:
                    self.wr |= {('s', 'exec')}
        else:
            raise ValueError('unknown instruction ' + text)


def vec(rs):
    return {r for r in rs if r[0] in 'va'}


def sca(rs):
    return {r for r in rs if r[0] == 's'}


def need(p, c):
    n = 0
    if p.kind == 'valu':
        pv = vec(p.wr)
        ps = sca(p.wr)
        if c.kind == 'mfma' and pv & c.rd:
            n = max(n, 2)
        if c.kind == 'valu':
            if pv & c.rd:
                if c.dpp or c.base.startswith('v_permlane'):
                    n = max(n, 2)
                if c.base in ('v_readfirstlane_b32', 'v_readlane_b32'):
                    n = max(n, 1)
                if p.trans and not c.trans:
                    n = max(n, 1)
            if ps & c.rd:
                n = max(n, 4 if c.base in ('v_readlane_b32', 'v_writelane_b32') else 2)
        if c.kind == 'vmem' and ps & c.rd:
            n = max(n, 5)
        if c.kind == 'salu' and ps & c.rd:
            n = max(n, 1)
    elif p.kind == 'mfma':
        if c.kind == 'mfma':
            if p.D & (c.A | c.B):
                n = max(n, 8)
            if p.D & c.C and p.D != c.C:
                n = max(n, 6)
            if p.D & c.D and p.D != c.C:
                n = max(n, 6)
        elif c.kind in ('valu', 'ds', 'vmem'):
            if p.D & (c.rd | c.wr):
                n = max(n, 8)
            if c.kind == 'valu' and p.C & c.wr:
                n = max(n, 3)
    elif p.kind == 'salu':
        if ('s', 'm0') in p.wr and c.kind == 'vmem' and c.lds:
            n = max(n, 1)
    elif p.kind == 'vmem':
        if p.store and p.wide and p.data & c.wr:
            n = max(n, 2)
    return n


class Asm:
    def __init__(self):
        self.lines = []

    def __call__(self, s):
        for l in s.split('\n'):
            if l.strip():
                self.lines.append(l.strip())

    def label(self, name):
        self.lines.append(name + ':')

    def finalize(self):
        ins = [Ins(l) for l in self.lines]

        def maps():
            labels = {x.label: i for i, x in enumerate(ins) if x.label}
            jumps = {}
            for i, x in enumerate(ins):
                if x.kind == 'branch':
                    jumps.setdefault(labels[x.target], []).append(i)
            return jumps

        def pad_for(i, jumps):
            c = ins[i]
            pad = 0
            stack = [(i - 1, 0, True)]
            seen = set()
            while stack:
                j, d, fall = stack.pop()
                if j < 0 or d >= 10 or (j, d, fall) in seen:
                    continue
                seen.add((j, d, fall))
                p = ins[j]
                if fall and (p.mn == 's_branch' or p.mn == 's_endpgm'):
                    continue
                if p.kind == 'label':
                    for b in jumps.get(j, []):
                        stack.append((b, d, False))
                    stack.append((j - 1, d, True))
                    continue
                if p.kind in ('valu', 'mfma', 'salu', 'vmem'):
                    pad = max(pad, need(p, c) - d)
                stack.append((j - 1, d + p.ws, True))
            return pad

        changed = True
        rounds = 0
        while changed:
            rounds += 1
            assert rounds < 20
            changed = False
            jumps = maps()
            i = 0
            while i < len(ins):
                if ins[i].kind in ('valu', 'mfma', 'ds', 'vmem', 'salu'):
                    pad = pad_for(i, jumps)
                    if pad > 0:
                        ins.insert(i, Ins(f's_nop {pad - 1}'))
                        jumps = maps()
                        changed = True
                        i += 1
                i += 1
        txt = []
        for x in ins:
            if x.kind == 'label' or x.text.startswith('.') or x.text.startswith(';'):
                txt.append(x.text)
            else:
                txt.append('    ' + x.text)
        return '\n'.join(txt) + '\n'
```

```python
import struct, sys, os
sys.path.insert(0, os.path.dirname(os.path.abspath(__file__)))
from asmkit import Asm

NAME = "parallel_sum__gqa_block_cached__mixer_channel_mlp__decode_kernel"


def fb(x):
    return '0x%08x' % struct.unpack('<I', struct.pack('<f', x))[0]


LOG2E = 1.4426950408889634
RING = 0
FLG = 131072
F_LAND, F_CONS, F_X, F_Q, F_Y, F_M, F_L, F_O, MX, LS = 0, 16, 32, 48, 64, 80, 96, 112, 128, 160
QL = FLG + 1024
XN = QL + 1024
XS = 912
YN = XN + 8 * XS
STG = YN + 8 * XS
LDS_BYTES = STG + 14336
OPL = XN
RED = YN
RS = 1824
W_Q = 0x1000
W_H = 0x21000
W_ST = 0x31000
W_OP = 0x40000
W_YP = 0xC0000
W_END = 0x140000
W_STAMP = 0x200000


def vr(a, n=1):
    return f'v{a}' if n == 1 else f'v[{a}:{a+n-1}]'


def ar(a, n=1):
    return f'a{a}' if n == 1 else f'a[{a}:{a+n-1}]'


def gen(D=20, kvflags='nt', wflags='', stamps=False, sleep=1, prefetch=True, header=None):
    a = Asm()
    uid = [0]

    def lab(p):
        uid[0] += 1
        return f'L_{p}_{uid[0]}'

    nstamp = [0]

    def stamp(k):
        if stamps:
            a(f's_memrealtime s[98:99]\ns_waitcnt lgkmcnt(0)\ns_mov_b32 s{80+k}, s98')

    def srd(d, p, size):
        a(f's_mov_b32 s{d}, s{p}\ns_mov_b32 s{d+1}, s{p+1}\ns_mov_b32 s{d+2}, {size}\ns_mov_b32 s{d+3}, 0x20000')

    a(f'{NAME}:')
    a('s_cmp_ge_u32 s2, 256\ns_cbranch_scc1 L_end')
    a('s_load_dwordx4 s[4:7], s[0:1], 8')
    if stamps:
        for k in range(16):
            a(f's_mov_b32 s{80+k}, 0')
        a('s_memrealtime s[98:99]')
    a('v_lshrrev_b32 v1, 6, v0\nv_and_b32 v0, 63, v0')
    a('v_readfirstlane_b32 s3, v1')
    a('s_and_b32 s20, s2, 7\ns_lshr_b32 s19, s2, 3\ns_and_b32 s21, s19, 7\ns_lshr_b32 s22, s19, 3')
    a('s_cmp_lg_u32 s3, 0\ns_cbranch_scc1 L_consumer')

    a('s_setprio 3')
    a('v_lshrrev_b32 v10, 5, v0\nv_and_b32 v11, 31, v0\nv_lshlrev_b32 v12, 9, v10')
    for i in range(8):
        a(f'v_add_u32 v13, {2*i}, v10\nv_xor_b32 v13, v13, v11\nv_lshl_add_u32 v{2+i}, v13, 4, v12')
    a('s_lshl_b32 s17, s21, 3\ns_add_u32 s17, s17, s20\ns_lshl_b32 s17, s17, 2\ns_add_u32 s17, s17, s22\ns_lshl_b32 s17, s17, 19')
    a('s_mov_b32 s10, 0x80000\ns_mov_b32 s11, 0x20000\ns_mov_b32 s12, 0\ns_mov_b32 s14, 0')
    a('s_mov_b32 s18, 0x100000')
    a('s_waitcnt lgkmcnt(0)')
    if stamps:
        a('s_mov_b32 s80, s98')
    a('s_add_u32 s8, s4, s17\ns_addc_u32 s9, s5, 0\ns_add_u32 s6, s6, s17\ns_addc_u32 s7, s7, 0')
    ipub = (7 + D) % 8
    lag = (7 + D) // 8

    def ld_tile(u, T=None):
        for i in range(8):
            if i % 4 == 0:
                a(f's_add_u32 m0, s14, {u*8192 + (i//4)*4096}')
                a(f's_add_u32 s13, s12, {u*8192 + (i//4)*4096}')
            if T is None or 8 * T + i >= D:
                a(f's_waitcnt vmcnt({D-1})')
            if i == ipub:
                if T is None:
                    a(f's_lshl2_add_u32 s17, s15, {u - lag + 1}\nv_mov_b32 v15, s17\nds_write_b32 v14, v15 offset:{F_LAND}')
                elif T - lag + 1 > 0:
                    a(f'v_mov_b32 v15, {T - lag + 1}\nds_write_b32 v14, v15 offset:{F_LAND}')
            a(f'buffer_load_dwordx4 v{2+i}, s[8:11], s13 offen offset:{(i%4)*1024} {kvflags} lds')

    ld_tile(0, 0)
    a(f'v_mov_b32 v16, 0\nv_mov_b32 v17, 0\nv_mov_b32 v18, 0\nv_mov_b32 v19, 0')
    a(f'v_mov_b32 v14, {FLG}\nv_lshl_add_u32 v13, v0, 4, v14\nds_write_b128 v13, v[16:19]')
    ld_tile(1, 1)
    a('s_waitcnt lgkmcnt(0)\ns_barrier')
    ld_tile(2, 2)
    ld_tile(3, 3)
    a('s_mov_b32 s15, 1')
    a('L_ld_loop:')
    a('s_add_u32 s12, s12, 32768\ns_add_u32 s14, s14, 32768\ns_and_b32 s14, s14, 0x1ffff\ns_sub_u32 s16, s15, 3')
    a('s_cmp_lg_u32 s15, 16\ns_cbranch_scc1 L_ld_nosw')
    a('s_mov_b32 s8, s6\ns_mov_b32 s9, s7\ns_mov_b32 s12, 0')
    for i in range(8):
        a(f'v_lshlrev_b32 v{2+i}, 4, v0')
    a('L_ld_nosw:')
    for u in range(4):
        ok = lab('ldok')
        rt = lab('ldrt')
        a('s_waitcnt lgkmcnt(0)')
        a(f'v_readfirstlane_b32 s17, v{16+u}\ns_cmp_ge_i32 s17, s16\ns_cbranch_scc1 {ok}')
        a(f'{rt}:')
        a(f'ds_read_b128 v[16:19], v14 offset:{F_CONS}\ns_sub_u32 s18, s18, 1\ns_cbranch_scc1 L_end\ns_waitcnt lgkmcnt(0)')
        a(f'v_readfirstlane_b32 s17, v{16+u}\ns_cmp_ge_i32 s17, s16\ns_cbranch_scc0 {rt}')
        a(f'{ok}:')
        a(f'ds_read_b128 v[16:19], v14 offset:{F_CONS}')
        ld_tile(u)
    a('s_add_u32 s15, s15, 1\ns_cmp_lt_u32 s15, 32\ns_cbranch_scc1 L_ld_loop')
    for t in range(128 - lag, 128):
        a(f'v_mov_b32 v15, {t+1}\ns_waitcnt vmcnt({8*(127-t)})\nds_write_b32 v14, v15 offset:{F_LAND}')
    if stamps:
        stamp(1)
        a('s_load_dwordx2 s[46:47], s[0:1], 96\ns_waitcnt lgkmcnt(0)')
        a('s_branch L_stamp_out')
    a('s_endpgm')

    P = 16
    FR = 48
    SEL = 80
    AT = 88
    DT = 96
    OA = 100
    KA = OA
    VA = 108
    VFL, VM, VL, VW, VXB = 1, 110, 111, 2, 3
    T0 = 4
    YA = 112
    TAG = 's64'

    def timeout():
        a('s_sub_u32 s66, s66, 1\ns_cbranch_scc1 L_end')

    def wait_flags(off, n, slp=0):
        l = lab('wf')
        ok = lab('wfok')
        a(f'{l}:')
        if n == 1:
            a(f'ds_read_b32 v{T0}, v{VFL} offset:{off}\ns_waitcnt lgkmcnt(0)')
        else:
            a(f'ds_read_b128 v[{T0}:{T0+3}], v{VFL} offset:{off}\ns_waitcnt lgkmcnt(0)')
            a(f'v_min3_u32 v{T0}, v{T0}, v{T0+1}, v{T0+2}')
            if n == 4:
                a(f'v_min_u32 v{T0}, v{T0}, v{T0+3}')
        a(f'v_readfirstlane_b32 s67, v{T0}\ns_cmp_lg_u32 s67, 0\ns_cbranch_scc1 {ok}')
        timeout()
        if slp:
            a(f's_sleep {slp}')
        a(f's_branch {l}\n{ok}:')

    def set_flag(off):
        a(f'ds_write_b32 v15, v14 offset:{off}')

    def wait_tile(t_const, slp):
        l = lab('wt')
        ok = lab('wtok')
        a(f's_add_u32 s67, s23, {t_const}\ns_cmp_gt_i32 s65, s67\ns_cbranch_scc1 {ok}')
        a(f'{l}:')
        a(f'ds_read_b32 v{T0}, v{VFL} offset:{F_LAND}\ns_waitcnt lgkmcnt(0)')
        a(f'v_readfirstlane_b32 s65, v{T0}\ns_cmp_gt_i32 s65, s67\ns_cbranch_scc1 {ok}')
        timeout()
        if slp:
            a(f's_sleep {slp}')
        a(f's_branch {l}\n{ok}:')

    def reduce32(op, t, u):
        for r in (8, 4, 2, 1):
            a(f'v_{op}_f32_dpp v{t}, v{t}, v{t} row_ror:{r} row_mask:0xf bank_mask:0xf')
        a(f'v_mov_b32 v{u}, v{t}\nv_permlane16_swap_b32 v{t}, v{u}\nv_{op}_f32 v{t}, v{t}, v{u}')

    def reduce_rows(op, t, u):
        a(f'v_mov_b32 v{u}, v{t}\nv_permlane16_swap_b32 v{t}, v{u}\nv_{op}_f32 v{t}, v{t}, v{u}')
        a(f'v_mov_b32 v{u}, v{t}\nv_permlane32_swap_b32 v{t}, v{u}\nv_{op}_f32 v{t}, v{t}, v{u}')

    def rnd(r):
        a(f'v_cvt_pk_bf16_f32 v{r}, v{r}, v{r}\nv_lshlrev_b32 v{r}, 16, v{r}')

    def layernorm(raw, f, vmask):
        t = T0
        for i in range(8):
            a(f'v_lshlrev_b32 v{f+2*i}, 16, v{raw+i}\nv_and_b32 v{f+2*i+1}, 0xffff0000, v{raw+i}')
        pk = lambda r: f'v[{r}:{r+1}]'
        a(f'v_pk_add_f32 {pk(t)}, {pk(f)}, {pk(f+2)}\nv_pk_add_f32 {pk(t+2)}, {pk(f+4)}, {pk(f+6)}')
        a(f'v_pk_add_f32 {pk(t)}, {pk(t)}, {pk(f+8)}\nv_pk_add_f32 {pk(t+2)}, {pk(t+2)}, {pk(f+10)}')
        a(f'v_pk_add_f32 {pk(t)}, {pk(t)}, {pk(f+12)}\nv_pk_add_f32 {pk(t+2)}, {pk(t+2)}, {pk(f+14)}')
        a(f'v_pk_add_f32 {pk(t)}, {pk(t)}, {pk(t+2)}\nv_add_f32 v{t}, v{t}, v{t+1}\nv_mul_f32 v{t}, v{t}, v{vmask}')
        reduce32('add', t, t + 1)
        a(f'v_mul_f32 v{t+2}, {fb(1/448)}, v{t}')
        neg = 'op_sel_hi:[1,0] neg_lo:[0,1] neg_hi:[0,1]'
        for i in range(8):
            d = t + 4 + 2 * (i & 1)
            a(f'v_pk_add_f32 {pk(d)}, {pk(f+2*i)}, {pk(t+2)} {neg}')
            if i == 0:
                a(f'v_pk_mul_f32 {pk(t)}, {pk(d)}, {pk(d)}')
            else:
                a(f'v_pk_fma_f32 {pk(t)}, {pk(d)}, {pk(d)}, {pk(t)}')
        a(f'v_add_f32 v{t}, v{t}, v{t+1}\nv_mul_f32 v{t}, v{t}, v{vmask}')
        rnd(t + 2)
        reduce32('add', t, t + 1)
        a(f'v_mul_f32 v{t}, {fb(1/448)}, v{t}')
        rnd(t)
        a(f'v_add_f32 v{t}, {fb(1e-5)}, v{t}')
        rnd(t)
        a(f'v_sqrt_f32 v{t}, v{t}')
        for i in range(8):
            a(f'v_pk_add_f32 {pk(f+2*i)}, {pk(f+2*i)}, {pk(t+2)} {neg}')
        rnd(t)
        a(f'v_rcp_f32 v{t}, v{t}')
        for i in range(8):
            a(f'v_cvt_pk_bf16_f32 v{raw+i}, v{f+2*i}, v{f+2*i+1}')
        for i in range(8):
            a(f'v_lshlrev_b32 v{f+2*i}, 16, v{raw+i}\nv_and_b32 v{f+2*i+1}, 0xffff0000, v{raw+i}')
        for i in range(8):
            a(f'v_pk_mul_f32 {pk(f+2*i)}, {pk(f+2*i)}, {pk(t)} op_sel_hi:[1,0]')
        for i in range(8):
            a(f'v_cvt_pk_bf16_f32 v{raw+i}, v{f+2*i}, v{f+2*i+1}')

    def slab_mfma(act, abase):
        a(f'v_lshrrev_b32 v{T0}, 4, v0\nv_and_b32 v{T0+1}, 15, v0')
        a(f'v_lshlrev_b32 v{T0+2}, 8, v{T0}\nv_lshl_add_u32 v{T0+2}, v{T0+1}, 3, v{T0+2}\nv_add_u32 v{T0+2}, {STG}, v{T0+2}')
        a(f'v_and_b32 v{T0+1}, 7, v0\nv_mul_u32_u24 v{T0+1}, {XS}, v{T0+1}\nv_lshl_add_u32 v{T0+1}, v{T0}, 4, v{T0+1}\nv_add_u32 v{T0+1}, {act}, v{T0+1}')

        def rd(ks):
            a(f'ds_read_b64_tr_b16 {ar(abase+4*ks,2)}, v{T0+2} offset:{ks*1024}')
            a(f'ds_read_b64_tr_b16 {ar(abase+4*ks+2,2)}, v{T0+2} offset:{ks*1024+128}')
            a(f'ds_read_b128 {ar(abase+56+4*ks,4)}, v{T0+1} offset:{ks*64}')
        for ks in range(4):
            rd(ks)
        for ks in range(14):
            if ks + 4 < 14:
                rd(ks + 4)
            left = min(13 - ks, 4)
            a(f's_waitcnt lgkmcnt({3*left})')
            c = '0' if ks == 0 else vr(DT, 4)
            a(f'v_mfma_f32_16x16x32_bf16 {vr(DT,4)}, {ar(abase+4*ks,4)}, {ar(abase+56+4*ks,4)}, {c}')

    def build_a(dst, src, e):
        for i in range(4):
            a(f'v_perm_b32 v{dst+i}, v{src}, v{src}, v{SEL+4*e+i}')

    a('L_consumer:')
    if prefetch:
        a('s_getpc_b64 s[26:27]\nv_lshlrev_b32 v4, 7, v0')
        a('s_sub_u32 s67, s3, 1\ns_lshl_b32 s67, s67, 13\nv_add_u32 v4, s67, v4')
        a('v_min_u32 v4, L_end-L_consumer-64, v4')
        a(f'global_load_dword v{DT}, v4, s[26:27]')
    a('s_load_dwordx2 s[24:25], s[0:1], 0\ns_load_dwordx4 s[28:31], s[0:1], 24\ns_load_dwordx2 s[46:47], s[0:1], 96')
    a('s_load_dwordx8 s[36:43], s[0:1], 48\ns_load_dwordx2 s[44:45], s[0:1], 80')
    a('s_sub_u32 s23, s3, 1\ns_mov_b32 s65, 0\ns_mov_b32 s66, 0x100000')
    XR = FR
    XF = FR + 8
    VMK = FR + 24
    VXO = FR + 25
    a(f'v_lshrrev_b32 v6, 5, v0\nv_and_b32 v7, 31, v0\ns_lshl_b32 s67, s23, 1\nv_add_u32 v6, s67, v6')
    a(f'v_mul_u32_u24 v8, 896, v6\nv_lshl_add_u32 v8, v7, 5, v8\nv_cmp_gt_u32 vcc, 28, v7')
    a(f'v_mov_b32 v9, 0x10000\nv_cndmask_b32 v8, v9, v8, vcc\nv_cndmask_b32 v{VMK}, 0, 1.0, vcc')
    a(f'v_mul_u32_u24 v{VXO}, {XS}, v6\nv_lshl_add_u32 v{VXO}, v7, 5, v{VXO}\nv_add_u32 v{VXO}, {XN}, v{VXO}')
    a('s_mov_b64 s[70:71], vcc')
    a('v_lshrrev_b32 v10, 1, v0\nv_and_b32 v11, 1, v0\nv_lshlrev_b32 v11, 4, v11\nv_lshl_add_u32 v12, v10, 13, v11')
    a('s_lshl_b32 s68, s20, 5\ns_add_u32 s68, s68, s19\ns_lshl_b32 s68, s68, 5')
    a('s_lshl_b32 s67, s23, 18\ns_add_u32 s69, s68, s67')
    a(f's_lshl_b32 s72, s23, 10\ns_add_u32 s72, s72, {STG}')
    a(f'v_mov_b32 v{VFL}, {FLG}\ns_lshl_b32 s67, s23, 2\nv_add_u32 v15, s67, v{VFL}\nv_mov_b32 v14, 1')
    a('s_waitcnt lgkmcnt(0)')
    if stamps:
        a('s_mov_b32 s80, s98')
    a('s_load_dword s64, s[46:47], 0')
    srd(48, 24, 7168)
    a(f'buffer_load_dwordx4 {vr(XR,4)}, v8, s[48:51], 0 offen\nbuffer_load_dwordx4 {vr(XR+4,4)}, v8, s[48:51], 0 offen offset:16')
    srd(56, 28, 448 * 8192)
    for j in range(3):
        a(f's_add_u32 m0, s72, {j*4096}\ns_add_u32 s67, s69, {j << 20}')
        a(f'buffer_load_dwordx4 v12, s[56:59], s67 offen {wflags} lds')
    srd(52, 46, W_STAMP + 0x40000 if stamps else W_END)
    a('s_lshl_b32 s73, s21, 3\ns_add_u32 s73, s73, s20\ns_lshl2_add_u32 s74, s73, s22')
    a('s_cmp_ge_u32 s23, 2\ns_cbranch_scc1 L_clear')
    a(f's_add_u32 m0, s72, {3*4096}\ns_add_u32 s67, s69, {3 << 20}')
    a(f'buffer_load_dwordx4 v12, s[56:59], s67 offen {wflags} lds')
    a('s_branch L_clear_done')
    a('L_clear:')
    a(f's_mov_b32 s67, {W_YP}\ns_cmp_eq_u32 s23, 2\ns_cselect_b32 s67, {W_OP}, s67\ns_lshl_b32 s75, s74, 11\ns_add_u32 s67, s67, s75')
    a('v_lshlrev_b32 v10, 4, v0\nv_mov_b32 v4, -1\nv_mov_b32 v5, -1\nv_mov_b32 v6, -1\nv_mov_b32 v7, -1')
    a('buffer_store_dwordx4 v[4:7], v10, s[52:55], s67 offen sc1\nbuffer_store_dwordx4 v[4:7], v10, s[52:55], s67 offen offset:1024 sc1')
    a('L_clear_done:')
    a('v_and_b32 v10, 1, v0\nv_bfe_u32 v11, v0, 1, 2\nv_cmp_eq_u32 vcc, 0, v10')
    a('v_mov_b32 v12, 0x01000c0c\nv_mov_b32 v13, 0x0c0c0100\nv_cndmask_b32 v12, v12, v13, vcc')
    a('v_mov_b32 v10, 0x03020c0c\nv_mov_b32 v13, 0x0c0c0302\nv_cndmask_b32 v13, v10, v13, vcc')
    a('v_mov_b32 v10, 0x0c0c0c0c')
    for i in range(4):
        a(f'v_cmp_eq_u32 vcc, {i}, v11\nv_cndmask_b32 v{SEL+i}, v10, v12, vcc\nv_cndmask_b32 v{SEL+4+i}, v10, v13, vcc')
    a('v_lshrrev_b32 v10, 4, v0\nv_and_b32 v11, 15, v0\ns_lshl_b32 s67, s23, 13\nv_lshlrev_b32 v12, 9, v11\nv_add_u32 v12, s67, v12')
    for j in range(4):
        a(f'v_add_u32 v13, {4*j}, v10\nv_xor_b32 v13, v13, v11\nv_lshl_add_u32 v{KA+j}, v13, 4, v12\nv_add_u32 v{KA+4+j}, 0x10000, v{KA+j}')
    a(f'v_lshlrev_b32 v12, 11, v10\nv_lshl_add_u32 v12, v11, 4, v12\nv_add_u32 v{VA}, s67, v12\nv_add_u32 v{VA+1}, 0x10000, v{VA}')
    a(f'v_mov_b32 v{VM}, 0xff800000')
    a('s_barrier')
    a('s_waitcnt vmcnt(4)')
    stamp(1)
    layernorm(XR, XF, VMK)
    a('s_mov_b64 exec, s[70:71]')
    a(f'ds_write_b128 v{VXO}, {vr(XR,4)} offset:0\nds_write_b128 v{VXO}, {vr(XR+4,4)} offset:16')
    a('s_mov_b64 exec, -1')
    a('s_waitcnt vmcnt(0) lgkmcnt(0)')
    set_flag(F_X)
    a('s_add_u32 s64, s64, 1')

    def ln2():
        layernorm(XR, XF, VMK)
        a('s_mov_b64 exec, s[70:71]')
        a(f'ds_write_b128 v{VXO}, {vr(XR,4)} offset:{YN-XN}\nds_write_b128 v{VXO}, {vr(XR+4,4)} offset:{YN-XN+16}')
        a('s_mov_b64 exec, -1')
        set_flag(F_Y)

    a('s_cmp_lg_u32 s23, 0\ns_cbranch_scc1 L_notq')
    wait_flags(F_X, 4)
    stamp(2)
    slab_mfma(XN, 0)
    a(f'v_lshrrev_b32 v8, 4, v0\nv_and_b32 v9, 15, v0\nv_lshlrev_b32 v10, 14, v9\nv_lshl_add_u32 v10, v8, 4, v10')
    a(f'v_cmp_gt_u32 vcc, 8, v9\nv_mov_b32 v9, 0x1000000\nv_cndmask_b32 v10, v9, v10, vcc')
    a(f's_lshl_b32 s67, s68, 1\ns_add_u32 s67, s67, {W_Q}')
    a(f'v_mov_b32 v5, {TAG}\nv_mov_b32 v7, {TAG}')
    a(f'v_cvt_pk_bf16_f32 v4, v{DT}, v{DT+1}\nv_cvt_pk_bf16_f32 v6, v{DT+2}, v{DT+3}')
    a('buffer_store_dwordx4 v[4:7], v10, s[52:55], s67 offen sc1')
    stamp(3)
    a(f's_lshl_b32 s67, s21, 14\ns_lshl_b32 s75, s20, 11\ns_add_u32 s76, s67, s75\ns_add_u32 s76, s76, {W_Q}')
    a('v_lshlrev_b32 v12, 5, v0')
    a('L_qpoll:')
    a(f'buffer_load_dwordx4 v[4:7], v12, s[52:55], s76 offen sc1\nbuffer_load_dwordx4 v[8:11], v12, s[52:55], s76 offen offset:16 sc1')
    timeout()
    a('s_waitcnt vmcnt(0)')
    a(f'v_xor_b32 v5, {TAG}, v5\nv_xor_b32 v7, {TAG}, v7\nv_xor_b32 v9, {TAG}, v9\nv_xor_b32 v11, {TAG}, v11')
    a('v_or3_b32 v5, v5, v7, v9\nv_or_b32 v5, v5, v11\nv_cmp_ne_u32 vcc, 0, v5\ns_cbranch_vccnz L_qpoll')
    a(f'v_mov_b32 v5, v6\nv_mov_b32 v6, v8\nv_mov_b32 v7, v10\nv_lshlrev_b32 v12, 4, v0')
    a(f'v_add_u32 v13, {QL}, v12\nds_write_b128 v13, v[4:7]')
    a(f'ds_write_b32 v{VFL}, v14 offset:{F_Q}')
    stamp(4)
    for i in range(8):
        a(f'v_accvgpr_write_b32 a{136+i}, v{XR+i}')
    a(f'v_accvgpr_write_b32 a134, v{VMK}\nv_accvgpr_write_b32 a135, v{VXO}')
    a('s_branch L_haveq')
    a('L_notq:')
    a('s_cmp_ge_u32 s19, 14\ns_cbranch_scc1 L_noln2')
    ln2()
    a('L_noln2:')
    wait_flags(F_Q, 1, sleep)
    a('L_haveq:')
    a(f'v_bfe_u32 v10, v0, 3, 1\nv_lshrrev_b32 v11, 4, v0\nv_lshlrev_b32 v10, 9, v10\nv_lshl_add_u32 v10, v11, 4, v10\nv_add_u32 v10, {QL}, v10')
    for ks in range(8):
        a(f'ds_read_b128 {ar(4*ks,4)}, v10 offset:{ks*64}')

    for k in range(16):
        wait_tile(4 * k, sleep)
        for ks in range(8):
            a(f'ds_read_b128 {vr(FR+4*ks,4)}, v{KA + (4 if k & 2 else 0) + (ks & 3)} offset:{(k&1)*32768 + (ks>>2)*256}')
        a(f'v_mov_b32 v{T0+1}, {k+1}')
        for ks in range(8):
            a(f's_waitcnt lgkmcnt({7-ks})')
            if ks == 7:
                a(f'ds_write_b32 v15, v{T0+1} offset:{F_CONS}')
            c = '0' if ks == 0 else vr(DT, 4)
            a(f'v_mfma_f32_16x16x32_bf16 {vr(DT,4)}, {vr(FR+4*ks,4)}, {ar(4*ks,4)}, {c}')
        a(f'v_max3_f32 v{VM}, v{VM}, v{DT}, v{DT+1}\nv_max3_f32 v{VM}, v{VM}, v{DT+2}, v{DT+3}')
        a(f'v_cvt_pk_bf16_f32 v{P+2*k}, v{DT}, v{DT+1}\nv_cvt_pk_bf16_f32 v{P+2*k+1}, v{DT+2}, v{DT+3}')
        if k == 1:
            sk = lab('w1')
            a(f's_cmp_lg_u32 s23, 1\ns_cbranch_scc1 {sk}\ns_cmp_ge_u32 s19, 14\ns_cbranch_scc1 {sk}')
            srd(56, 36, 448 * 3584)
            a('v_lshrrev_b32 v10, 1, v0\nv_and_b32 v11, 1, v0\nv_mul_u32_u24 v10, 3584, v10\nv_lshl_add_u32 v10, v11, 4, v10')
            a('s_mul_i32 s77, s20, 14\ns_add_u32 s77, s77, s19\ns_lshl_b32 s77, s77, 5')
            for j in range(14):
                a(f's_mov_b32 m0, {STG + j*1024}\ns_add_u32 s67, s77, {j*32*3584}')
                a(f'buffer_load_dwordx4 v10, s[56:59], s67 offen {wflags} lds')
            srd(56, 38, 3584)
            a(f'v_lshrrev_b32 v10, 4, v0\nv_lshlrev_b32 v10, 3, v10')
            a(f'buffer_load_dwordx2 v[{AT}:{AT+1}], v10, s[56:59], s77 offen')
            a(f'{sk}:')
        if k == 3:
            sk = lab('ln2')
            a(f's_cmp_lg_u32 s23, 0\ns_cbranch_scc1 {sk}\ns_cmp_ge_u32 s19, 14\ns_cbranch_scc1 {sk}')
            for i in range(8):
                a(f'v_accvgpr_read_b32 v{XR+i}, a{136+i}')
            a(f'v_accvgpr_read_b32 v{VMK}, a134\nv_accvgpr_read_b32 v{VXO}, a135')
            ln2()
            a(f'{sk}:')
        if k == 5:
            sk = lab('h')
            a(f's_cmp_lg_u32 s23, 1\ns_cbranch_scc1 {sk}\ns_cmp_ge_u32 s19, 14\ns_cbranch_scc1 {sk}')
            wait_flags(F_Y, 4, sleep)
            a('s_waitcnt vmcnt(0)')
            slab_mfma(YN, 32)
            a(f'v_lshlrev_b32 v8, 16, v{AT}\nv_and_b32 v9, 0xffff0000, v{AT}\nv_lshlrev_b32 v10, 16, v{AT+1}\nv_and_b32 v11, 0xffff0000, v{AT+1}')
            c0 = -2 * 0.7978845608028654 * LOG2E
            a(f's_mov_b32 s75, {fb(c0 * 0.044715)}\nv_mov_b32 v12, {fb(c0)}')
            for r in range(4):
                rnd(DT + r)
            for r in range(4):
                a(f'v_add_f32 v{DT+r}, v{DT+r}, v{8+r}')
            for r in range(4):
                rnd(DT + r)
            for r in range(4):
                a(f'v_mul_f32 v{8+r}, v{DT+r}, v{DT+r}\nv_fma_f32 v{8+r}, v{8+r}, s75, v12\nv_mul_f32 v{8+r}, v{8+r}, v{DT+r}')
            for r in range(4):
                a(f'v_exp_f32 v{8+r}, v{8+r}')
            for r in range(4):
                a(f'v_add_f32 v{8+r}, 1.0, v{8+r}')
            for r in range(4):
                a(f'v_rcp_f32 v{8+r}, v{8+r}')
            for r in range(4):
                a(f'v_mul_f32 v{DT+r}, v{DT+r}, v{8+r}')
            a(f'v_lshrrev_b32 v8, 4, v0\nv_and_b32 v9, 15, v0\nv_lshlrev_b32 v10, 13, v9\nv_lshl_add_u32 v10, v8, 4, v10')
            a(f'v_cmp_gt_u32 vcc, 8, v9\nv_mov_b32 v9, 0x1000000\nv_cndmask_b32 v10, v9, v10, vcc')
            a(f's_lshl_b32 s67, s77, 1\ns_add_u32 s67, s67, {W_H}')
            a(f'v_mov_b32 v5, {TAG}\nv_mov_b32 v7, {TAG}')
            a(f'v_cvt_pk_bf16_f32 v4, v{DT}, v{DT+1}\nv_cvt_pk_bf16_f32 v6, v{DT+2}, v{DT+3}')
            a('buffer_store_dwordx4 v[4:7], v10, s[52:55], s67 offen sc1')
            a(f'{sk}:')
        if k == 9:
            srd(60, 40, 1792 * 896)
            a('s_lshl2_add_u32 s75, s20, s22\ns_lshl2_add_u32 s75, s75, s23\ns_mul_i32 s78, s75, 14')
            a(f'v_lshrrev_b32 v10, 3, v0\nv_and_b32 v11, 7, v0\nv_mul_u32_u24 v10, {2*896}, v10\nv_lshl_add_u32 v10, v11, 4, v10')
            a('s_mul_i32 s67, s78, 896\ns_add_u32 s75, s67, 896')
            for t in range(2):
                for cb in range(7):
                    a(f'buffer_load_dwordx4 {ar(32+4*(t*7+cb),4)}, v10, s[60:63], {"s67" if t == 0 else "s75"} offen offset:{cb*128} {wflags}')
        if k == 11:
            l = lab('hp')
            a(f's_lshl_b32 s67, s21, 13\ns_lshl_b32 s75, s78, 2\ns_add_u32 s67, s67, s75\ns_add_u32 s67, s67, {W_H}')
            a(f'v_lshrrev_b32 v10, 3, v0\nv_cmp_gt_u32 s[68:69], 7, v10\nv_min_u32 v10, 6, v10\nv_lshlrev_b32 v10, 3, v10')
            a(f'{l}:')
            a(f'buffer_load_dwordx2 v[4:5], v10, s[52:55], s67 offen sc1')
            timeout()
            a(f's_waitcnt vmcnt(0)\nv_cmp_ne_u32 vcc, {TAG}, v5\ns_cbranch_vccnz {l}')
            a('v_cndmask_b32 v4, 0, v4, s[68:69]')
            build_a(AT, 4, 0)
            build_a(AT + 4, 4, 1)
            for t in range(2):
                for cb in range(7):
                    c = '0' if t == 0 else ar(YA + 4 * cb, 4)
                    a(f'v_mfma_f32_16x16x32_bf16 {ar(YA+4*cb,4)}, {vr(AT+4*t,4)}, {ar(32+4*(t*7+cb),4)}, {c}')
    stamp(5)
    reduce_rows('max', VM, T0)
    rnd(VM)
    a(f'v_bfe_u32 v10, v0, 3, 1\nv_lshl_add_u32 v10, v10, 2, v{VFL}\ns_lshl_b32 s67, s23, 3\nv_add_u32 v11, s67, v10')
    a(f'ds_write_b32 v11, v{VM} offset:{MX}')
    set_flag(F_M)
    wait_flags(F_M, 4)
    a(f'ds_read2_b32 v[4:5], v10 offset0:{MX//4} offset1:{MX//4+2}\nds_read2_b32 v[6:7], v10 offset0:{MX//4+4} offset1:{MX//4+6}')
    a(f's_mov_b32 s75, {fb(LOG2E/16)}\nv_mov_b32 v{VL}, 0\nv_mov_b32 v12, 0')
    a(f's_waitcnt lgkmcnt(0)\nv_max3_f32 v4, v4, v5, v6\nv_max_f32 v{VM}, v4, v7\nv_mul_f32 v13, {fb(-LOG2E/16)}, v{VM}')
    for j in range(0, 32, 2):
        a(f'v_lshlrev_b32 v4, 16, v{P+j}\nv_and_b32 v5, 0xffff0000, v{P+j}\nv_lshlrev_b32 v6, 16, v{P+j+1}\nv_and_b32 v7, 0xffff0000, v{P+j+1}')
        for r in range(4):
            a(f'v_fma_f32 v{4+r}, v{4+r}, s75, v13')
        for r in range(4):
            a(f'v_exp_f32 v{4+r}, v{4+r}')
        a(f'v_add_f32 v{VL}, v{VL}, v4\nv_add_f32 v12, v12, v5\nv_cvt_pk_bf16_f32 v{P+j}, v4, v5')
        a(f'v_add_f32 v{VL}, v{VL}, v6\nv_add_f32 v12, v12, v7\nv_cvt_pk_bf16_f32 v{P+j+1}, v6, v7')
    a(f'v_add_f32 v{VL}, v{VL}, v12')
    reduce_rows('add', VL, T0)
    a(f'ds_write_b32 v11, v{VL} offset:{LS}')
    set_flag(F_L)
    a('s_cmp_lg_u32 s23, 0\ns_cbranch_scc1 L_nostat')
    wait_flags(F_L, 4)
    a(f'ds_read2_b32 v[4:5], v10 offset0:{LS//4} offset1:{LS//4+2}\nds_read2_b32 v[6:7], v10 offset0:{LS//4+4} offset1:{LS//4+6}')
    a(f'v_and_b32 v8, 0x37, v0\nv_cmp_eq_u32 vcc, 0, v8\nv_lshlrev_b32 v8, 1, v0\nv_mov_b32 v9, 0x1000000\nv_cndmask_b32 v8, v9, v8, vcc')
    a(f's_lshl_b32 s67, s74, 7\ns_add_u32 s67, s67, {W_ST}')
    a(f's_waitcnt lgkmcnt(0)\nv_add_f32 v4, v4, v5\nv_add_f32 v6, v6, v7\nv_add_f32 v6, v4, v6')
    a(f'v_mov_b32 v4, v{VM}\nv_mov_b32 v5, {TAG}\nv_mov_b32 v7, {TAG}')
    a('buffer_store_dwordx4 v[4:7], v8, s[52:55], s67 offen sc1')
    a('L_nostat:')
    srd(60, 30, 4096 * 896)
    a('s_lshl2_add_u32 s75, s20, s22\ns_lshl2_add_u32 s75, s75, s23\ns_mul_i32 s78, s75, 32*896')
    a(f'v_lshrrev_b32 v10, 3, v0\nv_and_b32 v11, 7, v0\nv_mul_u32_u24 v10, {4*896}, v10\nv_lshl_add_u32 v{VL}, v11, 4, v10')

    def v_tile(k, extra=None):
        for r in range(4):
            for hf in range(2):
                a(f'ds_read_b128 {vr(FR+4*(2*r+hf),4)}, v{VA + (1 if k & 2 else 0)} offset:{(k&1)*32768 + r*512 + hf*256}')
        n_extra = extra() if extra else 0
        a(f'v_mov_b32 v{T0+1}, {k+17}')
        for r in range(4):
            at = AT + 4 * (r & 1)
            build_a(at, P + 2 * k + (r >> 1), r & 1)
            for hf in range(2):
                a(f's_waitcnt lgkmcnt({7-(2*r+hf)+n_extra})')
                if r == 3 and hf == 1 and k < 15:
                    a(f'ds_write_b32 v15, v{T0+1} offset:{F_CONS}')
                c = '0' if (k == 0 and r == 0) else vr(OA + 4 * hf, 4)
                a(f'v_mfma_f32_16x16x32_bf16 {vr(OA+4*hf,4)}, {vr(at,4)}, {vr(FR+4*(2*r+hf),4)}, {c}')

    for k in range(15):
        wait_tile(64 + 4 * k, sleep)
        v_tile(k)
        if k < 7:
            for j in range(4 * k, 4 * k + 4):
                t, cb = divmod(j, 7)
                if j % 7 == 0 or j % 4 == 0:
                    a(f's_add_u32 s67, s78, {t*896}')
                a(f'buffer_load_dwordx4 {ar(4*j,4)}, v{VL}, s[60:63], s67 offen offset:{cb*128} {wflags}')
        if k == 12:
            l = lab('sp')
            a(f's_lshl_b32 s67, s73, 9\ns_lshr_b32 s75, s22, 1\ns_lshl_b32 s75, s75, 4\ns_add_u32 s67, s67, s75\ns_add_u32 s67, s67, {W_ST}')
            a('v_and_b32 v10, 3, v0\nv_lshlrev_b32 v10, 7, v10')
            a(f'{l}:')
            a('buffer_load_dwordx4 v[4:7], v10, s[52:55], s67 offen sc1')
            timeout()
            a(f's_waitcnt vmcnt(0)\nv_xor_b32 v5, {TAG}, v5\nv_xor_b32 v7, {TAG}, v7\nv_or_b32 v5, v5, v7\nv_cmp_ne_u32 vcc, 0, v5\ns_cbranch_vccnz {l}')
            a('v_max_f32_dpp v5, v4, v4 quad_perm:[1,0,3,2] row_mask:0xf bank_mask:0xf')
            a('v_max_f32_dpp v5, v5, v5 quad_perm:[2,3,0,1] row_mask:0xf bank_mask:0xf')
            a(f'v_sub_f32 v4, v4, v5\nv_mul_f32 v4, {fb(LOG2E/16)}, v4\nv_exp_f32 v4, v4\nv_mul_f32 v6, v6, v4')
            a('v_add_f32_dpp v6, v6, v6 quad_perm:[1,0,3,2] row_mask:0xf bank_mask:0xf')
            a('v_add_f32_dpp v6, v6, v6 quad_perm:[2,3,0,1] row_mask:0xf bank_mask:0xf')
            a(f'v_rcp_f32 v6, v6\nv_mul_f32 v{VW}, v4, v6')
        if k == 13:
            sk = lab('fc')
            l = lab('fcp')
            a(f's_lshl2_add_u32 s79, s20, s22\ns_cmp_lg_u32 s23, 0\ns_cbranch_scc1 {sk}\ns_cmp_ge_u32 s79, 28\ns_cbranch_scc1 {sk}')
            srd(56, 42, 896)
            a('v_and_b32 v10, 3, v0\nv_bfe_u32 v11, v0, 2, 2\nv_lshl_add_u32 v10, v10, 2, v11\nv_lshlrev_b32 v10, 1, v10')
            a('s_lshl_b32 s75, s79, 5\ns_mul_i32 s76, s21, 896\ns_add_u32 s76, s76, s75')
            a('buffer_load_ushort v8, v10, s[48:51], s76 offen\nbuffer_load_ushort v9, v10, s[56:59], s75 offen')
            a(f's_lshl_b32 s67, s21, 12\ns_add_u32 s67, s67, {W_ST}\nv_and_b32 v11, 31, v0\nv_lshlrev_b32 v11, 7, v11')
            a(f'{l}:')
            a('buffer_load_dword v4, v11, s[52:55], s67 offen offset:4 sc1')
            timeout()
            a(f's_waitcnt vmcnt(0)\nv_cmp_ne_u32 vcc, {TAG}, v4\ns_cbranch_vccnz {l}')
            a(f'v_lshlrev_b32 v8, 16, v8\nv_lshlrev_b32 v9, 16, v9\nv_add_f32 v{VXB}, v8, v9')
            a(f'{sk}:')
    VO1, VO2, VO3, VO4, VO5 = P, P + 1, P + 2, P + 3, P + 4
    a(f'v_lshlrev_b32 v{VO1}, 4, v0\ns_lshl_b32 s67, s23, 11\ns_add_u32 s67, s67, {OPL}\nv_add_u32 v{VO2}, s67, v{VO1}\nv_add_u32 v{VO1}, {OPL}, v{VO1}')
    a(f'v_lshrrev_b32 v10, 5, v0\nv_and_b32 v11, 15, v0\nv_lshlrev_b32 v10, 10, v10\nv_lshl_add_u32 v10, v11, 5, v10')
    a(f'v_bfe_u32 v11, v0, 4, 1\nv_lshl_add_u32 v{VO3}, v11, 4, v10')
    a(f's_lshl_b32 s68, s74, 11\ns_add_u32 s68, s68, {W_OP}')
    a(f'v_and_b32 v10, 3, v0\nv_lshrrev_b32 v11, 3, v0\nv_lshlrev_b32 v10, 11, v10\nv_lshl_add_u32 v{VO4}, v11, 4, v10')
    a(f's_lshl_b32 s69, s73, 13\ns_lshl2_add_u32 s67, s22, s23\ns_lshl_b32 s67, s67, 7\ns_add_u32 s69, s69, s67\ns_add_u32 s69, s69, {W_OP}')
    a(f'v_lshrrev_b32 v10, 5, v0\ns_lshl_b32 s67, s23, 1\nv_add_u32 v10, s67, v10\nv_mul_u32_u24 v10, {RS}, v10')
    a(f'v_and_b32 v11, 7, v0\nv_lshl_add_u32 v10, v11, 5, v10\nv_bfe_u32 v11, v0, 4, 1\nv_lshl_add_u32 v10, v11, 4, v10\nv_add_u32 v{VO5}, {RED}, v10')
    VR1, VR2, VR3, VR4 = P + 5, P + 6, P + 7, P + 8
    a(f'v_lshrrev_b32 v10, 1, v0\nv_min_u32 v10, 27, v10\ns_mul_i32 s67, s23, 28\nv_add_u32 v10, s67, v10\nv_lshlrev_b32 v10, 4, v10')
    a(f'v_and_b32 v11, 1, v0\nv_mul_u32_u24 v12, {4*RS}, v11\nv_add3_u32 v{VR1}, v10, v12, v{VFL}')
    a(f'v_add_u32 v{VR1}, {RED-FLG}, v{VR1}')
    a(f'v_cmp_gt_u32 vcc, 56, v0\nv_mov_b32 v13, 0x1000000\nv_cndmask_b32 v10, v13, v10, vcc\nv_cmp_eq_u32 vcc, 0, v11\nv_cndmask_b32 v{VR2}, v13, v10, vcc')
    a(f's_lshl_b32 s76, s74, 11\ns_add_u32 s76, s76, {W_YP}')
    a(f'v_lshrrev_b32 v10, 2, v0\nv_and_b32 v11, 3, v0\nv_lshlrev_b32 v10, 11, v10\nv_lshl_add_u32 v{VR3}, v11, 4, v10')
    a(f's_lshl_b32 s77, s21, 16\ns_lshl_b32 s67, s79, 6\ns_add_u32 s77, s77, s67\ns_add_u32 s77, s77, {W_YP}\ns_add_u32 s72, s77, 0x8000')
    a(f'v_bfe_u32 v10, v0, 2, 2\nv_lshl_add_u32 v10, v11, 2, v10\nv_lshlrev_b32 v10, 1, v10\nv_cmp_gt_u32 vcc, 16, v0\nv_cndmask_b32 v{VR4}, v13, v10, vcc')
    srd(56, 44, 7168)
    a('s_mul_i32 s78, s21, 896\ns_lshl_b32 s67, s79, 5\ns_add_u32 s78, s78, s67')
    a('s_waitcnt vmcnt(0)')

    a('s_cmp_eq_u32 s23, 3\ns_cbranch_scc1 L_lastwave')
    wait_tile(64 + 60, 0)
    v_tile(15)
    a(f'ds_write_b128 v{VO2}, {vr(OA,4)}\nds_write_b128 v{VO2}, {vr(OA+4,4)} offset:1024')
    set_flag(F_O)
    stamp(6)
    a('s_branch L_hop1')
    a('L_lastwave:')
    wait_tile(64 + 60, 0)
    v_tile(15)
    stamp(6)
    wait_flags(F_O, 3)
    for j in range(6):
        a(f'ds_read_b128 {vr(FR+4*j,4)}, v{VO1} offset:{j*1024}')
    for j in range(6):
        a(f's_waitcnt lgkmcnt({5-j})')
        o = OA + 4 * (j & 1)
        a(f'v_pk_add_f32 v[{o}:{o+1}], v[{o}:{o+1}], v[{FR+4*j}:{FR+4*j+1}]\nv_pk_add_f32 v[{o+2}:{o+3}], v[{o+2}:{o+3}], v[{FR+4*j+2}:{FR+4*j+3}]')
    a(f'buffer_store_dwordx4 {vr(OA,4)}, v{VO3}, s[52:55], s68 offen sc1\nbuffer_store_dwordx4 {vr(OA+4,4)}, v{VO3}, s[52:55], s68 offen offset:512 sc1')
    stamp(7)
    a('L_hop1:')
    a(f'buffer_load_dwordx4 v[4:7], v{VO4}, s[52:55], s69 offen sc1')
    timeout()
    a('s_waitcnt vmcnt(0)\nv_max3_u32 v8, v4, v5, v6\nv_max_u32 v8, v8, v7\nv_cmp_eq_u32 vcc, -1, v8\ns_cbranch_vccnz L_hop1')
    stamp(8)
    for r in range(4):
        a(f'v_mul_f32 v{4+r}, v{4+r}, v{VW}')
    for qp in ('[1,0,3,2]', '[2,3,0,1]'):
        for r in range(4):
            a(f'v_add_f32_dpp v{4+r}, v{4+r}, v{4+r} quad_perm:{qp} row_mask:0xf bank_mask:0xf')
    a('v_cvt_pk_bf16_f32 v4, v4, v5\nv_cvt_pk_bf16_f32 v6, v6, v7')
    build_a(AT, 4, 0)
    for t in range(4):
        for cb in range(7):
            a(f'v_mfma_f32_16x16x32_bf16 {ar(YA+4*cb,4)}, {vr(AT+4*(t&1),4)}, {ar(4*(t*7+cb),4)}, {ar(YA+4*cb,4)}')
            if cb == 0 and t < 3:
                build_a(AT + 4 * ((t + 1) & 1), 4 + 2 * ((t + 1) >> 1), (t + 1) & 1)
    a('s_mov_b32 exec_lo, 0x00ff00ff\ns_mov_b32 exec_hi, 0xff00ff00')
    for cb in range(7):
        a(f'ds_write_b128 v{VO5}, {ar(YA+4*cb,4)} offset:{cb*256}')
    a('s_mov_b64 exec, -1\ns_waitcnt lgkmcnt(0)\ns_barrier')
    for j in range(4):
        a(f'ds_read_b128 {vr(FR+4*j,4)}, v{VR1} offset:{j*RS}')
    a(f's_waitcnt lgkmcnt(2)\nv_pk_add_f32 v[4:5], v[{FR}:{FR+1}], v[{FR+4}:{FR+5}]\nv_pk_add_f32 v[6:7], v[{FR+2}:{FR+3}], v[{FR+6}:{FR+7}]')
    a(f's_waitcnt lgkmcnt(1)\nv_pk_add_f32 v[4:5], v[4:5], v[{FR+8}:{FR+9}]\nv_pk_add_f32 v[6:7], v[6:7], v[{FR+10}:{FR+11}]')
    a(f's_waitcnt lgkmcnt(0)\nv_pk_add_f32 v[4:5], v[4:5], v[{FR+12}:{FR+13}]\nv_pk_add_f32 v[6:7], v[6:7], v[{FR+14}:{FR+15}]')
    for r in range(4):
        a(f'v_add_f32_dpp v{4+r}, v{4+r}, v{4+r} quad_perm:[1,0,3,2] row_mask:0xf bank_mask:0xf')
    a(f'buffer_store_dwordx4 v[4:7], v{VR2}, s[52:55], s76 offen sc1')
    stamp(9)
    fin = 'L_stamp_out' if stamps else 'L_end'
    a(f's_cmp_lg_u32 s23, 0\ns_cbranch_scc1 {fin}\ns_cmp_ge_u32 s79, 28\ns_cbranch_scc1 {fin}')
    a('L_hop2:')
    a(f'buffer_load_dwordx4 v[8:11], v{VR3}, s[52:55], s77 offen sc1\nbuffer_load_dwordx4 {vr(FR,4)}, v{VR3}, s[52:55], s72 offen sc1')
    timeout()
    a(f's_waitcnt vmcnt(0)\nv_max3_u32 v12, v8, v9, v10\nv_max3_u32 v13, v11, v{FR}, v{FR+1}\nv_max3_u32 v12, v12, v{FR+2}, v{FR+3}')
    a('v_max_u32 v12, v12, v13\nv_cmp_eq_u32 vcc, -1, v12\ns_cbranch_vccnz L_hop2')
    a(f'v_pk_add_f32 v[8:9], v[8:9], v[{FR}:{FR+1}]\nv_pk_add_f32 v[10:11], v[10:11], v[{FR+2}:{FR+3}]')
    a('v_add_f32_dpp v4, v8, v8 row_ror:8 row_mask:0xf bank_mask:0x3\nv_add_f32_dpp v5, v9, v9 row_ror:8 row_mask:0xf bank_mask:0x3')
    a('v_add_f32_dpp v4, v10, v10 row_ror:8 row_mask:0xf bank_mask:0xc\nv_add_f32_dpp v5, v11, v11 row_ror:8 row_mask:0xf bank_mask:0xc')
    a('v_add_f32_dpp v6, v4, v4 row_shl:4 row_mask:0xf bank_mask:0x5\nv_add_f32_dpp v6, v5, v5 row_shr:4 row_mask:0xf bank_mask:0xa')
    reduce_rows('add', 6, 7)
    a(f'v_add_f32 v6, v6, v{VXB}\nv_cvt_pk_bf16_f32 v6, v6, v6')
    a(f'buffer_store_short v6, v{VR4}, s[56:59], s78 offen')
    stamp(10)
    a(f's_cmp_lg_u32 s74, 0\ns_cbranch_scc1 {fin}')
    a(f'v_mov_b32 v4, {TAG}\ns_mov_b64 exec, 1\nbuffer_store_dword v4, off, s[52:55], 0 sc1')
    if stamps:
        a('s_mov_b64 exec, -1')
        a('L_stamp_out:')
        srd(52, 46, W_STAMP + 0x40000)
        a('s_getreg_b32 s95, hwreg(HW_REG_XCC_ID)')
        a(f's_mul_i32 s67, s2, 5\ns_add_u32 s67, s67, s3\ns_lshl_b32 s67, s67, 6\ns_add_u32 s67, s67, {W_STAMP}')
        for k in range(16):
            a(f'v_mov_b32 v{16+k}, s{80+k}')
        a('s_mov_b64 exec, 1')
        for k in range(4):
            a(f'buffer_store_dwordx4 v[{16+4*k}:{19+4*k}], off, s[52:55], s67 offset:{16*k}')
    a('L_end:')
    a('s_endpgm')
    body = a.finalize()
    head = header or ''
    head += f'; @launch grid=(256,1,1) block=(320,1,1) lds={LDS_BYTES}\n'
    head += f'.amdgcn_target "amdgcn-amd-amdhsa--gfx950"\n.text\n.globl {NAME}\n.p2align 8\n.type {NAME},@function\n'
    tail = f'''.section .rodata,"a"
.p2align 6
.amdhsa_kernel {NAME}
  .amdhsa_next_free_vgpr 256
  .amdhsa_next_free_sgpr 102
  .amdhsa_accum_offset 112
  .amdhsa_group_segment_fixed_size 0
  .amdhsa_kernarg_size 104
  .amdhsa_user_sgpr_count 2
  .amdhsa_user_sgpr_kernarg_segment_ptr 1
  .amdhsa_system_sgpr_workgroup_id_x 1
  .amdhsa_float_denorm_mode_32 3
.end_amdhsa_kernel
'''
    return head + body + tail


if __name__ == '__main__':
    ref = open('parallel_sum__gqa_block_cached__mixer_channel_mlp__decode.s.ref').read().split('\n')
    hdr = '\n'.join(l for l in ref if l.startswith(';') and '@launch' not in l and 'Override' not in l and 'grid=ceil' not in l) + '\n'
    kw = eval('dict(' + (sys.argv[2] if len(sys.argv) > 2 else '') + ')')
    out = sys.argv[1] if len(sys.argv) > 1 else 'parallel_sum__gqa_block_cached__mixer_channel_mlp__decode.s'
    open(out, 'w').write(gen(header=hdr, **kw))
    print('wrote', out)
```

```python
import struct, sys, os
sys.path.insert(0, os.path.dirname(os.path.abspath(__file__)))
from asmkit import Asm

NAME = "parallel_sum__gqa_block_cached__mixer_channel_mlp__decode_kernel"


def fb(x):
    return '0x%08x' % struct.unpack('<I', struct.pack('<f', x))[0]


LOG2E = 1.4426950408889634
RING = 0
FLG = 131072
F_LAND, F_CONS, F_X, F_Q, F_Y, F_M, F_L, F_O, MX, LS = 0, 16, 32, 48, 64, 80, 96, 112, 128, 160
QL = FLG + 1024
XN = QL + 1024
XS = 912
YN = XN + 8 * XS
STG = YN + 8 * XS
LDS_BYTES = STG + 14336
OPL = XN
RED = YN
RS = 1824
W_Q = 0x1000
W_H = 0x21000
W_ST = 0x31000
W_OP = 0x40000
W_YP = 0xC0000
W_END = 0x140000
W_STAMP = 0x200000


def vr(a, n=1):
    return f'v{a}' if n == 1 else f'v[{a}:{a+n-1}]'


def ar(a, n=1):
    return f'a{a}' if n == 1 else f'a[{a}:{a+n-1}]'


def gen(D=20, kflags='nt', vflags='nt', wflags='', stamps=False, sleep=1, prefetch=True, header=None):
    a = Asm()
    uid = [0]

    def lab(p):
        uid[0] += 1
        return f'L_{p}_{uid[0]}'

    nstamp = [0]

    def stamp(k):
        if stamps:
            a(f's_memrealtime s[98:99]\ns_waitcnt lgkmcnt(0)\ns_mov_b32 s{80+k}, s98')

    def srd(d, p, size):
        a(f's_mov_b32 s{d}, s{p}\ns_mov_b32 s{d+1}, s{p+1}\ns_mov_b32 s{d+2}, {size}\ns_mov_b32 s{d+3}, 0x20000')

    a(f'{NAME}:')
    a('s_cmp_ge_u32 s2, 256\ns_cbranch_scc1 L_end')
    a('s_load_dwordx4 s[4:7], s[0:1], 8')
    if stamps:
        for k in range(16):
            a(f's_mov_b32 s{80+k}, 0')
        a('s_memrealtime s[98:99]')
    a('v_lshrrev_b32 v1, 6, v0\nv_and_b32 v0, 63, v0')
    a('v_readfirstlane_b32 s3, v1')
    a('s_and_b32 s20, s2, 7\ns_lshr_b32 s19, s2, 3\ns_and_b32 s21, s19, 7\ns_lshr_b32 s22, s19, 3')
    a('s_cmp_lg_u32 s3, 0\ns_cbranch_scc1 L_consumer')

    a('s_setprio 3')
    a('v_lshrrev_b32 v10, 5, v0\nv_and_b32 v11, 31, v0\nv_lshlrev_b32 v12, 9, v10')
    for i in range(8):
        a(f'v_add_u32 v13, {2*i}, v10\nv_xor_b32 v13, v13, v11\nv_lshl_add_u32 v{2+i}, v13, 4, v12')
    a('s_lshl_b32 s17, s21, 3\ns_add_u32 s17, s17, s20\ns_lshl_b32 s17, s17, 2\ns_add_u32 s17, s17, s22\ns_lshl_b32 s17, s17, 19')
    a('s_mov_b32 s10, 0x80000\ns_mov_b32 s11, 0x20000\ns_mov_b32 s12, 0\ns_mov_b32 s14, 0')
    a('s_mov_b32 s18, 0x100000')
    a('s_waitcnt lgkmcnt(0)')
    if stamps:
        a('s_mov_b32 s80, s98')
    a('s_add_u32 s8, s4, s17\ns_addc_u32 s9, s5, 0\ns_add_u32 s6, s6, s17\ns_addc_u32 s7, s7, 0')
    ipub = (7 + D) % 8
    lag = (7 + D) // 8

    def ld_tile(u, T=None, kvflags=kflags):
        for i in range(8):
            if i % 4 == 0:
                a(f's_add_u32 m0, s14, {u*8192 + (i//4)*4096}')
                a(f's_add_u32 s13, s12, {u*8192 + (i//4)*4096}')
            if T is None or 8 * T + i >= D:
                a(f's_waitcnt vmcnt({D-1})')
            if i == ipub:
                if T is None:
                    a(f's_lshl2_add_u32 s17, s15, {u - lag + 1}\nv_mov_b32 v15, s17\nds_write_b32 v14, v15 offset:{F_LAND}')
                elif T - lag + 1 > 0:
                    a(f'v_mov_b32 v15, {T - lag + 1}\nds_write_b32 v14, v15 offset:{F_LAND}')
            a(f'buffer_load_dwordx4 v{2+i}, s[8:11], s13 offen offset:{(i%4)*1024} {kvflags} lds')

    ld_tile(0, 0)
    a(f'v_mov_b32 v16, 0\nv_mov_b32 v17, 0\nv_mov_b32 v18, 0\nv_mov_b32 v19, 0')
    a(f'v_mov_b32 v14, {FLG}\nv_lshl_add_u32 v13, v0, 4, v14\nds_write_b128 v13, v[16:19]')
    ld_tile(1, 1)
    a('s_waitcnt lgkmcnt(0)\ns_barrier')
    ld_tile(2, 2)
    ld_tile(3, 3)
    a('s_mov_b32 s15, 1')
    for ph in range(2):
        if ph == 1:
            a('s_mov_b32 s8, s6\ns_mov_b32 s9, s7\ns_mov_b32 s12, -32768')
            for i in range(8):
                a(f'v_lshlrev_b32 v{2+i}, 4, v0')
        a(f'L_ld_loop{ph}:')
        a('s_add_u32 s12, s12, 32768\ns_add_u32 s14, s14, 32768\ns_and_b32 s14, s14, 0x1ffff\ns_sub_u32 s16, s15, 3')
        for u in range(4):
            ok = lab('ldok')
            rt = lab('ldrt')
            a('s_waitcnt lgkmcnt(0)')
            a(f'v_readfirstlane_b32 s17, v{16+u}\ns_cmp_ge_i32 s17, s16\ns_cbranch_scc1 {ok}')
            a(f'{rt}:')
            a(f'ds_read_b128 v[16:19], v14 offset:{F_CONS}\ns_sub_u32 s18, s18, 1\ns_cbranch_scc1 L_end\ns_waitcnt lgkmcnt(0)')
            a(f'v_readfirstlane_b32 s17, v{16+u}\ns_cmp_ge_i32 s17, s16\ns_cbranch_scc0 {rt}')
            a(f'{ok}:')
            a(f'ds_read_b128 v[16:19], v14 offset:{F_CONS}')
            ld_tile(u, None, vflags if ph else kflags)
        a(f's_add_u32 s15, s15, 1\ns_cmp_lt_u32 s15, {16*(ph+1)}\ns_cbranch_scc1 L_ld_loop{ph}')
    for t in range(128 - lag, 128):
        a(f'v_mov_b32 v15, {t+1}\ns_waitcnt vmcnt({8*(127-t)})\nds_write_b32 v14, v15 offset:{F_LAND}')
    if stamps:
        stamp(1)
        a('s_load_dwordx2 s[46:47], s[0:1], 96\ns_waitcnt lgkmcnt(0)')
        a('s_branch L_stamp_out')
    a('s_endpgm')

    P = 16
    FR = 48
    SEL = 80
    AT = 88
    DT = 96
    OA = 100
    KA = OA
    VA = 108
    VFL, VM, VL, VW, VXB = 1, 110, 111, 2, 3
    T0 = 4
    YA = 112
    TAG = 's64'

    def timeout():
        a('s_sub_u32 s66, s66, 1\ns_cbranch_scc1 L_end')

    def wait_flags(off, n, slp=0):
        l = lab('wf')
        ok = lab('wfok')
        a(f'{l}:')
        if n == 1:
            a(f'ds_read_b32 v{T0}, v{VFL} offset:{off}\ns_waitcnt lgkmcnt(0)')
        else:
            a(f'ds_read_b128 v[{T0}:{T0+3}], v{VFL} offset:{off}\ns_waitcnt lgkmcnt(0)')
            a(f'v_min3_u32 v{T0}, v{T0}, v{T0+1}, v{T0+2}')
            if n == 4:
                a(f'v_min_u32 v{T0}, v{T0}, v{T0+3}')
        a(f'v_readfirstlane_b32 s67, v{T0}\ns_cmp_lg_u32 s67, 0\ns_cbranch_scc1 {ok}')
        timeout()
        if slp:
            a(f's_sleep {slp}')
        a(f's_branch {l}\n{ok}:')

    def set_flag(off):
        a(f'ds_write_b32 v15, v14 offset:{off}')

    def wait_tile(t_const, slp):
        l = lab('wt')
        ok = lab('wtok')
        a(f's_add_u32 s67, s23, {t_const}\ns_cmp_gt_i32 s65, s67\ns_cbranch_scc1 {ok}')
        a(f'{l}:')
        a(f'ds_read_b32 v{T0}, v{VFL} offset:{F_LAND}\ns_waitcnt lgkmcnt(0)')
        a(f'v_readfirstlane_b32 s65, v{T0}\ns_cmp_gt_i32 s65, s67\ns_cbranch_scc1 {ok}')
        timeout()
        if slp:
            a(f's_sleep {slp}')
        a(f's_branch {l}\n{ok}:')

    def reduce32(op, t, u):
        for r in (8, 4, 2, 1):
            a(f'v_{op}_f32_dpp v{t}, v{t}, v{t} row_ror:{r} row_mask:0xf bank_mask:0xf')
        a(f'v_mov_b32 v{u}, v{t}\nv_permlane16_swap_b32 v{t}, v{u}\nv_{op}_f32 v{t}, v{t}, v{u}')

    def reduce_rows(op, t, u):
        a(f'v_mov_b32 v{u}, v{t}\nv_permlane16_swap_b32 v{t}, v{u}\nv_{op}_f32 v{t}, v{t}, v{u}')
        a(f'v_mov_b32 v{u}, v{t}\nv_permlane32_swap_b32 v{t}, v{u}\nv_{op}_f32 v{t}, v{t}, v{u}')

    def rnd(r):
        a(f'v_cvt_pk_bf16_f32 v{r}, v{r}, v{r}\nv_lshlrev_b32 v{r}, 16, v{r}')

    def layernorm(raw, f, vmask):
        t = T0
        for i in range(8):
            a(f'v_lshlrev_b32 v{f+2*i}, 16, v{raw+i}\nv_and_b32 v{f+2*i+1}, 0xffff0000, v{raw+i}')
        pk = lambda r: f'v[{r}:{r+1}]'
        a(f'v_pk_add_f32 {pk(t)}, {pk(f)}, {pk(f+2)}\nv_pk_add_f32 {pk(t+2)}, {pk(f+4)}, {pk(f+6)}')
        a(f'v_pk_add_f32 {pk(t)}, {pk(t)}, {pk(f+8)}\nv_pk_add_f32 {pk(t+2)}, {pk(t+2)}, {pk(f+10)}')
        a(f'v_pk_add_f32 {pk(t)}, {pk(t)}, {pk(f+12)}\nv_pk_add_f32 {pk(t+2)}, {pk(t+2)}, {pk(f+14)}')
        a(f'v_pk_add_f32 {pk(t)}, {pk(t)}, {pk(t+2)}\nv_add_f32 v{t}, v{t}, v{t+1}\nv_mul_f32 v{t}, v{t}, v{vmask}')
        reduce32('add', t, t + 1)
        a(f'v_mul_f32 v{t+2}, {fb(1/448)}, v{t}')
        neg = 'op_sel_hi:[1,0] neg_lo:[0,1] neg_hi:[0,1]'
        for i in range(8):
            d = t + 4 + 2 * (i & 1)
            a(f'v_pk_add_f32 {pk(d)}, {pk(f+2*i)}, {pk(t+2)} {neg}')
            if i == 0:
                a(f'v_pk_mul_f32 {pk(t)}, {pk(d)}, {pk(d)}')
            else:
                a(f'v_pk_fma_f32 {pk(t)}, {pk(d)}, {pk(d)}, {pk(t)}')
        a(f'v_add_f32 v{t}, v{t}, v{t+1}\nv_mul_f32 v{t}, v{t}, v{vmask}')
        rnd(t + 2)
        reduce32('add', t, t + 1)
        a(f'v_mul_f32 v{t}, {fb(1/448)}, v{t}')
        rnd(t)
        a(f'v_add_f32 v{t}, {fb(1e-5)}, v{t}')
        rnd(t)
        a(f'v_sqrt_f32 v{t}, v{t}')
        for i in range(8):
            a(f'v_pk_add_f32 {pk(f+2*i)}, {pk(f+2*i)}, {pk(t+2)} {neg}')
        rnd(t)
        a(f'v_rcp_f32 v{t}, v{t}')
        for i in range(8):
            a(f'v_cvt_pk_bf16_f32 v{raw+i}, v{f+2*i}, v{f+2*i+1}')
        for i in range(8):
            a(f'v_lshlrev_b32 v{f+2*i}, 16, v{raw+i}\nv_and_b32 v{f+2*i+1}, 0xffff0000, v{raw+i}')
        for i in range(8):
            a(f'v_pk_mul_f32 {pk(f+2*i)}, {pk(f+2*i)}, {pk(t)} op_sel_hi:[1,0]')
        for i in range(8):
            a(f'v_cvt_pk_bf16_f32 v{raw+i}, v{f+2*i}, v{f+2*i+1}')

    def slab_mfma(act, abase):
        a(f'v_lshrrev_b32 v{T0}, 4, v0\nv_and_b32 v{T0+1}, 15, v0')
        a(f'v_lshlrev_b32 v{T0+2}, 8, v{T0}\nv_lshl_add_u32 v{T0+2}, v{T0+1}, 3, v{T0+2}\nv_add_u32 v{T0+2}, {STG}, v{T0+2}')
        a(f'v_and_b32 v{T0+1}, 7, v0\nv_mul_u32_u24 v{T0+1}, {XS}, v{T0+1}\nv_lshl_add_u32 v{T0+1}, v{T0}, 4, v{T0+1}\nv_add_u32 v{T0+1}, {act}, v{T0+1}')

        def rd(ks):
            a(f'ds_read_b64_tr_b16 {ar(abase+4*ks,2)}, v{T0+2} offset:{ks*1024}')
            a(f'ds_read_b64_tr_b16 {ar(abase+4*ks+2,2)}, v{T0+2} offset:{ks*1024+128}')
            a(f'ds_read_b128 {ar(abase+56+4*ks,4)}, v{T0+1} offset:{ks*64}')
        for ks in range(4):
            rd(ks)
        for ks in range(14):
            if ks + 4 < 14:
                rd(ks + 4)
            left = min(13 - ks, 4)
            a(f's_waitcnt lgkmcnt({3*left})')
            c = '0' if ks == 0 else vr(DT, 4)
            a(f'v_mfma_f32_16x16x32_bf16 {vr(DT,4)}, {ar(abase+4*ks,4)}, {ar(abase+56+4*ks,4)}, {c}')

    def build_a(dst, src, e):
        for i in range(4):
            a(f'v_perm_b32 v{dst+i}, v{src}, v{src}, v{SEL+4*e+i}')

    a('L_consumer:')
    if prefetch:
        a('s_getpc_b64 s[26:27]\nv_lshlrev_b32 v4, 7, v0')
        a('s_sub_u32 s67, s3, 1\ns_lshl_b32 s67, s67, 13\nv_add_u32 v4, s67, v4')
        a('v_min_u32 v4, L_end-L_consumer-64, v4')
        a(f'global_load_dword v{DT}, v4, s[26:27]')
    a('s_load_dwordx2 s[24:25], s[0:1], 0\ns_load_dwordx4 s[28:31], s[0:1], 24\ns_load_dwordx2 s[46:47], s[0:1], 96')
    a('s_load_dwordx8 s[36:43], s[0:1], 48\ns_load_dwordx2 s[44:45], s[0:1], 80')
    a('s_sub_u32 s23, s3, 1\ns_mov_b32 s65, 0\ns_mov_b32 s66, 0x100000')
    XR = FR
    XF = FR + 8
    VMK = FR + 24
    VXO = FR + 25
    a(f'v_lshrrev_b32 v6, 5, v0\nv_and_b32 v7, 31, v0\ns_lshl_b32 s67, s23, 1\nv_add_u32 v6, s67, v6')
    a(f'v_mul_u32_u24 v8, 896, v6\nv_lshl_add_u32 v8, v7, 5, v8\nv_cmp_gt_u32 vcc, 28, v7')
    a(f'v_mov_b32 v9, 0x10000\nv_cndmask_b32 v8, v9, v8, vcc\nv_cndmask_b32 v{VMK}, 0, 1.0, vcc')
    a(f'v_mul_u32_u24 v{VXO}, {XS}, v6\nv_lshl_add_u32 v{VXO}, v7, 5, v{VXO}\nv_add_u32 v{VXO}, {XN}, v{VXO}')
    a('s_mov_b64 s[70:71], vcc')
    a('v_lshrrev_b32 v10, 1, v0\nv_and_b32 v11, 1, v0\nv_lshlrev_b32 v11, 4, v11\nv_lshl_add_u32 v12, v10, 13, v11')
    a('s_lshl_b32 s68, s20, 5\ns_add_u32 s68, s68, s19\ns_lshl_b32 s68, s68, 5')
    a('s_lshl_b32 s67, s23, 18\ns_add_u32 s69, s68, s67')
    a(f's_lshl_b32 s72, s23, 10\ns_add_u32 s72, s72, {STG}')
    a(f'v_mov_b32 v{VFL}, {FLG}\ns_lshl_b32 s67, s23, 2\nv_add_u32 v15, s67, v{VFL}\nv_mov_b32 v14, 1')
    a('s_waitcnt lgkmcnt(0)')
    if stamps:
        a('s_mov_b32 s80, s98')
    a('s_load_dword s64, s[46:47], 0')
    srd(48, 24, 7168)
    a(f'buffer_load_dwordx4 {vr(XR,4)}, v8, s[48:51], 0 offen\nbuffer_load_dwordx4 {vr(XR+4,4)}, v8, s[48:51], 0 offen offset:16')
    srd(56, 28, 448 * 8192)
    for j in range(3):
        a(f's_add_u32 m0, s72, {j*4096}\ns_add_u32 s67, s69, {j << 20}')
        a(f'buffer_load_dwordx4 v12, s[56:59], s67 offen {wflags} lds')
    srd(52, 46, W_STAMP + 0x40000 if stamps else W_END)
    a('s_lshl_b32 s73, s21, 3\ns_add_u32 s73, s73, s20\ns_lshl2_add_u32 s74, s73, s22')
    a('s_cmp_ge_u32 s23, 2\ns_cbranch_scc1 L_clear')
    a(f's_add_u32 m0, s72, {3*4096}\ns_add_u32 s67, s69, {3 << 20}')
    a(f'buffer_load_dwordx4 v12, s[56:59], s67 offen {wflags} lds')
    a('s_branch L_clear_done')
    a('L_clear:')
    a(f's_mov_b32 s67, {W_YP}\ns_cmp_eq_u32 s23, 2\ns_cselect_b32 s67, {W_OP}, s67\ns_lshl_b32 s75, s74, 11\ns_add_u32 s67, s67, s75')
    a('v_lshlrev_b32 v10, 4, v0\nv_mov_b32 v4, -1\nv_mov_b32 v5, -1\nv_mov_b32 v6, -1\nv_mov_b32 v7, -1')
    a('buffer_store_dwordx4 v[4:7], v10, s[52:55], s67 offen sc1\nbuffer_store_dwordx4 v[4:7], v10, s[52:55], s67 offen offset:1024 sc1')
    a('L_clear_done:')
    a('v_and_b32 v10, 1, v0\nv_bfe_u32 v11, v0, 1, 2\nv_cmp_eq_u32 vcc, 0, v10')
    a('v_mov_b32 v12, 0x01000c0c\nv_mov_b32 v13, 0x0c0c0100\nv_cndmask_b32 v12, v12, v13, vcc')
    a('v_mov_b32 v10, 0x03020c0c\nv_mov_b32 v13, 0x0c0c0302\nv_cndmask_b32 v13, v10, v13, vcc')
    a('v_mov_b32 v10, 0x0c0c0c0c')
    for i in range(4):
        a(f'v_cmp_eq_u32 vcc, {i}, v11\nv_cndmask_b32 v{SEL+i}, v10, v12, vcc\nv_cndmask_b32 v{SEL+4+i}, v10, v13, vcc')
    a('v_lshrrev_b32 v10, 4, v0\nv_and_b32 v11, 15, v0\ns_lshl_b32 s67, s23, 13\nv_lshlrev_b32 v12, 9, v11\nv_add_u32 v12, s67, v12')
    for j in range(4):
        a(f'v_add_u32 v13, {4*j}, v10\nv_xor_b32 v13, v13, v11\nv_lshl_add_u32 v{KA+j}, v13, 4, v12\nv_add_u32 v{KA+4+j}, 0x10000, v{KA+j}')
    a(f'v_lshlrev_b32 v12, 11, v10\nv_lshl_add_u32 v12, v11, 4, v12\nv_add_u32 v{VA}, s67, v12\nv_add_u32 v{VA+1}, 0x10000, v{VA}')
    a(f'v_mov_b32 v{VM}, 0xff800000')
    a('s_barrier')
    a('s_waitcnt vmcnt(4)')
    stamp(1)
    layernorm(XR, XF, VMK)
    a('s_mov_b64 exec, s[70:71]')
    a(f'ds_write_b128 v{VXO}, {vr(XR,4)} offset:0\nds_write_b128 v{VXO}, {vr(XR+4,4)} offset:16')
    a('s_mov_b64 exec, -1')
    a('s_waitcnt vmcnt(0) lgkmcnt(0)')
    set_flag(F_X)
    a('s_add_u32 s64, s64, 1')

    def ln2():
        layernorm(XR, XF, VMK)
        a('s_mov_b64 exec, s[70:71]')
        a(f'ds_write_b128 v{VXO}, {vr(XR,4)} offset:{YN-XN}\nds_write_b128 v{VXO}, {vr(XR+4,4)} offset:{YN-XN+16}')
        a('s_mov_b64 exec, -1')
        set_flag(F_Y)

    a('s_cmp_lg_u32 s23, 0\ns_cbranch_scc1 L_notq')
    wait_flags(F_X, 4)
    stamp(2)
    slab_mfma(XN, 0)
    a(f'v_lshrrev_b32 v8, 4, v0\nv_and_b32 v9, 15, v0\nv_lshlrev_b32 v10, 14, v9\nv_lshl_add_u32 v10, v8, 4, v10')
    a(f'v_cmp_gt_u32 vcc, 8, v9\nv_mov_b32 v9, 0x1000000\nv_cndmask_b32 v10, v9, v10, vcc')
    a(f's_lshl_b32 s67, s68, 1\ns_add_u32 s67, s67, {W_Q}')
    a(f'v_mov_b32 v5, {TAG}\nv_mov_b32 v7, {TAG}')
    a(f'v_cvt_pk_bf16_f32 v4, v{DT}, v{DT+1}\nv_cvt_pk_bf16_f32 v6, v{DT+2}, v{DT+3}')
    a('buffer_store_dwordx4 v[4:7], v10, s[52:55], s67 offen sc1')
    stamp(3)
    a(f's_lshl_b32 s67, s21, 14\ns_lshl_b32 s75, s20, 11\ns_add_u32 s76, s67, s75\ns_add_u32 s76, s76, {W_Q}')
    a('v_lshlrev_b32 v12, 5, v0')
    a('L_qpoll:')
    a(f'buffer_load_dwordx4 v[4:7], v12, s[52:55], s76 offen sc1\nbuffer_load_dwordx4 v[8:11], v12, s[52:55], s76 offen offset:16 sc1')
    timeout()
    a('s_waitcnt vmcnt(0)')
    a(f'v_xor_b32 v5, {TAG}, v5\nv_xor_b32 v7, {TAG}, v7\nv_xor_b32 v9, {TAG}, v9\nv_xor_b32 v11, {TAG}, v11')
    a('v_or3_b32 v5, v5, v7, v9\nv_or_b32 v5, v5, v11\nv_cmp_ne_u32 vcc, 0, v5\ns_cbranch_vccnz L_qpoll')
    a(f'v_mov_b32 v5, v6\nv_mov_b32 v6, v8\nv_mov_b32 v7, v10\nv_lshlrev_b32 v12, 4, v0')
    a(f'v_add_u32 v13, {QL}, v12\nds_write_b128 v13, v[4:7]')
    a(f'ds_write_b32 v{VFL}, v14 offset:{F_Q}')
    stamp(4)
    for i in range(8):
        a(f'v_accvgpr_write_b32 a{136+i}, v{XR+i}')
    a(f'v_accvgpr_write_b32 a134, v{VMK}\nv_accvgpr_write_b32 a135, v{VXO}')
    a('s_branch L_haveq')
    a('L_notq:')
    a('s_cmp_ge_u32 s19, 14\ns_cbranch_scc1 L_noln2')
    ln2()
    a('L_noln2:')
    wait_flags(F_Q, 1, sleep)
    a('L_haveq:')
    a(f'v_bfe_u32 v10, v0, 3, 1\nv_lshrrev_b32 v11, 4, v0\nv_lshlrev_b32 v10, 9, v10\nv_lshl_add_u32 v10, v11, 4, v10\nv_add_u32 v10, {QL}, v10')
    for ks in range(8):
        a(f'ds_read_b128 {ar(4*ks,4)}, v10 offset:{ks*64}')

    for k in range(16):
        wait_tile(4 * k, sleep)
        for ks in range(8):
            a(f'ds_read_b128 {vr(FR+4*ks,4)}, v{KA + (4 if k & 2 else 0) + (ks & 3)} offset:{(k&1)*32768 + (ks>>2)*256}')
        a(f'v_mov_b32 v{T0+1}, {k+1}')
        for ks in range(8):
            a(f's_waitcnt lgkmcnt({7-ks})')
            if ks == 7:
                a(f'ds_write_b32 v15, v{T0+1} offset:{F_CONS}')
            c = '0' if ks == 0 else vr(DT, 4)
            a(f'v_mfma_f32_16x16x32_bf16 {vr(DT,4)}, {vr(FR+4*ks,4)}, {ar(4*ks,4)}, {c}')
        a(f'v_max3_f32 v{VM}, v{VM}, v{DT}, v{DT+1}\nv_max3_f32 v{VM}, v{VM}, v{DT+2}, v{DT+3}')
        a(f'v_cvt_pk_bf16_f32 v{P+2*k}, v{DT}, v{DT+1}\nv_cvt_pk_bf16_f32 v{P+2*k+1}, v{DT+2}, v{DT+3}')
        if k == 1:
            sk = lab('w1')
            a(f's_cmp_lg_u32 s23, 1\ns_cbranch_scc1 {sk}\ns_cmp_ge_u32 s19, 14\ns_cbranch_scc1 {sk}')
            srd(56, 36, 448 * 3584)
            a('v_lshrrev_b32 v10, 1, v0\nv_and_b32 v11, 1, v0\nv_mul_u32_u24 v10, 3584, v10\nv_lshl_add_u32 v10, v11, 4, v10')
            a('s_mul_i32 s77, s20, 14\ns_add_u32 s77, s77, s19\ns_lshl_b32 s77, s77, 5')
            for j in range(14):
                a(f's_mov_b32 m0, {STG + j*1024}\ns_add_u32 s67, s77, {j*32*3584}')
                a(f'buffer_load_dwordx4 v10, s[56:59], s67 offen {wflags} lds')
            srd(56, 38, 3584)
            a(f'v_lshrrev_b32 v10, 4, v0\nv_lshlrev_b32 v10, 3, v10')
            a(f'buffer_load_dwordx2 v[{AT}:{AT+1}], v10, s[56:59], s77 offen')
            a(f'{sk}:')
        if k == 3:
            sk = lab('ln2')
            a(f's_cmp_lg_u32 s23, 0\ns_cbranch_scc1 {sk}\ns_cmp_ge_u32 s19, 14\ns_cbranch_scc1 {sk}')
            for i in range(8):
                a(f'v_accvgpr_read_b32 v{XR+i}, a{136+i}')
            a(f'v_accvgpr_read_b32 v{VMK}, a134\nv_accvgpr_read_b32 v{VXO}, a135')
            ln2()
            a(f'{sk}:')
        if k == 5:
            sk = lab('h')
            a(f's_cmp_lg_u32 s23, 1\ns_cbranch_scc1 {sk}\ns_cmp_ge_u32 s19, 14\ns_cbranch_scc1 {sk}')
            wait_flags(F_Y, 4, sleep)
            a('s_waitcnt vmcnt(0)')
            slab_mfma(YN, 32)
            a(f'v_lshlrev_b32 v8, 16, v{AT}\nv_and_b32 v9, 0xffff0000, v{AT}\nv_lshlrev_b32 v10, 16, v{AT+1}\nv_and_b32 v11, 0xffff0000, v{AT+1}')
            c0 = -2 * 0.7978845608028654 * LOG2E
            a(f's_mov_b32 s75, {fb(c0 * 0.044715)}\nv_mov_b32 v12, {fb(c0)}')
            for r in range(4):
                rnd(DT + r)
            for r in range(4):
                a(f'v_add_f32 v{DT+r}, v{DT+r}, v{8+r}')
            for r in range(4):
                rnd(DT + r)
            for r in range(4):
                a(f'v_mul_f32 v{8+r}, v{DT+r}, v{DT+r}\nv_fma_f32 v{8+r}, v{8+r}, s75, v12\nv_mul_f32 v{8+r}, v{8+r}, v{DT+r}')
            for r in range(4):
                a(f'v_exp_f32 v{8+r}, v{8+r}')
            for r in range(4):
                a(f'v_add_f32 v{8+r}, 1.0, v{8+r}')
            for r in range(4):
                a(f'v_rcp_f32 v{8+r}, v{8+r}')
            for r in range(4):
                a(f'v_mul_f32 v{DT+r}, v{DT+r}, v{8+r}')
            a(f'v_lshrrev_b32 v8, 4, v0\nv_and_b32 v9, 15, v0\nv_lshlrev_b32 v10, 13, v9\nv_lshl_add_u32 v10, v8, 4, v10')
            a(f'v_cmp_gt_u32 vcc, 8, v9\nv_mov_b32 v9, 0x1000000\nv_cndmask_b32 v10, v9, v10, vcc')
            a(f's_lshl_b32 s67, s77, 1\ns_add_u32 s67, s67, {W_H}')
            a(f'v_mov_b32 v5, {TAG}\nv_mov_b32 v7, {TAG}')
            a(f'v_cvt_pk_bf16_f32 v4, v{DT}, v{DT+1}\nv_cvt_pk_bf16_f32 v6, v{DT+2}, v{DT+3}')
            a('buffer_store_dwordx4 v[4:7], v10, s[52:55], s67 offen sc1')
            a(f'{sk}:')
        if k == 9:
            srd(60, 40, 1792 * 896)
            a('s_lshl2_add_u32 s75, s20, s22\ns_lshl2_add_u32 s75, s75, s23\ns_mul_i32 s78, s75, 14')
            a(f'v_lshrrev_b32 v10, 3, v0\nv_and_b32 v11, 7, v0\nv_mul_u32_u24 v10, {2*896}, v10\nv_lshl_add_u32 v10, v11, 4, v10')
            a('s_mul_i32 s67, s78, 896\ns_add_u32 s75, s67, 896')
            for t in range(2):
                for cb in range(7):
                    a(f'buffer_load_dwordx4 {ar(32+4*(t*7+cb),4)}, v10, s[60:63], {"s67" if t == 0 else "s75"} offen offset:{cb*128} {wflags}')
        if k == 11:
            l = lab('hp')
            a(f's_lshl_b32 s67, s21, 13\ns_lshl_b32 s75, s78, 2\ns_add_u32 s67, s67, s75\ns_add_u32 s67, s67, {W_H}')
            a(f'v_lshrrev_b32 v10, 3, v0\nv_cmp_gt_u32 s[68:69], 7, v10\nv_min_u32 v10, 6, v10\nv_lshlrev_b32 v10, 3, v10')
            a(f'{l}:')
            a(f'buffer_load_dwordx2 v[4:5], v10, s[52:55], s67 offen sc1')
            timeout()
            a(f's_waitcnt vmcnt(0)\nv_cmp_ne_u32 vcc, {TAG}, v5\ns_cbranch_vccnz {l}')
            a('v_cndmask_b32 v4, 0, v4, s[68:69]')
            build_a(AT, 4, 0)
            build_a(AT + 4, 4, 1)
            for t in range(2):
                for cb in range(7):
                    c = '0' if t == 0 else ar(YA + 4 * cb, 4)
                    a(f'v_mfma_f32_16x16x32_bf16 {ar(YA+4*cb,4)}, {vr(AT+4*t,4)}, {ar(32+4*(t*7+cb),4)}, {c}')
    stamp(5)
    reduce_rows('max', VM, T0)
    rnd(VM)
    a(f'v_bfe_u32 v10, v0, 3, 1\nv_lshl_add_u32 v10, v10, 2, v{VFL}\ns_lshl_b32 s67, s23, 3\nv_add_u32 v11, s67, v10')
    a(f'ds_write_b32 v11, v{VM} offset:{MX}')
    set_flag(F_M)
    wait_flags(F_M, 4)
    a(f'ds_read2_b32 v[4:5], v10 offset0:{MX//4} offset1:{MX//4+2}\nds_read2_b32 v[6:7], v10 offset0:{MX//4+4} offset1:{MX//4+6}')
    a(f's_mov_b32 s75, {fb(LOG2E/16)}\nv_mov_b32 v{VL}, 0\nv_mov_b32 v12, 0')
    a(f's_waitcnt lgkmcnt(0)\nv_max3_f32 v4, v4, v5, v6\nv_max_f32 v{VM}, v4, v7\nv_mul_f32 v13, {fb(-LOG2E/16)}, v{VM}')
    for j in range(0, 32, 2):
        a(f'v_lshlrev_b32 v4, 16, v{P+j}\nv_and_b32 v5, 0xffff0000, v{P+j}\nv_lshlrev_b32 v6, 16, v{P+j+1}\nv_and_b32 v7, 0xffff0000, v{P+j+1}')
        for r in range(4):
            a(f'v_fma_f32 v{4+r}, v{4+r}, s75, v13')
        for r in range(4):
            a(f'v_exp_f32 v{4+r}, v{4+r}')
        a(f'v_add_f32 v{VL}, v{VL}, v4\nv_add_f32 v12, v12, v5\nv_cvt_pk_bf16_f32 v{P+j}, v4, v5')
        a(f'v_add_f32 v{VL}, v{VL}, v6\nv_add_f32 v12, v12, v7\nv_cvt_pk_bf16_f32 v{P+j+1}, v6, v7')
    a(f'v_add_f32 v{VL}, v{VL}, v12')
    reduce_rows('add', VL, T0)
    a(f'ds_write_b32 v11, v{VL} offset:{LS}')
    set_flag(F_L)
    a('s_cmp_lg_u32 s23, 0\ns_cbranch_scc1 L_nostat')
    wait_flags(F_L, 4)
    a(f'ds_read2_b32 v[4:5], v10 offset0:{LS//4} offset1:{LS//4+2}\nds_read2_b32 v[6:7], v10 offset0:{LS//4+4} offset1:{LS//4+6}')
    a(f'v_and_b32 v8, 0x37, v0\nv_cmp_eq_u32 vcc, 0, v8\nv_lshlrev_b32 v8, 1, v0\nv_mov_b32 v9, 0x1000000\nv_cndmask_b32 v8, v9, v8, vcc')
    a(f's_lshl_b32 s67, s74, 7\ns_add_u32 s67, s67, {W_ST}')
    a(f's_waitcnt lgkmcnt(0)\nv_add_f32 v4, v4, v5\nv_add_f32 v6, v6, v7\nv_add_f32 v6, v4, v6')
    a(f'v_mov_b32 v4, v{VM}\nv_mov_b32 v5, {TAG}\nv_mov_b32 v7, {TAG}')
    a('buffer_store_dwordx4 v[4:7], v8, s[52:55], s67 offen sc1')
    a('L_nostat:')
    srd(60, 30, 4096 * 896)
    a('s_lshl2_add_u32 s75, s20, s22\ns_lshl2_add_u32 s75, s75, s23\ns_mul_i32 s78, s75, 32*896')
    a(f'v_lshrrev_b32 v10, 3, v0\nv_and_b32 v11, 7, v0\nv_mul_u32_u24 v10, {4*896}, v10\nv_lshl_add_u32 v{VL}, v11, 4, v10')

    def v_tile(k, extra=None):
        for r in range(4):
            for hf in range(2):
                a(f'ds_read_b128 {vr(FR+4*(2*r+hf),4)}, v{VA + (1 if k & 2 else 0)} offset:{(k&1)*32768 + r*512 + hf*256}')
        n_extra = extra() if extra else 0
        a(f'v_mov_b32 v{T0+1}, {k+17}')
        for r in range(4):
            at = AT + 4 * (r & 1)
            build_a(at, P + 2 * k + (r >> 1), r & 1)
            for hf in range(2):
                a(f's_waitcnt lgkmcnt({7-(2*r+hf)+n_extra})')
                if r == 3 and hf == 1 and k < 15:
                    a(f'ds_write_b32 v15, v{T0+1} offset:{F_CONS}')
                c = '0' if (k == 0 and r == 0) else vr(OA + 4 * hf, 4)
                a(f'v_mfma_f32_16x16x32_bf16 {vr(OA+4*hf,4)}, {vr(at,4)}, {vr(FR+4*(2*r+hf),4)}, {c}')

    for k in range(15):
        wait_tile(64 + 4 * k, sleep)
        v_tile(k)
        if k < 7:
            for j in range(4 * k, 4 * k + 4):
                t, cb = divmod(j, 7)
                if j % 7 == 0 or j % 4 == 0:
                    a(f's_add_u32 s67, s78, {t*896}')
                a(f'buffer_load_dwordx4 {ar(4*j,4)}, v{VL}, s[60:63], s67 offen offset:{cb*128} {wflags}')
        if k == 12:
            l = lab('sp')
            a(f's_lshl_b32 s67, s73, 9\ns_lshr_b32 s75, s22, 1\ns_lshl_b32 s75, s75, 4\ns_add_u32 s67, s67, s75\ns_add_u32 s67, s67, {W_ST}')
            a('v_and_b32 v10, 3, v0\nv_lshlrev_b32 v10, 7, v10')
            a(f'{l}:')
            a('buffer_load_dwordx4 v[4:7], v10, s[52:55], s67 offen sc1')
            timeout()
            a(f's_waitcnt vmcnt(0)\nv_xor_b32 v5, {TAG}, v5\nv_xor_b32 v7, {TAG}, v7\nv_or_b32 v5, v5, v7\nv_cmp_ne_u32 vcc, 0, v5\ns_cbranch_vccnz {l}')
            a('v_max_f32_dpp v5, v4, v4 quad_perm:[1,0,3,2] row_mask:0xf bank_mask:0xf')
            a('v_max_f32_dpp v5, v5, v5 quad_perm:[2,3,0,1] row_mask:0xf bank_mask:0xf')
            a(f'v_sub_f32 v4, v4, v5\nv_mul_f32 v4, {fb(LOG2E/16)}, v4\nv_exp_f32 v4, v4\nv_mul_f32 v6, v6, v4')
            a('v_add_f32_dpp v6, v6, v6 quad_perm:[1,0,3,2] row_mask:0xf bank_mask:0xf')
            a('v_add_f32_dpp v6, v6, v6 quad_perm:[2,3,0,1] row_mask:0xf bank_mask:0xf')
            a(f'v_rcp_f32 v6, v6\nv_mul_f32 v{VW}, v4, v6')
        if k == 13:
            sk = lab('fc')
            l = lab('fcp')
            a(f's_lshl2_add_u32 s79, s20, s22\ns_cmp_lg_u32 s23, 0\ns_cbranch_scc1 {sk}\ns_cmp_ge_u32 s79, 28\ns_cbranch_scc1 {sk}')
            srd(56, 42, 896)
            a('v_and_b32 v10, 3, v0\nv_bfe_u32 v11, v0, 2, 2\nv_lshl_add_u32 v10, v10, 2, v11\nv_lshlrev_b32 v10, 1, v10')
            a('s_lshl_b32 s75, s79, 5\ns_mul_i32 s76, s21, 896\ns_add_u32 s76, s76, s75')
            a('buffer_load_ushort v8, v10, s[48:51], s76 offen\nbuffer_load_ushort v9, v10, s[56:59], s75 offen')
            a(f's_lshl_b32 s67, s21, 12\ns_add_u32 s67, s67, {W_ST}\nv_and_b32 v11, 31, v0\nv_lshlrev_b32 v11, 7, v11')
            a(f'{l}:')
            a('buffer_load_dword v4, v11, s[52:55], s67 offen offset:4 sc1')
            timeout()
            a(f's_waitcnt vmcnt(0)\nv_cmp_ne_u32 vcc, {TAG}, v4\ns_cbranch_vccnz {l}')
            a(f'v_lshlrev_b32 v8, 16, v8\nv_lshlrev_b32 v9, 16, v9\nv_add_f32 v{VXB}, v8, v9')
            a(f'{sk}:')
    VO1, VO2, VO3, VO4, VO5 = P, P + 1, P + 2, P + 3, P + 4
    a(f'v_lshlrev_b32 v{VO1}, 4, v0\ns_lshl_b32 s67, s23, 11\ns_add_u32 s67, s67, {OPL}\nv_add_u32 v{VO2}, s67, v{VO1}\nv_add_u32 v{VO1}, {OPL}, v{VO1}')
    a(f'v_lshrrev_b32 v10, 5, v0\nv_and_b32 v11, 15, v0\nv_lshlrev_b32 v10, 10, v10\nv_lshl_add_u32 v10, v11, 5, v10')
    a(f'v_bfe_u32 v11, v0, 4, 1\nv_lshl_add_u32 v{VO3}, v11, 4, v10')
    a(f's_lshl_b32 s68, s74, 11\ns_add_u32 s68, s68, {W_OP}')
    a(f'v_and_b32 v10, 3, v0\nv_lshrrev_b32 v11, 3, v0\nv_lshlrev_b32 v10, 11, v10\nv_lshl_add_u32 v{VO4}, v11, 4, v10')
    a(f's_lshl_b32 s69, s73, 13\ns_lshl2_add_u32 s67, s22, s23\ns_lshl_b32 s67, s67, 7\ns_add_u32 s69, s69, s67\ns_add_u32 s69, s69, {W_OP}')
    a(f'v_lshrrev_b32 v10, 5, v0\ns_lshl_b32 s67, s23, 1\nv_add_u32 v10, s67, v10\nv_mul_u32_u24 v10, {RS}, v10')
    a(f'v_and_b32 v11, 7, v0\nv_lshl_add_u32 v10, v11, 5, v10\nv_bfe_u32 v11, v0, 4, 1\nv_lshl_add_u32 v10, v11, 4, v10\nv_add_u32 v{VO5}, {RED}, v10')
    VR1, VR2, VR3, VR4 = P + 5, P + 6, P + 7, P + 8
    a(f'v_lshrrev_b32 v10, 1, v0\nv_min_u32 v10, 27, v10\ns_mul_i32 s67, s23, 28\nv_add_u32 v10, s67, v10\nv_lshlrev_b32 v10, 4, v10')
    a(f'v_and_b32 v11, 1, v0\nv_mul_u32_u24 v12, {4*RS}, v11\nv_add3_u32 v{VR1}, v10, v12, v{VFL}')
    a(f'v_add_u32 v{VR1}, {RED-FLG}, v{VR1}')
    a(f'v_cmp_gt_u32 vcc, 56, v0\nv_mov_b32 v13, 0x1000000\nv_cndmask_b32 v10, v13, v10, vcc\nv_cmp_eq_u32 vcc, 0, v11\nv_cndmask_b32 v{VR2}, v13, v10, vcc')
    a(f's_lshl_b32 s76, s74, 11\ns_add_u32 s76, s76, {W_YP}')
    a(f'v_lshrrev_b32 v10, 2, v0\nv_and_b32 v11, 3, v0\nv_lshlrev_b32 v10, 11, v10\nv_lshl_add_u32 v{VR3}, v11, 4, v10')
    a(f's_lshl_b32 s77, s21, 16\ns_lshl_b32 s67, s79, 6\ns_add_u32 s77, s77, s67\ns_add_u32 s77, s77, {W_YP}\ns_add_u32 s72, s77, 0x8000')
    a(f'v_bfe_u32 v10, v0, 2, 2\nv_lshl_add_u32 v10, v11, 2, v10\nv_lshlrev_b32 v10, 1, v10\nv_cmp_gt_u32 vcc, 16, v0\nv_cndmask_b32 v{VR4}, v13, v10, vcc')
    srd(56, 44, 7168)
    a('s_mul_i32 s78, s21, 896\ns_lshl_b32 s67, s79, 5\ns_add_u32 s78, s78, s67')
    a('s_waitcnt vmcnt(0)')

    a('s_cmp_eq_u32 s23, 3\ns_cbranch_scc1 L_lastwave')
    wait_tile(64 + 60, 0)
    v_tile(15)
    a(f'ds_write_b128 v{VO2}, {vr(OA,4)}\nds_write_b128 v{VO2}, {vr(OA+4,4)} offset:1024')
    set_flag(F_O)
    stamp(6)
    a('s_branch L_hop1')
    a('L_lastwave:')
    wait_tile(64 + 60, 0)
    v_tile(15)
    stamp(6)
    wait_flags(F_O, 3)
    for j in range(6):
        a(f'ds_read_b128 {vr(FR+4*j,4)}, v{VO1} offset:{j*1024}')
    for j in range(6):
        a(f's_waitcnt lgkmcnt({5-j})')
        o = OA + 4 * (j & 1)
        a(f'v_pk_add_f32 v[{o}:{o+1}], v[{o}:{o+1}], v[{FR+4*j}:{FR+4*j+1}]\nv_pk_add_f32 v[{o+2}:{o+3}], v[{o+2}:{o+3}], v[{FR+4*j+2}:{FR+4*j+3}]')
    a(f'buffer_store_dwordx4 {vr(OA,4)}, v{VO3}, s[52:55], s68 offen sc1\nbuffer_store_dwordx4 {vr(OA+4,4)}, v{VO3}, s[52:55], s68 offen offset:512 sc1')
    stamp(7)
    a('L_hop1:')
    a(f'buffer_load_dwordx4 v[4:7], v{VO4}, s[52:55], s69 offen sc1')
    timeout()
    a('s_waitcnt vmcnt(0)\nv_max3_u32 v8, v4, v5, v6\nv_max_u32 v8, v8, v7\nv_cmp_eq_u32 vcc, -1, v8\ns_cbranch_vccnz L_hop1')
    stamp(8)
    for r in range(4):
        a(f'v_mul_f32 v{4+r}, v{4+r}, v{VW}')
    for qp in ('[1,0,3,2]', '[2,3,0,1]'):
        for r in range(4):
            a(f'v_add_f32_dpp v{4+r}, v{4+r}, v{4+r} quad_perm:{qp} row_mask:0xf bank_mask:0xf')
    a('v_cvt_pk_bf16_f32 v4, v4, v5\nv_cvt_pk_bf16_f32 v6, v6, v7')
    build_a(AT, 4, 0)
    for t in range(4):
        for cb in range(7):
            a(f'v_mfma_f32_16x16x32_bf16 {ar(YA+4*cb,4)}, {vr(AT+4*(t&1),4)}, {ar(4*(t*7+cb),4)}, {ar(YA+4*cb,4)}')
            if cb == 0 and t < 3:
                build_a(AT + 4 * ((t + 1) & 1), 4 + 2 * ((t + 1) >> 1), (t + 1) & 1)
    a('s_mov_b32 exec_lo, 0x00ff00ff\ns_mov_b32 exec_hi, 0xff00ff00')
    for cb in range(7):
        a(f'ds_write_b128 v{VO5}, {ar(YA+4*cb,4)} offset:{cb*256}')
    a('s_mov_b64 exec, -1\ns_waitcnt lgkmcnt(0)\ns_barrier')
    for j in range(4):
        a(f'ds_read_b128 {vr(FR+4*j,4)}, v{VR1} offset:{j*RS}')
    a(f's_waitcnt lgkmcnt(2)\nv_pk_add_f32 v[4:5], v[{FR}:{FR+1}], v[{FR+4}:{FR+5}]\nv_pk_add_f32 v[6:7], v[{FR+2}:{FR+3}], v[{FR+6}:{FR+7}]')
    a(f's_waitcnt lgkmcnt(1)\nv_pk_add_f32 v[4:5], v[4:5], v[{FR+8}:{FR+9}]\nv_pk_add_f32 v[6:7], v[6:7], v[{FR+10}:{FR+11}]')
    a(f's_waitcnt lgkmcnt(0)\nv_pk_add_f32 v[4:5], v[4:5], v[{FR+12}:{FR+13}]\nv_pk_add_f32 v[6:7], v[6:7], v[{FR+14}:{FR+15}]')
    for r in range(4):
        a(f'v_add_f32_dpp v{4+r}, v{4+r}, v{4+r} quad_perm:[1,0,3,2] row_mask:0xf bank_mask:0xf')
    a(f'buffer_store_dwordx4 v[4:7], v{VR2}, s[52:55], s76 offen sc1')
    stamp(9)
    fin = 'L_stamp_out' if stamps else 'L_end'
    a(f's_cmp_lg_u32 s23, 0\ns_cbranch_scc1 {fin}\ns_cmp_ge_u32 s79, 28\ns_cbranch_scc1 {fin}')
    a('L_hop2:')
    a(f'buffer_load_dwordx4 v[8:11], v{VR3}, s[52:55], s77 offen sc1\nbuffer_load_dwordx4 {vr(FR,4)}, v{VR3}, s[52:55], s72 offen sc1')
    timeout()
    a(f's_waitcnt vmcnt(0)\nv_max3_u32 v12, v8, v9, v10\nv_max3_u32 v13, v11, v{FR}, v{FR+1}\nv_max3_u32 v12, v12, v{FR+2}, v{FR+3}')
    a('v_max_u32 v12, v12, v13\nv_cmp_eq_u32 vcc, -1, v12\ns_cbranch_vccnz L_hop2')
    a(f'v_pk_add_f32 v[8:9], v[8:9], v[{FR}:{FR+1}]\nv_pk_add_f32 v[10:11], v[10:11], v[{FR+2}:{FR+3}]')
    a('v_add_f32_dpp v4, v8, v8 row_ror:8 row_mask:0xf bank_mask:0x3\nv_add_f32_dpp v5, v9, v9 row_ror:8 row_mask:0xf bank_mask:0x3')
    a('v_add_f32_dpp v4, v10, v10 row_ror:8 row_mask:0xf bank_mask:0xc\nv_add_f32_dpp v5, v11, v11 row_ror:8 row_mask:0xf bank_mask:0xc')
    a('v_add_f32_dpp v6, v4, v4 row_shl:4 row_mask:0xf bank_mask:0x5\nv_add_f32_dpp v6, v5, v5 row_shr:4 row_mask:0xf bank_mask:0xa')
    reduce_rows('add', 6, 7)
    a(f'v_add_f32 v6, v6, v{VXB}\nv_cvt_pk_bf16_f32 v6, v6, v6')
    a(f'buffer_store_short v6, v{VR4}, s[56:59], s78 offen')
    stamp(10)
    a(f's_cmp_lg_u32 s74, 0\ns_cbranch_scc1 {fin}')
    a(f'v_mov_b32 v4, {TAG}\ns_mov_b64 exec, 1\nbuffer_store_dword v4, off, s[52:55], 0 sc1')
    if stamps:
        a('s_mov_b64 exec, -1')
        a('L_stamp_out:')
        srd(52, 46, W_STAMP + 0x40000)
        a('s_getreg_b32 s95, hwreg(HW_REG_XCC_ID)')
        a(f's_mul_i32 s67, s2, 5\ns_add_u32 s67, s67, s3\ns_lshl_b32 s67, s67, 6\ns_add_u32 s67, s67, {W_STAMP}')
        for k in range(16):
            a(f'v_mov_b32 v{16+k}, s{80+k}')
        a('s_mov_b64 exec, 1')
        for k in range(4):
            a(f'buffer_store_dwordx4 v[{16+4*k}:{19+4*k}], off, s[52:55], s67 offset:{16*k}')
    a('L_end:')
    a('s_endpgm')
    body = a.finalize()
    head = header or ''
    head += f'; @launch grid=(256,1,1) block=(320,1,1) lds={LDS_BYTES}\n'
    head += f'.amdgcn_target "amdgcn-amd-amdhsa--gfx950"\n.text\n.globl {NAME}\n.p2align 8\n.type {NAME},@function\n'
    tail = f'''.section .rodata,"a"
.p2align 6
.amdhsa_kernel {NAME}
  .amdhsa_next_free_vgpr 256
  .amdhsa_next_free_sgpr 102
  .amdhsa_accum_offset 112
  .amdhsa_group_segment_fixed_size 0
  .amdhsa_kernarg_size 104
  .amdhsa_user_sgpr_count 2
  .amdhsa_user_sgpr_kernarg_segment_ptr 1
  .amdhsa_system_sgpr_workgroup_id_x 1
  .amdhsa_float_denorm_mode_32 3
.end_amdhsa_kernel
'''
    return head + body + tail


if __name__ == '__main__':
    ref = open('parallel_sum__gqa_block_cached__mixer_channel_mlp__decode.s.ref').read().split('\n')
    hdr = '\n'.join(l for l in ref if l.startswith(';') and '@launch' not in l and 'Override' not in l and 'grid=ceil' not in l) + '\n'
    kw = eval('dict(' + (sys.argv[2] if len(sys.argv) > 2 else '') + ')')
    out = sys.argv[1] if len(sys.argv) > 1 else 'parallel_sum__gqa_block_cached__mixer_channel_mlp__decode.s'
    open(out, 'w').write(gen(header=hdr, **kw))
    print('wrote', out)
```

```python
import struct, sys, os
sys.path.insert(0, os.path.dirname(os.path.abspath(__file__)))
from asmkit import Asm

NAME = "parallel_sum__gqa_block_cached__mixer_channel_mlp__decode_kernel"


def fb(x):
    return '0x%08x' % struct.unpack('<I', struct.pack('<f', x))[0]


LOG2E = 1.4426950408889634
RING = 0
FLG = 131072
F_LAND, F_CONS, F_X, F_Q, F_Y, F_M, F_L, F_O, MX, LS = 0, 16, 32, 48, 64, 80, 96, 112, 128, 160
QL = FLG + 1024
XN = QL + 1024
XS = 912
YN = XN + 8 * XS
STG = YN + 8 * XS
LDS_BYTES = STG + 14336
OPL = XN
RED = YN
RS = 1824
W_Q = 0x1000
W_H = 0x21000
W_ST = 0x31000
W_OP = 0x40000
W_YP = 0xC0000
W_END = 0x140000
W_STAMP = 0x200000


def vr(a, n=1):
    return f'v{a}' if n == 1 else f'v[{a}:{a+n-1}]'


def ar(a, n=1):
    return f'a{a}' if n == 1 else f'a[{a}:{a+n-1}]'


def gen(D=20, kflags='nt', vflags='nt', wflags='', stamps=False, sleep=1, prefetch=True, header=None, spin=None):
    a = Asm()
    uid = [0]
    store_stamps = stamps
    if spin is not None:
        stamps = True

    def lab(p):
        uid[0] += 1
        return f'L_{p}_{uid[0]}'

    nstamp = [0]

    def stamp(k):
        if stamps:
            a(f's_memrealtime s[98:99]\ns_waitcnt lgkmcnt(0)\ns_mov_b32 s{80+k}, s98')

    def srd(d, p, size):
        a(f's_mov_b32 s{d}, s{p}\ns_mov_b32 s{d+1}, s{p+1}\ns_mov_b32 s{d+2}, {size}\ns_mov_b32 s{d+3}, 0x20000')

    a(f'{NAME}:')
    a('s_cmp_ge_u32 s2, 256\ns_cbranch_scc1 L_end')
    a('s_load_dwordx4 s[4:7], s[0:1], 8')
    if stamps:
        for k in range(16):
            a(f's_mov_b32 s{80+k}, 0')
        a('s_memrealtime s[98:99]')
    a('v_lshrrev_b32 v1, 6, v0\nv_and_b32 v0, 63, v0')
    a('v_readfirstlane_b32 s3, v1')
    a('s_and_b32 s20, s2, 7\ns_lshr_b32 s19, s2, 3\ns_and_b32 s21, s19, 7\ns_lshr_b32 s22, s19, 3')
    a('s_cmp_lg_u32 s3, 0\ns_cbranch_scc1 L_consumer')

    a('s_setprio 3')
    a('v_lshrrev_b32 v10, 5, v0\nv_and_b32 v11, 31, v0\nv_lshlrev_b32 v12, 9, v10')
    for i in range(8):
        a(f'v_add_u32 v13, {2*i}, v10\nv_xor_b32 v13, v13, v11\nv_lshl_add_u32 v{2+i}, v13, 4, v12')
    a('s_lshl_b32 s17, s21, 3\ns_add_u32 s17, s17, s20\ns_lshl_b32 s17, s17, 2\ns_add_u32 s17, s17, s22\ns_lshl_b32 s17, s17, 19')
    a('s_mov_b32 s10, 0x80000\ns_mov_b32 s11, 0x20000\ns_mov_b32 s12, 0\ns_mov_b32 s14, 0')
    a('s_mov_b32 s18, 0x100000')
    a('s_waitcnt lgkmcnt(0)')
    if stamps:
        a('s_mov_b32 s80, s98')
    a('s_add_u32 s8, s4, s17\ns_addc_u32 s9, s5, 0\ns_add_u32 s6, s6, s17\ns_addc_u32 s7, s7, 0')
    ipub = (7 + D) % 8
    lag = (7 + D) // 8

    def ld_tile(u, T=None, kvflags=kflags):
        for i in range(8):
            if i % 4 == 0:
                a(f's_add_u32 m0, s14, {u*8192 + (i//4)*4096}')
                a(f's_add_u32 s13, s12, {u*8192 + (i//4)*4096}')
            if T is None or 8 * T + i >= D:
                a(f's_waitcnt vmcnt({D-1})')
            if i == ipub:
                if T is None:
                    a(f's_lshl2_add_u32 s17, s15, {u - lag + 1}\nv_mov_b32 v15, s17\nds_write_b32 v14, v15 offset:{F_LAND}')
                elif T - lag + 1 > 0:
                    a(f'v_mov_b32 v15, {T - lag + 1}\nds_write_b32 v14, v15 offset:{F_LAND}')
            a(f'buffer_load_dwordx4 v{2+i}, s[8:11], s13 offen offset:{(i%4)*1024} {kvflags} lds')

    ld_tile(0, 0)
    a(f'v_mov_b32 v16, 0\nv_mov_b32 v17, 0\nv_mov_b32 v18, 0\nv_mov_b32 v19, 0')
    a(f'v_mov_b32 v14, {FLG}\nv_lshl_add_u32 v13, v0, 4, v14\nds_write_b128 v13, v[16:19]')
    ld_tile(1, 1)
    a('s_waitcnt lgkmcnt(0)\ns_barrier')
    ld_tile(2, 2)
    ld_tile(3, 3)
    a('s_mov_b32 s15, 1')
    for ph in range(2):
        if ph == 1:
            a('s_mov_b32 s8, s6\ns_mov_b32 s9, s7\ns_mov_b32 s12, -32768')
            for i in range(8):
                a(f'v_lshlrev_b32 v{2+i}, 4, v0')
        a(f'L_ld_loop{ph}:')
        a('s_add_u32 s12, s12, 32768\ns_add_u32 s14, s14, 32768\ns_and_b32 s14, s14, 0x1ffff\ns_sub_u32 s16, s15, 3')
        for u in range(4):
            ok = lab('ldok')
            rt = lab('ldrt')
            a('s_waitcnt lgkmcnt(0)')
            a(f'v_readfirstlane_b32 s17, v{16+u}\ns_cmp_ge_i32 s17, s16\ns_cbranch_scc1 {ok}')
            a(f'{rt}:')
            a(f'ds_read_b128 v[16:19], v14 offset:{F_CONS}\ns_sub_u32 s18, s18, 1\ns_cbranch_scc1 L_end\ns_waitcnt lgkmcnt(0)')
            a(f'v_readfirstlane_b32 s17, v{16+u}\ns_cmp_ge_i32 s17, s16\ns_cbranch_scc0 {rt}')
            a(f'{ok}:')
            a(f'ds_read_b128 v[16:19], v14 offset:{F_CONS}')
            ld_tile(u, None, vflags if ph else kflags)
        a(f's_add_u32 s15, s15, 1\ns_cmp_lt_u32 s15, {16*(ph+1)}\ns_cbranch_scc1 L_ld_loop{ph}')
    for t in range(128 - lag, 128):
        a(f'v_mov_b32 v15, {t+1}\ns_waitcnt vmcnt({8*(127-t)})\nds_write_b32 v14, v15 offset:{F_LAND}')
    if stamps:
        stamp(1)
        a('s_load_dwordx2 s[46:47], s[0:1], 96\ns_waitcnt lgkmcnt(0)')
        a('s_branch L_stamp_out')
    a('s_endpgm')

    P = 16
    FR = 48
    SEL = 80
    AT = 88
    DT = 96
    OA = 100
    KA = OA
    VA = 108
    VFL, VM, VL, VW, VXB = 1, 110, 111, 2, 3
    T0 = 4
    YA = 112
    TAG = 's64'

    def timeout():
        a('s_sub_u32 s66, s66, 1\ns_cbranch_scc1 L_end')

    def wait_flags(off, n, slp=0):
        l = lab('wf')
        ok = lab('wfok')
        a(f'{l}:')
        if n == 1:
            a(f'ds_read_b32 v{T0}, v{VFL} offset:{off}\ns_waitcnt lgkmcnt(0)')
        else:
            a(f'ds_read_b128 v[{T0}:{T0+3}], v{VFL} offset:{off}\ns_waitcnt lgkmcnt(0)')
            a(f'v_min3_u32 v{T0}, v{T0}, v{T0+1}, v{T0+2}')
            if n == 4:
                a(f'v_min_u32 v{T0}, v{T0}, v{T0+3}')
        a(f'v_readfirstlane_b32 s67, v{T0}\ns_cmp_lg_u32 s67, 0\ns_cbranch_scc1 {ok}')
        timeout()
        if slp:
            a(f's_sleep {slp}')
        a(f's_branch {l}\n{ok}:')

    def set_flag(off):
        a(f'ds_write_b32 v15, v14 offset:{off}')

    def wait_tile(t_const, slp):
        l = lab('wt')
        ok = lab('wtok')
        a(f's_add_u32 s67, s23, {t_const}\ns_cmp_gt_i32 s65, s67\ns_cbranch_scc1 {ok}')
        a(f'{l}:')
        a(f'ds_read_b32 v{T0}, v{VFL} offset:{F_LAND}\ns_waitcnt lgkmcnt(0)')
        a(f'v_readfirstlane_b32 s65, v{T0}\ns_cmp_gt_i32 s65, s67\ns_cbranch_scc1 {ok}')
        timeout()
        if slp:
            a(f's_sleep {slp}')
        a(f's_branch {l}\n{ok}:')

    def reduce32(op, t, u):
        for r in (8, 4, 2, 1):
            a(f'v_{op}_f32_dpp v{t}, v{t}, v{t} row_ror:{r} row_mask:0xf bank_mask:0xf')
        a(f'v_mov_b32 v{u}, v{t}\nv_permlane16_swap_b32 v{t}, v{u}\nv_{op}_f32 v{t}, v{t}, v{u}')

    def reduce_rows(op, t, u):
        a(f'v_mov_b32 v{u}, v{t}\nv_permlane16_swap_b32 v{t}, v{u}\nv_{op}_f32 v{t}, v{t}, v{u}')
        a(f'v_mov_b32 v{u}, v{t}\nv_permlane32_swap_b32 v{t}, v{u}\nv_{op}_f32 v{t}, v{t}, v{u}')

    def rnd(r):
        a(f'v_cvt_pk_bf16_f32 v{r}, v{r}, v{r}\nv_lshlrev_b32 v{r}, 16, v{r}')

    def layernorm(raw, f, vmask):
        t = T0
        for i in range(8):
            a(f'v_lshlrev_b32 v{f+2*i}, 16, v{raw+i}\nv_and_b32 v{f+2*i+1}, 0xffff0000, v{raw+i}')
        pk = lambda r: f'v[{r}:{r+1}]'
        a(f'v_pk_add_f32 {pk(t)}, {pk(f)}, {pk(f+2)}\nv_pk_add_f32 {pk(t+2)}, {pk(f+4)}, {pk(f+6)}')
        a(f'v_pk_add_f32 {pk(t)}, {pk(t)}, {pk(f+8)}\nv_pk_add_f32 {pk(t+2)}, {pk(t+2)}, {pk(f+10)}')
        a(f'v_pk_add_f32 {pk(t)}, {pk(t)}, {pk(f+12)}\nv_pk_add_f32 {pk(t+2)}, {pk(t+2)}, {pk(f+14)}')
        a(f'v_pk_add_f32 {pk(t)}, {pk(t)}, {pk(t+2)}\nv_add_f32 v{t}, v{t}, v{t+1}\nv_mul_f32 v{t}, v{t}, v{vmask}')
        reduce32('add', t, t + 1)
        a(f'v_mul_f32 v{t+2}, {fb(1/448)}, v{t}')
        neg = 'op_sel_hi:[1,0] neg_lo:[0,1] neg_hi:[0,1]'
        for i in range(8):
            d = t + 4 + 2 * (i & 1)
            a(f'v_pk_add_f32 {pk(d)}, {pk(f+2*i)}, {pk(t+2)} {neg}')
            if i == 0:
                a(f'v_pk_mul_f32 {pk(t)}, {pk(d)}, {pk(d)}')
            else:
                a(f'v_pk_fma_f32 {pk(t)}, {pk(d)}, {pk(d)}, {pk(t)}')
        a(f'v_add_f32 v{t}, v{t}, v{t+1}\nv_mul_f32 v{t}, v{t}, v{vmask}')
        rnd(t + 2)
        reduce32('add', t, t + 1)
        a(f'v_mul_f32 v{t}, {fb(1/448)}, v{t}')
        rnd(t)
        a(f'v_add_f32 v{t}, {fb(1e-5)}, v{t}')
        rnd(t)
        a(f'v_sqrt_f32 v{t}, v{t}')
        for i in range(8):
            a(f'v_pk_add_f32 {pk(f+2*i)}, {pk(f+2*i)}, {pk(t+2)} {neg}')
        rnd(t)
        a(f'v_rcp_f32 v{t}, v{t}')
        for i in range(8):
            a(f'v_cvt_pk_bf16_f32 v{raw+i}, v{f+2*i}, v{f+2*i+1}')
        for i in range(8):
            a(f'v_lshlrev_b32 v{f+2*i}, 16, v{raw+i}\nv_and_b32 v{f+2*i+1}, 0xffff0000, v{raw+i}')
        for i in range(8):
            a(f'v_pk_mul_f32 {pk(f+2*i)}, {pk(f+2*i)}, {pk(t)} op_sel_hi:[1,0]')
        for i in range(8):
            a(f'v_cvt_pk_bf16_f32 v{raw+i}, v{f+2*i}, v{f+2*i+1}')

    def slab_mfma(act, abase):
        a(f'v_lshrrev_b32 v{T0}, 4, v0\nv_and_b32 v{T0+1}, 15, v0')
        a(f'v_lshlrev_b32 v{T0+2}, 8, v{T0}\nv_lshl_add_u32 v{T0+2}, v{T0+1}, 3, v{T0+2}\nv_add_u32 v{T0+2}, {STG}, v{T0+2}')
        a(f'v_and_b32 v{T0+1}, 7, v0\nv_mul_u32_u24 v{T0+1}, {XS}, v{T0+1}\nv_lshl_add_u32 v{T0+1}, v{T0}, 4, v{T0+1}\nv_add_u32 v{T0+1}, {act}, v{T0+1}')

        def rd(ks):
            a(f'ds_read_b64_tr_b16 {ar(abase+4*ks,2)}, v{T0+2} offset:{ks*1024}')
            a(f'ds_read_b64_tr_b16 {ar(abase+4*ks+2,2)}, v{T0+2} offset:{ks*1024+128}')
            a(f'ds_read_b128 {ar(abase+56+4*ks,4)}, v{T0+1} offset:{ks*64}')
        for ks in range(4):
            rd(ks)
        for ks in range(14):
            if ks + 4 < 14:
                rd(ks + 4)
            left = min(13 - ks, 4)
            a(f's_waitcnt lgkmcnt({3*left})')
            c = '0' if ks == 0 else vr(DT, 4)
            a(f'v_mfma_f32_16x16x32_bf16 {vr(DT,4)}, {ar(abase+4*ks,4)}, {ar(abase+56+4*ks,4)}, {c}')

    def build_a(dst, src, e):
        for i in range(4):
            a(f'v_perm_b32 v{dst+i}, v{src}, v{src}, v{SEL+4*e+i}')

    a('L_consumer:')
    if prefetch:
        a('s_getpc_b64 s[26:27]\nv_lshlrev_b32 v4, 7, v0')
        a('s_sub_u32 s67, s3, 1\ns_lshl_b32 s67, s67, 13\nv_add_u32 v4, s67, v4')
        a('v_min_u32 v4, L_end-L_consumer-64, v4')
        a(f'global_load_dword v{DT}, v4, s[26:27]')
    a('s_load_dwordx2 s[24:25], s[0:1], 0\ns_load_dwordx4 s[28:31], s[0:1], 24\ns_load_dwordx2 s[46:47], s[0:1], 96')
    a('s_load_dwordx8 s[36:43], s[0:1], 48\ns_load_dwordx2 s[44:45], s[0:1], 80')
    a('s_sub_u32 s23, s3, 1\ns_mov_b32 s65, 0\ns_mov_b32 s66, 0x100000')
    XR = FR
    XF = FR + 8
    VMK = FR + 24
    VXO = FR + 25
    a(f'v_lshrrev_b32 v6, 5, v0\nv_and_b32 v7, 31, v0\ns_lshl_b32 s67, s23, 1\nv_add_u32 v6, s67, v6')
    a(f'v_mul_u32_u24 v8, 896, v6\nv_lshl_add_u32 v8, v7, 5, v8\nv_cmp_gt_u32 vcc, 28, v7')
    a(f'v_mov_b32 v9, 0x10000\nv_cndmask_b32 v8, v9, v8, vcc\nv_cndmask_b32 v{VMK}, 0, 1.0, vcc')
    a(f'v_mul_u32_u24 v{VXO}, {XS}, v6\nv_lshl_add_u32 v{VXO}, v7, 5, v{VXO}\nv_add_u32 v{VXO}, {XN}, v{VXO}')
    a('s_mov_b64 s[70:71], vcc')
    a('v_lshrrev_b32 v10, 1, v0\nv_and_b32 v11, 1, v0\nv_lshlrev_b32 v11, 4, v11\nv_lshl_add_u32 v12, v10, 13, v11')
    a('s_lshl_b32 s68, s20, 5\ns_add_u32 s68, s68, s19\ns_lshl_b32 s68, s68, 5')
    a('s_lshl_b32 s67, s23, 18\ns_add_u32 s69, s68, s67')
    a(f's_lshl_b32 s72, s23, 10\ns_add_u32 s72, s72, {STG}')
    a(f'v_mov_b32 v{VFL}, {FLG}\ns_lshl_b32 s67, s23, 2\nv_add_u32 v15, s67, v{VFL}\nv_mov_b32 v14, 1')
    a('s_waitcnt lgkmcnt(0)')
    if stamps:
        a('s_mov_b32 s80, s98')
    a('s_load_dword s64, s[46:47], 0')
    srd(48, 24, 7168)
    a(f'buffer_load_dwordx4 {vr(XR,4)}, v8, s[48:51], 0 offen\nbuffer_load_dwordx4 {vr(XR+4,4)}, v8, s[48:51], 0 offen offset:16')
    srd(56, 28, 448 * 8192)
    for j in range(3):
        a(f's_add_u32 m0, s72, {j*4096}\ns_add_u32 s67, s69, {j << 20}')
        a(f'buffer_load_dwordx4 v12, s[56:59], s67 offen {wflags} lds')
    srd(52, 46, W_STAMP + 0x40000 if stamps else W_END)
    a('s_lshl_b32 s73, s21, 3\ns_add_u32 s73, s73, s20\ns_lshl2_add_u32 s74, s73, s22')
    a('s_cmp_ge_u32 s23, 2\ns_cbranch_scc1 L_clear')
    a(f's_add_u32 m0, s72, {3*4096}\ns_add_u32 s67, s69, {3 << 20}')
    a(f'buffer_load_dwordx4 v12, s[56:59], s67 offen {wflags} lds')
    a('s_branch L_clear_done')
    a('L_clear:')
    a(f's_mov_b32 s67, {W_YP}\ns_cmp_eq_u32 s23, 2\ns_cselect_b32 s67, {W_OP}, s67\ns_lshl_b32 s75, s74, 11\ns_add_u32 s67, s67, s75')
    a('v_lshlrev_b32 v10, 4, v0\nv_mov_b32 v4, -1\nv_mov_b32 v5, -1\nv_mov_b32 v6, -1\nv_mov_b32 v7, -1')
    a('buffer_store_dwordx4 v[4:7], v10, s[52:55], s67 offen sc1\nbuffer_store_dwordx4 v[4:7], v10, s[52:55], s67 offen offset:1024 sc1')
    a('L_clear_done:')
    a('v_and_b32 v10, 1, v0\nv_bfe_u32 v11, v0, 1, 2\nv_cmp_eq_u32 vcc, 0, v10')
    a('v_mov_b32 v12, 0x01000c0c\nv_mov_b32 v13, 0x0c0c0100\nv_cndmask_b32 v12, v12, v13, vcc')
    a('v_mov_b32 v10, 0x03020c0c\nv_mov_b32 v13, 0x0c0c0302\nv_cndmask_b32 v13, v10, v13, vcc')
    a('v_mov_b32 v10, 0x0c0c0c0c')
    for i in range(4):
        a(f'v_cmp_eq_u32 vcc, {i}, v11\nv_cndmask_b32 v{SEL+i}, v10, v12, vcc\nv_cndmask_b32 v{SEL+4+i}, v10, v13, vcc')
    a('v_lshrrev_b32 v10, 4, v0\nv_and_b32 v11, 15, v0\ns_lshl_b32 s67, s23, 13\nv_lshlrev_b32 v12, 9, v11\nv_add_u32 v12, s67, v12')
    for j in range(4):
        a(f'v_add_u32 v13, {4*j}, v10\nv_xor_b32 v13, v13, v11\nv_lshl_add_u32 v{KA+j}, v13, 4, v12\nv_add_u32 v{KA+4+j}, 0x10000, v{KA+j}')
    a(f'v_lshlrev_b32 v12, 11, v10\nv_lshl_add_u32 v12, v11, 4, v12\nv_add_u32 v{VA}, s67, v12\nv_add_u32 v{VA+1}, 0x10000, v{VA}')
    a(f'v_mov_b32 v{VM}, 0xff800000')
    a('s_barrier')
    a('s_waitcnt vmcnt(4)')
    stamp(1)
    layernorm(XR, XF, VMK)
    a('s_mov_b64 exec, s[70:71]')
    a(f'ds_write_b128 v{VXO}, {vr(XR,4)} offset:0\nds_write_b128 v{VXO}, {vr(XR+4,4)} offset:16')
    a('s_mov_b64 exec, -1')
    a('s_waitcnt vmcnt(0) lgkmcnt(0)')
    set_flag(F_X)
    a('s_add_u32 s64, s64, 1')

    def ln2():
        layernorm(XR, XF, VMK)
        a('s_mov_b64 exec, s[70:71]')
        a(f'ds_write_b128 v{VXO}, {vr(XR,4)} offset:{YN-XN}\nds_write_b128 v{VXO}, {vr(XR+4,4)} offset:{YN-XN+16}')
        a('s_mov_b64 exec, -1')
        set_flag(F_Y)

    a('s_cmp_lg_u32 s23, 0\ns_cbranch_scc1 L_notq')
    wait_flags(F_X, 4)
    stamp(2)
    slab_mfma(XN, 0)
    a(f'v_lshrrev_b32 v8, 4, v0\nv_and_b32 v9, 15, v0\nv_lshlrev_b32 v10, 14, v9\nv_lshl_add_u32 v10, v8, 4, v10')
    a(f'v_cmp_gt_u32 vcc, 8, v9\nv_mov_b32 v9, 0x1000000\nv_cndmask_b32 v10, v9, v10, vcc')
    a(f's_lshl_b32 s67, s68, 1\ns_add_u32 s67, s67, {W_Q}')
    a(f'v_mov_b32 v5, {TAG}\nv_mov_b32 v7, {TAG}')
    a(f'v_cvt_pk_bf16_f32 v4, v{DT}, v{DT+1}\nv_cvt_pk_bf16_f32 v6, v{DT+2}, v{DT+3}')
    a('buffer_store_dwordx4 v[4:7], v10, s[52:55], s67 offen sc1')
    stamp(3)
    a(f's_lshl_b32 s67, s21, 14\ns_lshl_b32 s75, s20, 11\ns_add_u32 s76, s67, s75\ns_add_u32 s76, s76, {W_Q}')
    a('v_lshlrev_b32 v12, 5, v0')
    a('L_qpoll:')
    a(f'buffer_load_dwordx4 v[4:7], v12, s[52:55], s76 offen sc1\nbuffer_load_dwordx4 v[8:11], v12, s[52:55], s76 offen offset:16 sc1')
    timeout()
    a('s_waitcnt vmcnt(0)')
    a(f'v_xor_b32 v5, {TAG}, v5\nv_xor_b32 v7, {TAG}, v7\nv_xor_b32 v9, {TAG}, v9\nv_xor_b32 v11, {TAG}, v11')
    a('v_or3_b32 v5, v5, v7, v9\nv_or_b32 v5, v5, v11\nv_cmp_ne_u32 vcc, 0, v5\ns_cbranch_vccnz L_qpoll')
    a(f'v_mov_b32 v5, v6\nv_mov_b32 v6, v8\nv_mov_b32 v7, v10\nv_lshlrev_b32 v12, 4, v0')
    a(f'v_add_u32 v13, {QL}, v12\nds_write_b128 v13, v[4:7]')
    a(f'ds_write_b32 v{VFL}, v14 offset:{F_Q}')
    stamp(4)
    for i in range(8):
        a(f'v_accvgpr_write_b32 a{136+i}, v{XR+i}')
    a(f'v_accvgpr_write_b32 a134, v{VMK}\nv_accvgpr_write_b32 a135, v{VXO}')
    a('s_branch L_haveq')
    a('L_notq:')
    a('s_cmp_ge_u32 s19, 14\ns_cbranch_scc1 L_noln2')
    ln2()
    a('L_noln2:')
    wait_flags(F_Q, 1, sleep)
    a('L_haveq:')
    a(f'v_bfe_u32 v10, v0, 3, 1\nv_lshrrev_b32 v11, 4, v0\nv_lshlrev_b32 v10, 9, v10\nv_lshl_add_u32 v10, v11, 4, v10\nv_add_u32 v10, {QL}, v10')
    for ks in range(8):
        a(f'ds_read_b128 {ar(4*ks,4)}, v10 offset:{ks*64}')

    for k in range(16):
        wait_tile(4 * k, sleep)
        for ks in range(8):
            a(f'ds_read_b128 {vr(FR+4*ks,4)}, v{KA + (4 if k & 2 else 0) + (ks & 3)} offset:{(k&1)*32768 + (ks>>2)*256}')
        a(f'v_mov_b32 v{T0+1}, {k+1}')
        for ks in range(8):
            a(f's_waitcnt lgkmcnt({7-ks})')
            if ks == 7:
                a(f'ds_write_b32 v15, v{T0+1} offset:{F_CONS}')
            c = '0' if ks == 0 else vr(DT, 4)
            a(f'v_mfma_f32_16x16x32_bf16 {vr(DT,4)}, {vr(FR+4*ks,4)}, {ar(4*ks,4)}, {c}')
        a(f'v_max3_f32 v{VM}, v{VM}, v{DT}, v{DT+1}\nv_max3_f32 v{VM}, v{VM}, v{DT+2}, v{DT+3}')
        a(f'v_cvt_pk_bf16_f32 v{P+2*k}, v{DT}, v{DT+1}\nv_cvt_pk_bf16_f32 v{P+2*k+1}, v{DT+2}, v{DT+3}')
        if k == 1:
            sk = lab('w1')
            a(f's_cmp_lg_u32 s23, 1\ns_cbranch_scc1 {sk}\ns_cmp_ge_u32 s19, 14\ns_cbranch_scc1 {sk}')
            srd(56, 36, 448 * 3584)
            a('v_lshrrev_b32 v10, 1, v0\nv_and_b32 v11, 1, v0\nv_mul_u32_u24 v10, 3584, v10\nv_lshl_add_u32 v10, v11, 4, v10')
            a('s_mul_i32 s77, s20, 14\ns_add_u32 s77, s77, s19\ns_lshl_b32 s77, s77, 5')
            for j in range(14):
                a(f's_mov_b32 m0, {STG + j*1024}\ns_add_u32 s67, s77, {j*32*3584}')
                a(f'buffer_load_dwordx4 v10, s[56:59], s67 offen {wflags} lds')
            srd(56, 38, 3584)
            a(f'v_lshrrev_b32 v10, 4, v0\nv_lshlrev_b32 v10, 3, v10')
            a(f'buffer_load_dwordx2 v[{AT}:{AT+1}], v10, s[56:59], s77 offen')
            a(f'{sk}:')
        if k == 3:
            sk = lab('ln2')
            a(f's_cmp_lg_u32 s23, 0\ns_cbranch_scc1 {sk}\ns_cmp_ge_u32 s19, 14\ns_cbranch_scc1 {sk}')
            for i in range(8):
                a(f'v_accvgpr_read_b32 v{XR+i}, a{136+i}')
            a(f'v_accvgpr_read_b32 v{VMK}, a134\nv_accvgpr_read_b32 v{VXO}, a135')
            ln2()
            a(f'{sk}:')
        if k == 5:
            sk = lab('h')
            a(f's_cmp_lg_u32 s23, 1\ns_cbranch_scc1 {sk}\ns_cmp_ge_u32 s19, 14\ns_cbranch_scc1 {sk}')
            wait_flags(F_Y, 4, sleep)
            a('s_waitcnt vmcnt(0)')
            slab_mfma(YN, 32)
            a(f'v_lshlrev_b32 v8, 16, v{AT}\nv_and_b32 v9, 0xffff0000, v{AT}\nv_lshlrev_b32 v10, 16, v{AT+1}\nv_and_b32 v11, 0xffff0000, v{AT+1}')
            c0 = -2 * 0.7978845608028654 * LOG2E
            a(f's_mov_b32 s75, {fb(c0 * 0.044715)}\nv_mov_b32 v12, {fb(c0)}')
            for r in range(4):
                rnd(DT + r)
            for r in range(4):
                a(f'v_add_f32 v{DT+r}, v{DT+r}, v{8+r}')
            for r in range(4):
                rnd(DT + r)
            for r in range(4):
                a(f'v_mul_f32 v{8+r}, v{DT+r}, v{DT+r}\nv_fma_f32 v{8+r}, v{8+r}, s75, v12\nv_mul_f32 v{8+r}, v{8+r}, v{DT+r}')
            for r in range(4):
                a(f'v_exp_f32 v{8+r}, v{8+r}')
            for r in range(4):
                a(f'v_add_f32 v{8+r}, 1.0, v{8+r}')
            for r in range(4):
                a(f'v_rcp_f32 v{8+r}, v{8+r}')
            for r in range(4):
                a(f'v_mul_f32 v{DT+r}, v{DT+r}, v{8+r}')
            a(f'v_lshrrev_b32 v8, 4, v0\nv_and_b32 v9, 15, v0\nv_lshlrev_b32 v10, 13, v9\nv_lshl_add_u32 v10, v8, 4, v10')
            a(f'v_cmp_gt_u32 vcc, 8, v9\nv_mov_b32 v9, 0x1000000\nv_cndmask_b32 v10, v9, v10, vcc')
            a(f's_lshl_b32 s67, s77, 1\ns_add_u32 s67, s67, {W_H}')
            a(f'v_mov_b32 v5, {TAG}\nv_mov_b32 v7, {TAG}')
            a(f'v_cvt_pk_bf16_f32 v4, v{DT}, v{DT+1}\nv_cvt_pk_bf16_f32 v6, v{DT+2}, v{DT+3}')
            a('buffer_store_dwordx4 v[4:7], v10, s[52:55], s67 offen sc1')
            a(f'{sk}:')
        if k == 9:
            srd(60, 40, 1792 * 896)
            a('s_lshl2_add_u32 s75, s20, s22\ns_lshl2_add_u32 s75, s75, s23\ns_mul_i32 s78, s75, 14')
            a(f'v_lshrrev_b32 v10, 3, v0\nv_and_b32 v11, 7, v0\nv_mul_u32_u24 v10, {2*896}, v10\nv_lshl_add_u32 v10, v11, 4, v10')
            a('s_mul_i32 s67, s78, 896\ns_add_u32 s75, s67, 896')
            for t in range(2):
                for cb in range(7):
                    a(f'buffer_load_dwordx4 {ar(32+4*(t*7+cb),4)}, v10, s[60:63], {"s67" if t == 0 else "s75"} offen offset:{cb*128} {wflags}')
        if k == 11:
            l = lab('hp')
            a(f's_lshl_b32 s67, s21, 13\ns_lshl_b32 s75, s78, 2\ns_add_u32 s67, s67, s75\ns_add_u32 s67, s67, {W_H}')
            a(f'v_lshrrev_b32 v10, 3, v0\nv_cmp_gt_u32 s[68:69], 7, v10\nv_min_u32 v10, 6, v10\nv_lshlrev_b32 v10, 3, v10')
            a(f'{l}:')
            a(f'buffer_load_dwordx2 v[4:5], v10, s[52:55], s67 offen sc1')
            timeout()
            a(f's_waitcnt vmcnt(0)\nv_cmp_ne_u32 vcc, {TAG}, v5\ns_cbranch_vccnz {l}')
            a('v_cndmask_b32 v4, 0, v4, s[68:69]')
            build_a(AT, 4, 0)
            build_a(AT + 4, 4, 1)
            for t in range(2):
                for cb in range(7):
                    c = '0' if t == 0 else ar(YA + 4 * cb, 4)
                    a(f'v_mfma_f32_16x16x32_bf16 {ar(YA+4*cb,4)}, {vr(AT+4*t,4)}, {ar(32+4*(t*7+cb),4)}, {c}')
    stamp(5)
    reduce_rows('max', VM, T0)
    rnd(VM)
    a(f'v_bfe_u32 v10, v0, 3, 1\nv_lshl_add_u32 v10, v10, 2, v{VFL}\ns_lshl_b32 s67, s23, 3\nv_add_u32 v11, s67, v10')
    a(f'ds_write_b32 v11, v{VM} offset:{MX}')
    set_flag(F_M)
    wait_flags(F_M, 4)
    a(f'ds_read2_b32 v[4:5], v10 offset0:{MX//4} offset1:{MX//4+2}\nds_read2_b32 v[6:7], v10 offset0:{MX//4+4} offset1:{MX//4+6}')
    a(f's_mov_b32 s75, {fb(LOG2E/16)}\nv_mov_b32 v{VL}, 0\nv_mov_b32 v12, 0')
    a(f's_waitcnt lgkmcnt(0)\nv_max3_f32 v4, v4, v5, v6\nv_max_f32 v{VM}, v4, v7\nv_mul_f32 v13, {fb(-LOG2E/16)}, v{VM}')
    for j in range(0, 32, 2):
        a(f'v_lshlrev_b32 v4, 16, v{P+j}\nv_and_b32 v5, 0xffff0000, v{P+j}\nv_lshlrev_b32 v6, 16, v{P+j+1}\nv_and_b32 v7, 0xffff0000, v{P+j+1}')
        for r in range(4):
            a(f'v_fma_f32 v{4+r}, v{4+r}, s75, v13')
        for r in range(4):
            a(f'v_exp_f32 v{4+r}, v{4+r}')
        a(f'v_add_f32 v{VL}, v{VL}, v4\nv_add_f32 v12, v12, v5\nv_cvt_pk_bf16_f32 v{P+j}, v4, v5')
        a(f'v_add_f32 v{VL}, v{VL}, v6\nv_add_f32 v12, v12, v7\nv_cvt_pk_bf16_f32 v{P+j+1}, v6, v7')
    a(f'v_add_f32 v{VL}, v{VL}, v12')
    reduce_rows('add', VL, T0)
    a(f'ds_write_b32 v11, v{VL} offset:{LS}')
    set_flag(F_L)
    a('s_cmp_lg_u32 s23, 0\ns_cbranch_scc1 L_nostat')
    wait_flags(F_L, 4)
    a(f'ds_read2_b32 v[4:5], v10 offset0:{LS//4} offset1:{LS//4+2}\nds_read2_b32 v[6:7], v10 offset0:{LS//4+4} offset1:{LS//4+6}')
    a(f'v_and_b32 v8, 0x37, v0\nv_cmp_eq_u32 vcc, 0, v8\nv_lshlrev_b32 v8, 1, v0\nv_mov_b32 v9, 0x1000000\nv_cndmask_b32 v8, v9, v8, vcc')
    a(f's_lshl_b32 s67, s74, 7\ns_add_u32 s67, s67, {W_ST}')
    a(f's_waitcnt lgkmcnt(0)\nv_add_f32 v4, v4, v5\nv_add_f32 v6, v6, v7\nv_add_f32 v6, v4, v6')
    a(f'v_mov_b32 v4, v{VM}\nv_mov_b32 v5, {TAG}\nv_mov_b32 v7, {TAG}')
    a('buffer_store_dwordx4 v[4:7], v8, s[52:55], s67 offen sc1')
    a('L_nostat:')
    srd(60, 30, 4096 * 896)
    a('s_lshl2_add_u32 s75, s20, s22\ns_lshl2_add_u32 s75, s75, s23\ns_mul_i32 s78, s75, 32*896')
    a(f'v_lshrrev_b32 v10, 3, v0\nv_and_b32 v11, 7, v0\nv_mul_u32_u24 v10, {4*896}, v10\nv_lshl_add_u32 v{VL}, v11, 4, v10')

    def v_tile(k, extra=None):
        for r in range(4):
            for hf in range(2):
                a(f'ds_read_b128 {vr(FR+4*(2*r+hf),4)}, v{VA + (1 if k & 2 else 0)} offset:{(k&1)*32768 + r*512 + hf*256}')
        n_extra = extra() if extra else 0
        a(f'v_mov_b32 v{T0+1}, {k+17}')
        for r in range(4):
            at = AT + 4 * (r & 1)
            build_a(at, P + 2 * k + (r >> 1), r & 1)
            for hf in range(2):
                a(f's_waitcnt lgkmcnt({7-(2*r+hf)+n_extra})')
                if r == 3 and hf == 1 and k < 15:
                    a(f'ds_write_b32 v15, v{T0+1} offset:{F_CONS}')
                c = '0' if (k == 0 and r == 0) else vr(OA + 4 * hf, 4)
                a(f'v_mfma_f32_16x16x32_bf16 {vr(OA+4*hf,4)}, {vr(at,4)}, {vr(FR+4*(2*r+hf),4)}, {c}')

    for k in range(15):
        wait_tile(64 + 4 * k, sleep)
        v_tile(k)
        if k < 7:
            for j in range(4 * k, 4 * k + 4):
                t, cb = divmod(j, 7)
                if j % 7 == 0 or j % 4 == 0:
                    a(f's_add_u32 s67, s78, {t*896}')
                a(f'buffer_load_dwordx4 {ar(4*j,4)}, v{VL}, s[60:63], s67 offen offset:{cb*128} {wflags}')
        if k == 12:
            l = lab('sp')
            a(f's_lshl_b32 s67, s73, 9\ns_lshr_b32 s75, s22, 1\ns_lshl_b32 s75, s75, 4\ns_add_u32 s67, s67, s75\ns_add_u32 s67, s67, {W_ST}')
            a('v_and_b32 v10, 3, v0\nv_lshlrev_b32 v10, 7, v10')
            a(f'{l}:')
            a('buffer_load_dwordx4 v[4:7], v10, s[52:55], s67 offen sc1')
            timeout()
            a(f's_waitcnt vmcnt(0)\nv_xor_b32 v5, {TAG}, v5\nv_xor_b32 v7, {TAG}, v7\nv_or_b32 v5, v5, v7\nv_cmp_ne_u32 vcc, 0, v5\ns_cbranch_vccnz {l}')
            a('v_max_f32_dpp v5, v4, v4 quad_perm:[1,0,3,2] row_mask:0xf bank_mask:0xf')
            a('v_max_f32_dpp v5, v5, v5 quad_perm:[2,3,0,1] row_mask:0xf bank_mask:0xf')
            a(f'v_sub_f32 v4, v4, v5\nv_mul_f32 v4, {fb(LOG2E/16)}, v4\nv_exp_f32 v4, v4\nv_mul_f32 v6, v6, v4')
            a('v_add_f32_dpp v6, v6, v6 quad_perm:[1,0,3,2] row_mask:0xf bank_mask:0xf')
            a('v_add_f32_dpp v6, v6, v6 quad_perm:[2,3,0,1] row_mask:0xf bank_mask:0xf')
            a(f'v_rcp_f32 v6, v6\nv_mul_f32 v{VW}, v4, v6')
        if k == 13:
            sk = lab('fc')
            l = lab('fcp')
            a(f's_lshl2_add_u32 s79, s20, s22\ns_cmp_lg_u32 s23, 0\ns_cbranch_scc1 {sk}\ns_cmp_ge_u32 s79, 28\ns_cbranch_scc1 {sk}')
            srd(56, 42, 896)
            a('v_and_b32 v10, 3, v0\nv_bfe_u32 v11, v0, 2, 2\nv_lshl_add_u32 v10, v10, 2, v11\nv_lshlrev_b32 v10, 1, v10')
            a('s_lshl_b32 s75, s79, 5\ns_mul_i32 s76, s21, 896\ns_add_u32 s76, s76, s75')
            a('buffer_load_ushort v8, v10, s[48:51], s76 offen\nbuffer_load_ushort v9, v10, s[56:59], s75 offen')
            a(f's_lshl_b32 s67, s21, 12\ns_add_u32 s67, s67, {W_ST}\nv_and_b32 v11, 31, v0\nv_lshlrev_b32 v11, 7, v11')
            a(f'{l}:')
            a('buffer_load_dword v4, v11, s[52:55], s67 offen offset:4 sc1')
            timeout()
            a(f's_waitcnt vmcnt(0)\nv_cmp_ne_u32 vcc, {TAG}, v4\ns_cbranch_vccnz {l}')
            a(f'v_lshlrev_b32 v8, 16, v8\nv_lshlrev_b32 v9, 16, v9\nv_add_f32 v{VXB}, v8, v9')
            a(f'{sk}:')
    VO1, VO2, VO3, VO4, VO5 = P, P + 1, P + 2, P + 3, P + 4
    a(f'v_lshlrev_b32 v{VO1}, 4, v0\ns_lshl_b32 s67, s23, 11\ns_add_u32 s67, s67, {OPL}\nv_add_u32 v{VO2}, s67, v{VO1}\nv_add_u32 v{VO1}, {OPL}, v{VO1}')
    a(f'v_lshrrev_b32 v10, 5, v0\nv_and_b32 v11, 15, v0\nv_lshlrev_b32 v10, 10, v10\nv_lshl_add_u32 v10, v11, 5, v10')
    a(f'v_bfe_u32 v11, v0, 4, 1\nv_lshl_add_u32 v{VO3}, v11, 4, v10')
    a(f's_lshl_b32 s68, s74, 11\ns_add_u32 s68, s68, {W_OP}')
    a(f'v_and_b32 v10, 3, v0\nv_lshrrev_b32 v11, 3, v0\nv_lshlrev_b32 v10, 11, v10\nv_lshl_add_u32 v{VO4}, v11, 4, v10')
    a(f's_lshl_b32 s69, s73, 13\ns_lshl2_add_u32 s67, s22, s23\ns_lshl_b32 s67, s67, 7\ns_add_u32 s69, s69, s67\ns_add_u32 s69, s69, {W_OP}')
    a(f'v_lshrrev_b32 v10, 5, v0\ns_lshl_b32 s67, s23, 1\nv_add_u32 v10, s67, v10\nv_mul_u32_u24 v10, {RS}, v10')
    a(f'v_and_b32 v11, 7, v0\nv_lshl_add_u32 v10, v11, 5, v10\nv_bfe_u32 v11, v0, 4, 1\nv_lshl_add_u32 v10, v11, 4, v10\nv_add_u32 v{VO5}, {RED}, v10')
    VR1, VR2, VR3, VR4 = P + 5, P + 6, P + 7, P + 8
    a(f'v_lshrrev_b32 v10, 1, v0\nv_min_u32 v10, 27, v10\ns_mul_i32 s67, s23, 28\nv_add_u32 v10, s67, v10\nv_lshlrev_b32 v10, 4, v10')
    a(f'v_and_b32 v11, 1, v0\nv_mul_u32_u24 v12, {4*RS}, v11\nv_add3_u32 v{VR1}, v10, v12, v{VFL}')
    a(f'v_add_u32 v{VR1}, {RED-FLG}, v{VR1}')
    a(f'v_cmp_gt_u32 vcc, 56, v0\nv_mov_b32 v13, 0x1000000\nv_cndmask_b32 v10, v13, v10, vcc\nv_cmp_eq_u32 vcc, 0, v11\nv_cndmask_b32 v{VR2}, v13, v10, vcc')
    a(f's_lshl_b32 s76, s74, 11\ns_add_u32 s76, s76, {W_YP}')
    a(f'v_lshrrev_b32 v10, 2, v0\nv_and_b32 v11, 3, v0\nv_lshlrev_b32 v10, 11, v10\nv_lshl_add_u32 v{VR3}, v11, 4, v10')
    a(f's_lshl_b32 s77, s21, 16\ns_lshl_b32 s67, s79, 6\ns_add_u32 s77, s77, s67\ns_add_u32 s77, s77, {W_YP}\ns_add_u32 s72, s77, 0x8000')
    a(f'v_bfe_u32 v10, v0, 2, 2\nv_lshl_add_u32 v10, v11, 2, v10\nv_lshlrev_b32 v10, 1, v10\nv_cmp_gt_u32 vcc, 16, v0\nv_cndmask_b32 v{VR4}, v13, v10, vcc')
    srd(56, 44, 7168)
    a('s_mul_i32 s78, s21, 896\ns_lshl_b32 s67, s79, 5\ns_add_u32 s78, s78, s67')
    a('s_waitcnt vmcnt(0)')

    a('s_cmp_eq_u32 s23, 3\ns_cbranch_scc1 L_lastwave')
    wait_tile(64 + 60, 0)
    v_tile(15)
    a(f'ds_write_b128 v{VO2}, {vr(OA,4)}\nds_write_b128 v{VO2}, {vr(OA+4,4)} offset:1024')
    set_flag(F_O)
    stamp(6)
    a('s_branch L_hop1')
    a('L_lastwave:')
    wait_tile(64 + 60, 0)
    v_tile(15)
    stamp(6)
    wait_flags(F_O, 3)
    for j in range(6):
        a(f'ds_read_b128 {vr(FR+4*j,4)}, v{VO1} offset:{j*1024}')
    for j in range(6):
        a(f's_waitcnt lgkmcnt({5-j})')
        o = OA + 4 * (j & 1)
        a(f'v_pk_add_f32 v[{o}:{o+1}], v[{o}:{o+1}], v[{FR+4*j}:{FR+4*j+1}]\nv_pk_add_f32 v[{o+2}:{o+3}], v[{o+2}:{o+3}], v[{FR+4*j+2}:{FR+4*j+3}]')
    a(f'buffer_store_dwordx4 {vr(OA,4)}, v{VO3}, s[52:55], s68 offen sc1\nbuffer_store_dwordx4 {vr(OA+4,4)}, v{VO3}, s[52:55], s68 offen offset:512 sc1')
    stamp(7)
    a('L_hop1:')
    a(f'buffer_load_dwordx4 v[4:7], v{VO4}, s[52:55], s69 offen sc1')
    timeout()
    a('s_waitcnt vmcnt(0)\nv_max3_u32 v8, v4, v5, v6\nv_max_u32 v8, v8, v7\nv_cmp_eq_u32 vcc, -1, v8\ns_cbranch_vccnz L_hop1')
    stamp(8)
    for r in range(4):
        a(f'v_mul_f32 v{4+r}, v{4+r}, v{VW}')
    for qp in ('[1,0,3,2]', '[2,3,0,1]'):
        for r in range(4):
            a(f'v_add_f32_dpp v{4+r}, v{4+r}, v{4+r} quad_perm:{qp} row_mask:0xf bank_mask:0xf')
    a('v_cvt_pk_bf16_f32 v4, v4, v5\nv_cvt_pk_bf16_f32 v6, v6, v7')
    build_a(AT, 4, 0)
    for t in range(4):
        for cb in range(7):
            a(f'v_mfma_f32_16x16x32_bf16 {ar(YA+4*cb,4)}, {vr(AT+4*(t&1),4)}, {ar(4*(t*7+cb),4)}, {ar(YA+4*cb,4)}')
            if cb == 0 and t < 3:
                build_a(AT + 4 * ((t + 1) & 1), 4 + 2 * ((t + 1) >> 1), (t + 1) & 1)
    a('s_mov_b32 exec_lo, 0x00ff00ff\ns_mov_b32 exec_hi, 0xff00ff00')
    for cb in range(7):
        a(f'ds_write_b128 v{VO5}, {ar(YA+4*cb,4)} offset:{cb*256}')
    a('s_mov_b64 exec, -1\ns_waitcnt lgkmcnt(0)\ns_barrier')
    for j in range(4):
        a(f'ds_read_b128 {vr(FR+4*j,4)}, v{VR1} offset:{j*RS}')
    a(f's_waitcnt lgkmcnt(2)\nv_pk_add_f32 v[4:5], v[{FR}:{FR+1}], v[{FR+4}:{FR+5}]\nv_pk_add_f32 v[6:7], v[{FR+2}:{FR+3}], v[{FR+6}:{FR+7}]')
    a(f's_waitcnt lgkmcnt(1)\nv_pk_add_f32 v[4:5], v[4:5], v[{FR+8}:{FR+9}]\nv_pk_add_f32 v[6:7], v[6:7], v[{FR+10}:{FR+11}]')
    a(f's_waitcnt lgkmcnt(0)\nv_pk_add_f32 v[4:5], v[4:5], v[{FR+12}:{FR+13}]\nv_pk_add_f32 v[6:7], v[6:7], v[{FR+14}:{FR+15}]')
    for r in range(4):
        a(f'v_add_f32_dpp v{4+r}, v{4+r}, v{4+r} quad_perm:[1,0,3,2] row_mask:0xf bank_mask:0xf')
    a(f'buffer_store_dwordx4 v[4:7], v{VR2}, s[52:55], s76 offen sc1')
    stamp(9)
    fin = 'L_stamp_out' if stamps else 'L_end'
    a(f's_cmp_lg_u32 s23, 0\ns_cbranch_scc1 {fin}\ns_cmp_ge_u32 s79, 28\ns_cbranch_scc1 {fin}')
    a('L_hop2:')
    a(f'buffer_load_dwordx4 v[8:11], v{VR3}, s[52:55], s77 offen sc1\nbuffer_load_dwordx4 {vr(FR,4)}, v{VR3}, s[52:55], s72 offen sc1')
    timeout()
    a(f's_waitcnt vmcnt(0)\nv_max3_u32 v12, v8, v9, v10\nv_max3_u32 v13, v11, v{FR}, v{FR+1}\nv_max3_u32 v12, v12, v{FR+2}, v{FR+3}')
    a('v_max_u32 v12, v12, v13\nv_cmp_eq_u32 vcc, -1, v12\ns_cbranch_vccnz L_hop2')
    a(f'v_pk_add_f32 v[8:9], v[8:9], v[{FR}:{FR+1}]\nv_pk_add_f32 v[10:11], v[10:11], v[{FR+2}:{FR+3}]')
    a('v_add_f32_dpp v4, v8, v8 row_ror:8 row_mask:0xf bank_mask:0x3\nv_add_f32_dpp v5, v9, v9 row_ror:8 row_mask:0xf bank_mask:0x3')
    a('v_add_f32_dpp v4, v10, v10 row_ror:8 row_mask:0xf bank_mask:0xc\nv_add_f32_dpp v5, v11, v11 row_ror:8 row_mask:0xf bank_mask:0xc')
    a('v_add_f32_dpp v6, v4, v4 row_shl:4 row_mask:0xf bank_mask:0x5\nv_add_f32_dpp v6, v5, v5 row_shr:4 row_mask:0xf bank_mask:0xa')
    reduce_rows('add', 6, 7)
    a(f'v_add_f32 v6, v6, v{VXB}\nv_cvt_pk_bf16_f32 v6, v6, v6')
    a(f'buffer_store_short v6, v{VR4}, s[56:59], s78 offen')
    stamp(10)
    if spin is not None:
        a(f's_sub_u32 s96, s{80+spin}, s80')
        a('L_spin:\ns_memrealtime s[98:99]\ns_waitcnt lgkmcnt(0)\ns_sub_u32 s97, s98, s90\ns_cmp_lt_u32 s97, s96\ns_cbranch_scc1 L_spin')
    a(f's_cmp_lg_u32 s74, 0\ns_cbranch_scc1 {fin}')
    a(f'v_mov_b32 v4, {TAG}\ns_mov_b64 exec, 1\nbuffer_store_dword v4, off, s[52:55], 0 sc1')
    if stamps:
        a('s_mov_b64 exec, -1')
        a('L_stamp_out:')
        srd(52, 46, W_STAMP + 0x40000)
        a('s_getreg_b32 s95, hwreg(HW_REG_XCC_ID)')
        a(f's_mul_i32 s67, s2, 5\ns_add_u32 s67, s67, s3\ns_lshl_b32 s67, s67, 6\ns_add_u32 s67, s67, {W_STAMP}')
        for k in range(16):
            a(f'v_mov_b32 v{16+k}, s{80+k}')
        a('s_mov_b64 exec, 1')
        for k in range(4 if store_stamps else 0):
            a(f'buffer_store_dwordx4 v[{16+4*k}:{19+4*k}], off, s[52:55], s67 offset:{16*k}')
    a('L_end:')
    a('s_endpgm')
    body = a.finalize()
    head = header or ''
    head += f'; @launch grid=(256,1,1) block=(320,1,1) lds={LDS_BYTES}\n'
    head += f'.amdgcn_target "amdgcn-amd-amdhsa--gfx950"\n.text\n.globl {NAME}\n.p2align 8\n.type {NAME},@function\n'
    tail = f'''.section .rodata,"a"
.p2align 6
.amdhsa_kernel {NAME}
  .amdhsa_next_free_vgpr 256
  .amdhsa_next_free_sgpr 102
  .amdhsa_accum_offset 112
  .amdhsa_group_segment_fixed_size 0
  .amdhsa_kernarg_size 104
  .amdhsa_user_sgpr_count 2
  .amdhsa_user_sgpr_kernarg_segment_ptr 1
  .amdhsa_system_sgpr_workgroup_id_x 1
  .amdhsa_float_denorm_mode_32 3
.end_amdhsa_kernel
'''
    return head + body + tail


if __name__ == '__main__':
    ref = open('parallel_sum__gqa_block_cached__mixer_channel_mlp__decode.s.ref').read().split('\n')
    hdr = '\n'.join(l for l in ref if l.startswith(';') and '@launch' not in l and 'Override' not in l and 'grid=ceil' not in l) + '\n'
    kw = eval('dict(' + (sys.argv[2] if len(sys.argv) > 2 else '') + ')')
    out = sys.argv[1] if len(sys.argv) > 1 else 'parallel_sum__gqa_block_cached__mixer_channel_mlp__decode.s'
    open(out, 'w').write(gen(header=hdr, **kw))
    print('wrote', out)
```

```python
import struct, sys, os
sys.path.insert(0, os.path.dirname(os.path.abspath(__file__)))
from asmkit import Asm

NAME = "parallel_sum__gqa_block_cached__mixer_channel_mlp__decode_kernel"


def fb(x):
    return '0x%08x' % struct.unpack('<I', struct.pack('<f', x))[0]


LOG2E = 1.4426950408889634
RING = 0
FLG = 131072
F_LAND, F_CONS, F_X, F_Q, F_Y, F_M, F_L, F_O, MX, LS = 0, 16, 32, 48, 64, 80, 96, 112, 128, 160
QL = FLG + 1024
XN = QL + 1024
XS = 912
YN = XN + 8 * XS
STG = YN + 8 * XS
LDS_BYTES = STG + 14336
OPL = XN
RED = XN + 8192
RS = 1824
PT = RED + 8 * RS
SC = QL
F_P, FO, CQ = 192, 196, 256
assert PT + 4096 <= LDS_BYTES
W_Q = 0x1000
W_H = 0x21000
W_ST = 0x31000
W_OP = 0x40000
W_YP = 0xC0000
W_SC = 0x140000
W_CT = 0x180000
W_END = 0x182000
W_STAMP = 0x200000


def vr(a, n=1):
    return f'v{a}' if n == 1 else f'v[{a}:{a+n-1}]'


def ar(a, n=1):
    return f'a{a}' if n == 1 else f'a[{a}:{a+n-1}]'


def gen(D=20, kflags='nt', vflags='nt', wflags='', stamps=False, sleep=1, prefetch=True, header=None, spin=None, warm=True, NDRAIN=4, diag='', qsleep=0, D0=None, qat=18, qstep=3, pfsplit=True, lateclear=True, remap=3, LEAD=7, h2sleep=0, nowo=False, now2=False, swarm=True):
    S, NP, NCH = 16, 48, 32
    a = Asm()
    uid = [0]
    store_stamps = stamps
    if spin is not None:
        stamps = True

    def lab(p):
        uid[0] += 1
        return f'L_{p}_{uid[0]}'

    nstamp = [0]

    def stamp(k):
        if stamps:
            a(f's_memrealtime s[98:99]\ns_waitcnt lgkmcnt(0)\ns_mov_b32 s{80+k}, s98')

    def srd(d, p, size):
        a(f's_mov_b32 s{d}, s{p}\ns_mov_b32 s{d+1}, s{p+1}\ns_mov_b32 s{d+2}, {size}\ns_mov_b32 s{d+3}, 0x20000')

    a(f'{NAME}:')
    a('s_cmp_ge_u32 s2, 256\ns_cbranch_scc1 L_end')
    a('s_load_dwordx4 s[4:7], s[0:1], 8')
    if stamps:
        for k in range(16):
            a(f's_mov_b32 s{80+k}, 0')
        a('s_memrealtime s[98:99]')
    a('v_lshrrev_b32 v1, 6, v0\nv_and_b32 v0, 63, v0')
    a('v_readfirstlane_b32 s3, v1')
    a('s_and_b32 s33, s2, 7\ns_lshr_b32 s19, s2, 3\ns_and_b32 s21, s19, 7\ns_lshr_b32 s22, s19, 3')
    a(f's_mul_i32 s20, s22, {remap}\ns_sub_u32 s20, s33, s20\ns_and_b32 s20, s20, 7')
    a('s_cmp_eq_u32 s3, 5\ns_cbranch_scc1 L_helper\ns_cmp_lg_u32 s3, 0\ns_cbranch_scc1 L_consumer')

    a('s_setprio 3')
    a('v_lshrrev_b32 v10, 5, v0\nv_and_b32 v11, 31, v0\nv_lshlrev_b32 v12, 9, v10')
    for i in range(8):
        a(f'v_add_u32 v13, {2*i}, v10\nv_xor_b32 v13, v13, v11\nv_lshl_add_u32 v{2+i}, v13, 4, v12')
    a('s_lshl_b32 s17, s21, 3\ns_add_u32 s17, s17, s20\ns_lshl_b32 s17, s17, 2\ns_add_u32 s17, s17, s22\ns_lshl_b32 s17, s17, 19')
    a('s_mov_b32 s10, 0x80000\ns_mov_b32 s11, 0x20000\ns_mov_b32 s12, 0\ns_mov_b32 s14, 0')
    a('s_mov_b32 s18, 0x100000')
    a('s_waitcnt lgkmcnt(0)')
    if stamps:
        a('s_mov_b32 s80, s98')
    a('s_add_u32 s8, s4, s17\ns_addc_u32 s9, s5, 0\ns_and_b32 s17, s17, 0xffe00000\ns_add_u32 s6, s6, s17\ns_addc_u32 s7, s7, 0')
    ipub = (7 + D) % 8
    lag = (7 + D) // 8

    def ld_tile(u, T=None, kvflags=kflags):
        for i in range(8):
            if i % 4 == 0:
                a(f's_add_u32 m0, s14, {u*8192 + (i//4)*4096}')
                a(f's_add_u32 s13, s12, {u*8192 + (i//4)*4096}')
            if T is None:
                a(f's_waitcnt vmcnt({D-1})')
            elif 8 * T + i >= (D0 or D):
                a(f's_waitcnt vmcnt({(D0 or D)-1})')
            if i == ipub:
                if T is None:
                    a(f's_lshl2_add_u32 s17, s15, {u - lag + 1}\nv_mov_b32 v15, s17\nds_write_b32 v14, v15 offset:{F_LAND}')
                elif T - lag + 1 > 0 and not D0:
                    a(f'v_mov_b32 v15, {T - lag + 1}\nds_write_b32 v14, v15 offset:{F_LAND}')
            a(f'buffer_load_dwordx4 v{2+i}, s[8:11], s13 offen offset:{(i%4)*1024} {kvflags} lds')

    ld_tile(0, 0)
    a(f'v_mov_b32 v16, 0\nv_mov_b32 v17, 0\nv_mov_b32 v18, 0\nv_mov_b32 v19, 0')
    a(f'v_mov_b32 v14, {FLG}\nv_lshl_add_u32 v13, v0, 4, v14\nds_write_b128 v13, v[16:19]')
    ld_tile(1, 1)
    a('s_waitcnt lgkmcnt(0)\ns_barrier')
    ld_tile(2, 2)
    ld_tile(3, 3)
    a('s_mov_b32 s15, 1')

    def ld_free(u):
        ok = lab('ldok')
        rt = lab('ldrt')
        a('s_waitcnt lgkmcnt(0)')
        a(f'v_readfirstlane_b32 s17, v{16+u}\ns_cmp_ge_i32 s17, s16\ns_cbranch_scc1 {ok}')
        a(f'{rt}:')
        a(f'ds_read_b128 v[16:19], v14 offset:{F_CONS}\ns_sub_u32 s18, s18, 1\ns_cbranch_scc1 L_end\ns_waitcnt lgkmcnt(0)')
        a(f'v_readfirstlane_b32 s17, v{16+u}\ns_cmp_ge_i32 s17, s16\ns_cbranch_scc0 {rt}')
        a(f'{ok}:')
        a(f'ds_read_b128 v[16:19], v14 offset:{F_CONS}')

    def ld_stamps():
        if stamps:
            a('s_memrealtime s[98:99]\ns_waitcnt lgkmcnt(0)')
            for k, it in enumerate((1, 2, 4, 6, 8, 12, 16, 24, 28)):
                a(f's_cmp_eq_u32 s15, {it}\ns_cselect_b32 s{82+k}, s98, s{82+k}')

    for ph in range(2):
        if ph == 1:
            a('s_mov_b32 s8, s6\ns_mov_b32 s9, s7\ns_mov_b32 s10, 0x200000\ns_lshl_b32 s12, s22, 19\ns_sub_u32 s12, s12, 32768')
            for i in range(8):
                a(f'v_lshlrev_b32 v{2+i}, 4, v0')
        a(f'L_ld_loop{ph}:')
        a('s_add_u32 s12, s12, 32768\ns_add_u32 s14, s14, 32768\ns_and_b32 s14, s14, 0x1ffff\ns_sub_u32 s16, s15, 3')
        ld_stamps()
        for u in range(4):
            ld_free(u)
            if ph == 1 and u == 3:
                a(f'ds_read_b32 v20, v14 offset:{CQ}')
            ld_tile(u, None, vflags if ph else kflags)
        a(f's_add_u32 s15, s15, 1\ns_cmp_lt_u32 s15, {16 if ph == 0 else 16 + NP//4}\ns_cbranch_scc1 L_ld_loop{ph}')
    a(f'v_add_u32 v21, {CQ}, v14')
    a('L_ld_pool:')
    a('s_add_u32 s14, s14, 32768\ns_and_b32 s14, s14, 0x1ffff\ns_sub_u32 s16, s15, 3')
    ld_stamps()
    for h in range(2):
        ok = lab('cqok')
        rt = lab('cqrt')
        a('s_waitcnt lgkmcnt(0)')
        a(f'v_readfirstlane_b32 s24, v20\ns_cmp_lg_u32 s24, 0\ns_cbranch_scc1 {ok}')
        a(f'{rt}:')
        if stamps:
            a('s_add_u32 s94, s94, 1')
        a(f'ds_read_b32 v20, v21 offset:{4*h}\ns_sub_u32 s18, s18, 1\ns_cbranch_scc1 L_end\ns_waitcnt lgkmcnt(0)')
        a(f'v_readfirstlane_b32 s24, v20\ns_cmp_lg_u32 s24, 0\ns_cbranch_scc0 {rt}')
        a(f'{ok}:')
        a(f's_lshl2_add_u32 s25, s15, {2*h}\ns_cmp_gt_u32 s24, {NCH}\ns_cbranch_scc1 L_ld_fin')
        a(f's_sub_u32 s24, s24, 1\ns_and_b32 s12, s24, 3\ns_lshl_b32 s12, s12, 19\ns_lshr_b32 s24, s24, 2\ns_lshl_b32 s24, s24, 14')
        if 'ownq' in diag:
            a(f's_lshl_b32 s12, s22, 19\ns_lshl_b32 s24, s25, 13\ns_and_b32 s24, s24, 0x1ffff')
        a(f's_add_u32 s12, s12, s24\ns_add_u32 s12, s12, {NP*8192 - 2*h*8192}')
        for u in (2 * h, 2 * h + 1):
            ld_free(u)
            if u & 1:
                a(f'ds_read_b32 v20, v21 offset:{4*h+4}')
            ld_tile(u, None, vflags)
    a('v_add_u32 v21, 8, v21\ns_add_u32 s15, s15, 1\ns_branch L_ld_pool')
    a('L_ld_fin:')
    for j in range(lag - 1, -1, -1):
        a(f's_sub_u32 s17, s25, {j}\nv_mov_b32 v15, s17\ns_waitcnt vmcnt({8*j})\nds_write_b32 v14, v15 offset:{F_LAND}')
    if stamps:
        a('s_mov_b32 s93, s25')
    if stamps:
        stamp(1)
        a('s_load_dwordx2 s[46:47], s[0:1], 96\ns_waitcnt lgkmcnt(0)')
        a('s_branch L_stamp_out')
    a('s_endpgm')

    P = 16
    FR = 48
    SEL = 80
    AT = 88
    DT = 96
    OA = 100
    KA = OA
    VA = 108
    VFL, VM, VL, VW, VXB = 1, 110, 111, 2, 3
    T0 = 4
    YA = 112
    TAG = 's64'

    def timeout():
        a('s_sub_u32 s66, s66, 1\ns_cbranch_scc1 L_end')

    def wait_flags(off, n, slp=0):
        l = lab('wf')
        ok = lab('wfok')
        a(f'{l}:')
        if n == 1:
            a(f'ds_read_b32 v{T0}, v{VFL} offset:{off}\ns_waitcnt lgkmcnt(0)')
        else:
            a(f'ds_read_b128 v[{T0}:{T0+3}], v{VFL} offset:{off}\ns_waitcnt lgkmcnt(0)')
            a(f'v_min3_u32 v{T0}, v{T0}, v{T0+1}, v{T0+2}')
            if n == 4:
                a(f'v_min_u32 v{T0}, v{T0}, v{T0+3}')
        a(f'v_readfirstlane_b32 s67, v{T0}\ns_cmp_lg_u32 s67, 0\ns_cbranch_scc1 {ok}')
        timeout()
        if slp:
            a(f's_sleep {slp}')
        a(f's_branch {l}\n{ok}:')

    def set_flag(off):
        a(f'ds_write_b32 v15, v14 offset:{off}')

    def wait_tile(t_const, slp):
        l = lab('wt')
        ok = lab('wtok')
        a(f's_add_u32 s67, s23, {t_const}\ns_cmp_gt_i32 s65, s67\ns_cbranch_scc1 {ok}')
        a(f'{l}:')
        a(f'ds_read_b32 v{T0}, v{VFL} offset:{F_LAND}\ns_waitcnt lgkmcnt(0)')
        a(f'v_readfirstlane_b32 s65, v{T0}\ns_cmp_gt_i32 s65, s67\ns_cbranch_scc1 {ok}')
        timeout()
        if slp:
            a(f's_sleep {slp}')
        a(f's_branch {l}\n{ok}:')

    def reduce32(op, t, u):
        for r in (8, 4, 2, 1):
            a(f'v_{op}_f32_dpp v{t}, v{t}, v{t} row_ror:{r} row_mask:0xf bank_mask:0xf')
        a(f'v_mov_b32 v{u}, v{t}\nv_permlane16_swap_b32 v{t}, v{u}\nv_{op}_f32 v{t}, v{t}, v{u}')

    def reduce_rows(op, t, u):
        a(f'v_mov_b32 v{u}, v{t}\nv_permlane16_swap_b32 v{t}, v{u}\nv_{op}_f32 v{t}, v{t}, v{u}')
        a(f'v_mov_b32 v{u}, v{t}\nv_permlane32_swap_b32 v{t}, v{u}\nv_{op}_f32 v{t}, v{t}, v{u}')

    def rnd(r):
        a(f'v_cvt_pk_bf16_f32 v{r}, v{r}, v{r}\nv_lshlrev_b32 v{r}, 16, v{r}')

    def layernorm(raw, f, vmask):
        t = T0
        for i in range(8):
            a(f'v_lshlrev_b32 v{f+2*i}, 16, v{raw+i}\nv_and_b32 v{f+2*i+1}, 0xffff0000, v{raw+i}')
        pk = lambda r: f'v[{r}:{r+1}]'
        a(f'v_pk_add_f32 {pk(t)}, {pk(f)}, {pk(f+2)}\nv_pk_add_f32 {pk(t+2)}, {pk(f+4)}, {pk(f+6)}')
        a(f'v_pk_add_f32 {pk(t)}, {pk(t)}, {pk(f+8)}\nv_pk_add_f32 {pk(t+2)}, {pk(t+2)}, {pk(f+10)}')
        a(f'v_pk_add_f32 {pk(t)}, {pk(t)}, {pk(f+12)}\nv_pk_add_f32 {pk(t+2)}, {pk(t+2)}, {pk(f+14)}')
        a(f'v_pk_add_f32 {pk(t)}, {pk(t)}, {pk(t+2)}\nv_add_f32 v{t}, v{t}, v{t+1}\nv_mul_f32 v{t}, v{t}, v{vmask}')
        reduce32('add', t, t + 1)
        a(f'v_mul_f32 v{t+2}, {fb(1/448)}, v{t}')
        neg = 'op_sel_hi:[1,0] neg_lo:[0,1] neg_hi:[0,1]'
        for i in range(8):
            d = t + 4 + 2 * (i & 1)
            a(f'v_pk_add_f32 {pk(d)}, {pk(f+2*i)}, {pk(t+2)} {neg}')
            if i == 0:
                a(f'v_pk_mul_f32 {pk(t)}, {pk(d)}, {pk(d)}')
            else:
                a(f'v_pk_fma_f32 {pk(t)}, {pk(d)}, {pk(d)}, {pk(t)}')
        a(f'v_add_f32 v{t}, v{t}, v{t+1}\nv_mul_f32 v{t}, v{t}, v{vmask}')
        rnd(t + 2)
        reduce32('add', t, t + 1)
        a(f'v_mul_f32 v{t}, {fb(1/448)}, v{t}')
        rnd(t)
        a(f'v_add_f32 v{t}, {fb(1e-5)}, v{t}')
        rnd(t)
        a(f'v_sqrt_f32 v{t}, v{t}')
        for i in range(8):
            a(f'v_pk_add_f32 {pk(f+2*i)}, {pk(f+2*i)}, {pk(t+2)} {neg}')
        rnd(t)
        a(f'v_rcp_f32 v{t}, v{t}')
        for i in range(8):
            a(f'v_cvt_pk_bf16_f32 v{raw+i}, v{f+2*i}, v{f+2*i+1}')
        for i in range(8):
            a(f'v_lshlrev_b32 v{f+2*i}, 16, v{raw+i}\nv_and_b32 v{f+2*i+1}, 0xffff0000, v{raw+i}')
        for i in range(8):
            a(f'v_pk_mul_f32 {pk(f+2*i)}, {pk(f+2*i)}, {pk(t)} op_sel_hi:[1,0]')
        for i in range(8):
            a(f'v_cvt_pk_bf16_f32 v{raw+i}, v{f+2*i}, v{f+2*i+1}')

    def slab_mfma(act, abase):
        a(f'v_lshrrev_b32 v{T0}, 4, v0\nv_and_b32 v{T0+1}, 15, v0')
        a(f'v_lshlrev_b32 v{T0+2}, 8, v{T0}\nv_lshl_add_u32 v{T0+2}, v{T0+1}, 3, v{T0+2}\nv_add_u32 v{T0+2}, {STG}, v{T0+2}')
        a(f'v_and_b32 v{T0+1}, 7, v0\nv_mul_u32_u24 v{T0+1}, {XS}, v{T0+1}\nv_lshl_add_u32 v{T0+1}, v{T0}, 4, v{T0+1}\nv_add_u32 v{T0+1}, {act}, v{T0+1}')

        def rd(ks):
            a(f'ds_read_b64_tr_b16 {ar(abase+4*ks,2)}, v{T0+2} offset:{ks*1024}')
            a(f'ds_read_b64_tr_b16 {ar(abase+4*ks+2,2)}, v{T0+2} offset:{ks*1024+128}')
            a(f'ds_read_b128 {ar(abase+56+4*ks,4)}, v{T0+1} offset:{ks*64}')
        for ks in range(4):
            rd(ks)
        for ks in range(14):
            if ks + 4 < 14:
                rd(ks + 4)
            left = min(13 - ks, 4)
            a(f's_waitcnt lgkmcnt({3*left})')
            c = '0' if ks == 0 else vr(DT, 4)
            a(f'v_mfma_f32_16x16x32_bf16 {vr(DT,4)}, {ar(abase+4*ks,4)}, {ar(abase+56+4*ks,4)}, {c}')

    def build_a(dst, src, e):
        for i in range(4):
            a(f'v_perm_b32 v{dst+i}, v{src}, v{src}, v{SEL+4*e+i}')

    XR = P
    XF = P + 8
    VMK = P + 24
    VXO = P + 25

    def common_ids():
        a('s_lshl_b32 s73, s21, 3\ns_add_u32 s73, s73, s20\ns_lshl2_add_u32 s74, s73, s22\ns_lshl2_add_u32 s79, s20, s22')
        a('s_mov_b32 s65, 0\ns_mov_b32 s66, 0x100000')
        a(f'v_mov_b32 v{VFL}, {FLG}\nv_mov_b32 v14, 1')

    def publish_slab(shift, sbase, wbase):
        a(f'v_lshrrev_b32 v8, 4, v0\nv_and_b32 v9, 15, v0\nv_lshlrev_b32 v10, {shift}, v9\nv_lshl_add_u32 v10, v8, 4, v10')
        a(f'v_cmp_gt_u32 vcc, 8, v9\nv_mov_b32 v9, 0x1000000\nv_cndmask_b32 v10, v9, v10, vcc')
        a(f's_lshl_b32 s67, {sbase}, 1\ns_add_u32 s67, s67, {wbase}')
        a(f'v_mov_b32 v5, {TAG}\nv_mov_b32 v7, {TAG}')
        a(f'v_cvt_pk_bf16_f32 v4, v{DT}, v{DT+1}\nv_cvt_pk_bf16_f32 v6, v{DT+2}, v{DT+3}')
        a('buffer_store_dwordx4 v[4:7], v10, s[52:55], s67 offen sc1')

    fin = 'L_stamp_out' if stamps else 'L_end'
    a('L_helper:')
    if prefetch and swarm:
        pass
    elif prefetch and pfsplit:
        a('s_getpc_b64 s[26:27]\nv_and_b32 v4, 7, v0\ns_lshl_b32 s67, s19, 3\nv_add_u32 v4, s67, v4\nv_lshlrev_b32 v4, 7, v4')
        a(f'v_min_u32 v5, L_end-L_helper-64, v4\nglobal_load_dword v{P}, v5, s[26:27]')
    elif prefetch:
        a('s_getpc_b64 s[26:27]\nv_lshlrev_b32 v4, 7, v0')
        for j in range(3):
            a(f'v_min_u32 v5, L_end-L_helper-64, v4\nglobal_load_dword v{P+j}, v5, s[26:27]\nv_add_u32 v4, 0x2000, v4')
    a('s_load_dwordx4 s[28:31], s[0:1], 24\ns_load_dwordx2 s[46:47], s[0:1], 96\ns_load_dwordx2 s[24:25], s[0:1], 0')
    a('s_load_dwordx8 s[36:43], s[0:1], 48\ns_load_dwordx2 s[44:45], s[0:1], 80')
    common_ids()
    a('v_lshrrev_b32 v10, 1, v0\nv_and_b32 v11, 1, v0\nv_lshlrev_b32 v11, 4, v11\nv_lshl_add_u32 v12, v10, 13, v11')
    a('s_lshl_b32 s68, s33, 5\ns_add_u32 s68, s68, s19\ns_lshl_b32 s68, s68, 5')
    a('s_waitcnt lgkmcnt(0)')
    if stamps:
        a('s_mov_b32 s80, s98')
    a('s_load_dword s64, s[46:47], 0')
    srd(56, 28, 448 * 8192)
    for j in range(0 if 'noslab' in diag else 14):
        a(f's_mov_b32 m0, {STG + j*1024}\ns_add_u32 s67, s68, {j << 18}')
        a(f'buffer_load_dwordx4 v12, s[56:59], s67 offen {wflags} lds')
    srd(52, 46, W_STAMP + 0x40000 if stamps else W_END)
    def clears():
        a('v_lshlrev_b32 v10, 4, v0\nv_mov_b32 v4, -1\nv_mov_b32 v5, -1\nv_mov_b32 v6, -1\nv_mov_b32 v7, -1')
        a(f's_lshl_b32 s75, s74, 11\ns_add_u32 s67, s75, {W_OP}\ns_add_u32 s75, s75, {W_YP}')
        if 'noclear' not in diag:
            a('buffer_store_dwordx4 v[4:7], v10, s[52:55], s67 offen sc1\nbuffer_store_dwordx4 v[4:7], v10, s[52:55], s67 offen offset:1024 sc1')
            a('buffer_store_dwordx4 v[4:7], v10, s[52:55], s75 offen sc1\nbuffer_store_dwordx4 v[4:7], v10, s[52:55], s75 offen offset:1024 sc1')

    def warms():
        if warm:
            a('s_lshl_b32 s67, s74, 19\ns_add_u32 s6, s6, s67\ns_addc_u32 s7, s7, 0\nv_mov_b32 v13, 0')
            a('s_mul_i32 s67, s79, 128*896\ns_add_u32 s30, s30, s67\ns_addc_u32 s31, s31, 0')
            a('s_mul_i32 s67, s79, 56*896\ns_add_u32 s40, s40, s67\ns_addc_u32 s41, s41, 0')
            if swarm:
                for j, p in enumerate((6, 30, 40, 44, 36, 38, 42)):
                    a(f's_load_dword s{8+j}, s[{p}:{p+1}], 0')
                return 0
            for j, p in enumerate((6, 30, 40, 44)):
                a(f'global_load_dword v{P+4+j}, v13, s[{p}:{p+1}]')
            return 4
        return 0
    if prefetch and swarm:
        a('s_getpc_b64 s[26:27]\nL_pf:\ns_lshl_b32 s67, s19, 10\ns_min_u32 s67, s67, L_end-L_pf-1024\ns_add_u32 s26, s26, s67\ns_addc_u32 s27, s27, 0')
        for j in range(8):
            a(f's_load_dword s{8+j}, s[26:27], {j*128}')
    nwarm = 0
    if not lateclear:
        clears()
    a('s_barrier')
    if not lateclear and not swarm:
        nwarm = warms()
    a(f's_waitcnt vmcnt({nwarm}) lgkmcnt(0)')
    a('s_add_u32 s64, s64, 1')
    stamp(1)
    wait_flags(F_X, 4)
    stamp(2)
    slab_mfma(XN, 0)
    if 'nopub' not in diag:
        publish_slab(14, 's68', W_Q)
    stamp(3)
    a(f's_cmp_ge_u32 s19, {0 if "noh" in diag else 14}\ns_cbranch_scc1 L_noh')
    srd(56, 36, 448 * 3584)
    a('v_lshrrev_b32 v10, 1, v0\nv_and_b32 v11, 1, v0\nv_mul_u32_u24 v10, 3584, v10\nv_lshl_add_u32 v10, v11, 4, v10')
    a('s_mul_i32 s77, s33, 14\ns_add_u32 s77, s77, s19\ns_lshl_b32 s77, s77, 5')
    for j in range(14):
        a(f's_mov_b32 m0, {STG + j*1024}\ns_add_u32 s67, s77, {j*32*3584}')
        a(f'buffer_load_dwordx4 v10, s[56:59], s67 offen {wflags} lds')
    srd(60, 38, 3584)
    a(f'v_lshrrev_b32 v10, 4, v0\nv_lshlrev_b32 v10, 3, v10')
    a(f'buffer_load_dwordx2 v[{AT}:{AT+1}], v10, s[60:63], s77 offen')
    wait_flags(F_Y, 4, sleep)
    a('s_waitcnt vmcnt(0)')
    slab_mfma(YN, 0)
    a(f'v_lshlrev_b32 v8, 16, v{AT}\nv_and_b32 v9, 0xffff0000, v{AT}\nv_lshlrev_b32 v10, 16, v{AT+1}\nv_and_b32 v11, 0xffff0000, v{AT+1}')
    c0 = -2 * 0.7978845608028654 * LOG2E
    a(f's_mov_b32 s75, {fb(c0 * 0.044715)}\nv_mov_b32 v12, {fb(c0)}')
    for r in range(4):
        rnd(DT + r)
    for r in range(4):
        a(f'v_add_f32 v{DT+r}, v{DT+r}, v{8+r}')
    for r in range(4):
        rnd(DT + r)
    for r in range(4):
        a(f'v_mul_f32 v{8+r}, v{DT+r}, v{DT+r}\nv_fma_f32 v{8+r}, v{8+r}, s75, v12\nv_mul_f32 v{8+r}, v{8+r}, v{DT+r}')
    for r in range(4):
        a(f'v_exp_f32 v{8+r}, v{8+r}')
    for r in range(4):
        a(f'v_add_f32 v{8+r}, 1.0, v{8+r}')
    for r in range(4):
        a(f'v_rcp_f32 v{8+r}, v{8+r}')
    for r in range(4):
        a(f'v_mul_f32 v{DT+r}, v{DT+r}, v{8+r}')
    publish_slab(13, 's77', W_H)
    a('L_noh:')
    if swarm:
        warms()
    a(f's_lshl_b32 s67, s21, 14\ns_lshl_b32 s75, s20, 11\ns_add_u32 s76, s67, s75\ns_add_u32 s76, s76, {W_Q}')
    a(f'v_lshlrev_b32 v12, 5, v0\ns_mov_b32 s23, {qat - qstep}')
    a('L_qpoll:')
    if qat:
        a(f's_add_u32 s23, s23, {qstep}\ns_min_u32 s23, s23, {31 - lag}')
        wait_tile(0, sleep)
    if 'noqld' not in diag:
        a(f'buffer_load_dwordx4 v[16:19], v12, s[52:55], s76 offen sc1\nbuffer_load_dwordx4 v[8:11], v12, s[52:55], s76 offen offset:16 sc1')
    timeout()
    a('s_waitcnt vmcnt(0)')
    a(f'v_xor_b32 v17, {TAG}, v17\nv_xor_b32 v19, {TAG}, v19\nv_xor_b32 v9, {TAG}, v9\nv_xor_b32 v11, {TAG}, v11')
    a('v_or3_b32 v5, v17, v19, v9\nv_or_b32 v5, v5, v11\nv_cmp_ne_u32 vcc, 0, v5')
    if 'nopoll' not in diag:
        if qsleep:
            a(f's_cbranch_vccz L_qok\ns_sleep {qsleep}\ns_branch L_qpoll\nL_qok:')
        else:
            a('s_cbranch_vccnz L_qpoll')
    a(f'v_mov_b32 v4, v16\nv_mov_b32 v5, v18\nv_mov_b32 v6, v8\nv_mov_b32 v7, v10\nv_lshlrev_b32 v12, 4, v0')
    a(f'v_add_u32 v13, {QL}, v12\nds_write_b128 v13, v[4:7]')
    a(f'ds_write_b32 v{VFL}, v14 offset:{F_Q}')
    stamp(4)
    if lateclear:
        clears()
        if not swarm:
            warms()
    a(f's_cmp_lg_u32 s22, 0\ns_cbranch_scc1 L_noct\nv_mov_b32 v12, 0\ns_lshl_b32 s67, s73, 7\ns_add_u32 s67, s67, {W_CT}')
    a('s_mov_b64 exec, 1\nbuffer_store_dword v12, off, s[52:55], s67 sc1\ns_mov_b64 exec, -1\nL_noct:')
    stamp(5)
    VR3, VR4 = P + 16, P + 17
    srd(48, 24, 7168)
    srd(56, 42, 896)
    a('v_and_b32 v11, 3, v0\nv_bfe_u32 v10, v0, 2, 2\nv_lshl_add_u32 v10, v11, 2, v10\nv_lshlrev_b32 v10, 1, v10')
    a('s_lshl_b32 s75, s79, 5\ns_mul_i32 s78, s21, 896\ns_add_u32 s78, s78, s75')
    a('buffer_load_ushort v8, v10, s[48:51], s78 offen\nbuffer_load_ushort v9, v10, s[56:59], s75 offen')
    a(f'v_mov_b32 v13, 0x1000000\nv_cmp_gt_u32 vcc, 16, v0\nv_cndmask_b32 v{VR4}, v13, v10, vcc')
    a(f'v_lshrrev_b32 v10, 2, v0\nv_lshlrev_b32 v10, 11, v10\nv_lshl_add_u32 v{VR3}, v11, 4, v10')
    a(f's_lshl_b32 s77, s21, 16\ns_lshl_b32 s67, s79, 6\ns_add_u32 s77, s77, s67\ns_add_u32 s77, s77, {W_YP}\ns_add_u32 s72, s77, 0x8000')
    a(f's_waitcnt vmcnt(0)\nv_lshlrev_b32 v8, 16, v8\nv_lshlrev_b32 v9, 16, v9\nv_add_f32 v{VXB}, v8, v9')
    wait_flags(F_L, 4, 8)
    a(f'v_lshlrev_b32 v12, 4, v0\nv_add_u32 v11, {SC}, v12\nds_read_b128 v[20:23], v11')
    a(f'v_bfe_u32 v10, v0, 3, 1\nv_lshl_add_u32 v10, v10, 2, v{VFL}')
    a(f'ds_read2_b32 v[4:5], v10 offset0:{LS//4} offset1:{LS//4+2}\nds_read2_b32 v[6:7], v10 offset0:{LS//4+4} offset1:{LS//4+6}')
    a(f'ds_read2_b32 v[16:17], v10 offset0:{MX//4} offset1:{MX//4+2}\nds_read2_b32 v[18:19], v10 offset0:{MX//4+4} offset1:{MX//4+6}')
    a(f'v_and_b32 v8, 0x37, v0\nv_cmp_eq_u32 vcc, 0, v8\nv_lshlrev_b32 v8, 1, v0\nv_cndmask_b32 v8, v13, v8, vcc')
    a(f's_lshl_b32 s75, s74, 10\ns_add_u32 s75, s75, {W_SC}')
    a(f's_waitcnt lgkmcnt(0)\nbuffer_store_dwordx4 v[20:23], v12, s[52:55], s75 offen sc1')
    a(f's_lshl_b32 s67, s74, 7\ns_add_u32 s67, s67, {W_ST}')
    a(f'v_add_f32 v4, v4, v5\nv_add_f32 v6, v6, v7\nv_add_f32 v6, v4, v6')
    a(f'v_max3_f32 v4, v16, v17, v18\nv_max_f32 v4, v4, v19\nv_mov_b32 v5, {TAG}\nv_mov_b32 v7, {TAG}')
    a('s_waitcnt vmcnt(0)\nbuffer_store_dwordx4 v[4:7], v8, s[52:55], s67 offen sc1')
    stamp(6)
    a(f's_lshl_b32 s67, s73, 9\ns_add_u32 s67, s67, {W_ST}\ns_add_u32 s26, s46, s67\ns_addc_u32 s27, s47, 0')
    a('L_stp:')
    for q in range(4):
        a(f's_load_dwordx8 s[{(4,12,36,56)[q]}:{(4,12,36,56)[q]+7}], s[26:27], {q*128} glc')
    timeout()
    a('s_waitcnt lgkmcnt(0)')
    a(f's_xor_b32 s67, s5, {TAG}')
    for q in range(4):
        for o in (1, 3, 5, 7):
            if (q, o) != (0, 1):
                a(f's_xor_b32 s75, s{(4,12,36,56)[q]+o}, {TAG}\ns_or_b32 s67, s67, s75')
    a('s_cmp_eq_u32 s67, 0\ns_cbranch_scc1 L_stp_ok\ns_sleep 8\ns_branch L_stp\nL_stp_ok:')
    a(f's_lshl_b32 s67, s73, 12\ns_add_u32 s67, s67, {W_SC}')
    for q in range(4):
        a(f'buffer_load_dwordx4 {vr(FR+4*q,4)}, v12, s[52:55], s67 offen offset:{q*1024} sc1')
    a(f's_mov_b32 s75, {fb(LOG2E/16)}')
    for u in range(2):
        for q in range(4):
            a(f'v_mov_b32 v{4+q}, s{(4,12,36,56)[q]+4*u}\nv_mov_b32 v{8+q}, s{(4,12,36,56)[q]+4*u+2}')
        a(f'v_max3_f32 v{16+u}, v4, v5, v6\nv_max_f32 v{16+u}, v{16+u}, v7\nv_mul_f32 v{22+u}, {fb(-LOG2E/16)}, v{16+u}')
        for q in range(4):
            a(f'v_fma_f32 v{4+q}, v{4+q}, s75, v{22+u}')
        for q in range(4):
            a(f'v_exp_f32 v{4+q}, v{4+q}')
        a(f'v_mul_f32 v8, v8, v4\nv_fmac_f32 v8, v9, v5\nv_fmac_f32 v8, v10, v6\nv_fmac_f32 v8, v11, v7\nv_rcp_f32 v{18+u}, v8')
        a(f'v_mov_b32 v{20+u}, v4')
        for q in range(1, 4):
            a(f's_cmp_eq_u32 s22, {q}\ns_cselect_b64 vcc, -1, 0\nv_cndmask_b32 v{20+u}, v{20+u}, v{4+q}, vcc')
    a(f's_bitcmp1_b32 s22, 1\ns_cselect_b64 vcc, -1, 0\nv_cndmask_b32 v18, v18, v19, vcc')
    a(f'ds_write_b32 v{VFL}, v20 offset:{FO}\nds_write_b32 v{VFL}, v21 offset:{FO+4}\nds_write_b32 v{VFL}, v18 offset:{FO+8}')
    a(f'v_add_u32 v11, {PT}, v12')
    for q in range(4):
        a(f's_waitcnt vmcnt({3-q})')
        for j in range(4):
            r = FR + 4 * q + j
            a(f'v_lshlrev_b32 v{4+2*(j&1)}, 16, v{r}\nv_and_b32 v{5+2*(j&1)}, 0xffff0000, v{r}')
            a(f'v_fma_f32 v{4+2*(j&1)}, v{4+2*(j&1)}, s75, v{22+(j>>1)}\nv_fma_f32 v{5+2*(j&1)}, v{5+2*(j&1)}, s75, v{22+(j>>1)}')
            a(f'v_exp_f32 v{4+2*(j&1)}, v{4+2*(j&1)}\nv_exp_f32 v{5+2*(j&1)}, v{5+2*(j&1)}')
            a(f'v_cvt_pk_bf16_f32 v{r}, v{4+2*(j&1)}, v{5+2*(j&1)}')
        a(f'ds_write_b128 v11, {vr(FR+4*q,4)} offset:{q*1024}')
    a(f'ds_write_b32 v{VFL}, v14 offset:{F_P}')
    stamp(7)
    srd(56, 44, 7168)
    a(f's_lshl_b32 s67, s73, 7\ns_add_u32 s67, s67, {W_CT}\ns_add_u32 s26, s46, s67\ns_addc_u32 s27, s47, 0')
    a(f's_mov_b32 s23, {64 + NP - LEAD - 1}\nv_add_u32 v11, {CQ}, v{VFL}')
    a('L_claim:')
    wait_tile(0, sleep)
    if stamps:
        a('s_memrealtime s[96:97]\ns_waitcnt lgkmcnt(0)')
    a('s_mov_b32 s24, 1\ns_atomic_add s24, s[26:27], 0 glc\ns_waitcnt lgkmcnt(0)')
    if stamps:
        a('s_memrealtime s[98:99]\ns_waitcnt lgkmcnt(0)\ns_sub_u32 s96, s98, s96\ns_max_u32 s92, s92, s96\ns_add_u32 s93, s93, s96\ns_add_u32 s94, s94, 1')
    a(f's_add_u32 s24, s24, 1\nv_mov_b32 v4, s24\nds_write_b32 v11, v4\ns_cmp_gt_u32 s24, {NCH}\ns_cbranch_scc1 L_claim_end')
    a('v_add_u32 v11, 4, v11\ns_add_u32 s23, s23, 2\ns_branch L_claim')
    a('L_claim_end:')
    a('ds_write_b32 v11, v4 offset:4')
    stamp(8)
    a(f's_cmp_ge_u32 s79, 28\ns_cbranch_scc1 {fin}')
    a(f's_lshl_b32 s67, s21, 12\ns_add_u32 s67, s67, {W_ST}\nv_and_b32 v11, 31, v0\nv_lshlrev_b32 v11, 7, v11')
    a('L_fcp:')
    a('buffer_load_dword v4, v11, s[52:55], s67 offen offset:4 sc1')
    timeout()
    a(f's_waitcnt vmcnt(0)\nv_cmp_ne_u32 vcc, {TAG}, v4\ns_cbranch_vccz L_fcp_ok\ns_sleep 16\ns_branch L_fcp')
    a('L_fcp_ok:')
    a('s_barrier')
    a('L_hop2:')
    a(f'buffer_load_dwordx4 v[8:11], v{VR3}, s[52:55], s77 offen sc1\nbuffer_load_dwordx4 {vr(FR,4)}, v{VR3}, s[52:55], s72 offen sc1')
    timeout()
    a(f's_waitcnt vmcnt(0)\nv_max3_u32 v12, v8, v9, v10\nv_max3_u32 v13, v11, v{FR}, v{FR+1}\nv_max3_u32 v12, v12, v{FR+2}, v{FR+3}')
    a('v_max_u32 v12, v12, v13\nv_cmp_eq_u32 vcc, -1, v12')
    if h2sleep:
        a(f's_cbranch_vccz L_hop2ok\ns_sleep {h2sleep}\ns_branch L_hop2\nL_hop2ok:')
    else:
        a('s_cbranch_vccnz L_hop2')
    a(f'v_pk_add_f32 v[8:9], v[8:9], v[{FR}:{FR+1}]\nv_pk_add_f32 v[10:11], v[10:11], v[{FR+2}:{FR+3}]')
    a('v_add_f32_dpp v4, v8, v8 row_ror:8 row_mask:0xf bank_mask:0x3\nv_add_f32_dpp v5, v9, v9 row_ror:8 row_mask:0xf bank_mask:0x3')
    a('v_add_f32_dpp v4, v10, v10 row_ror:8 row_mask:0xf bank_mask:0xc\nv_add_f32_dpp v5, v11, v11 row_ror:8 row_mask:0xf bank_mask:0xc')
    a('v_add_f32_dpp v6, v4, v4 row_shl:4 row_mask:0xf bank_mask:0x5\nv_add_f32_dpp v6, v5, v5 row_shr:4 row_mask:0xf bank_mask:0xa')
    reduce_rows('add', 6, 7)
    a(f'v_add_f32 v6, v6, v{VXB}\nv_cvt_pk_bf16_f32 v6, v6, v6')
    a(f'buffer_store_short v6, v{VR4}, s[56:59], s78 offen')
    stamp(10)
    if spin is not None:
        a(f's_sub_u32 s96, s{80+spin}, s80')
        a('L_spin:\ns_memrealtime s[98:99]\ns_waitcnt lgkmcnt(0)\ns_sub_u32 s97, s98, s90\ns_cmp_lt_u32 s97, s96\ns_cbranch_scc1 L_spin')
    a(f's_cmp_lg_u32 s74, 0\ns_cbranch_scc1 {fin}')
    a(f'v_mov_b32 v4, {TAG}\ns_mov_b64 exec, 1\nbuffer_store_dword v4, off, s[52:55], 0 sc1')
    a(f's_mov_b64 exec, -1\ns_branch {fin}')

    a('L_consumer:')
    a('s_load_dwordx2 s[24:25], s[0:1], 0\ns_load_dwordx2 s[46:47], s[0:1], 96')
    a('s_load_dwordx2 s[30:31], s[0:1], 32\ns_load_dwordx2 s[40:41], s[0:1], 64')
    a('s_sub_u32 s23, s3, 1')
    a(f'v_lshrrev_b32 v6, 5, v0\nv_and_b32 v7, 31, v0\ns_lshl_b32 s67, s23, 1\nv_add_u32 v6, s67, v6')
    a(f'v_mul_u32_u24 v8, 896, v6\nv_lshl_add_u32 v8, v7, 5, v8\nv_cmp_gt_u32 vcc, 28, v7')
    a(f'v_mov_b32 v9, 0x10000\nv_cndmask_b32 v8, v9, v8, vcc')
    a('s_mov_b32 s50, 7168\ns_mov_b32 s51, 0x20000')
    a('s_waitcnt lgkmcnt(0)')
    if stamps:
        a('s_mov_b32 s80, s98')
    a('s_mov_b32 s48, s24\ns_mov_b32 s49, s25')
    a(f'buffer_load_dwordx4 {vr(XR,4)}, v8, s[48:51], 0 offen\nbuffer_load_dwordx4 {vr(XR+4,4)}, v8, s[48:51], 0 offen offset:16')
    a('s_load_dword s64, s[46:47], 0')
    a(f'v_cndmask_b32 v{VMK}, 0, 1.0, vcc')
    a(f'v_mul_u32_u24 v{VXO}, {XS}, v6\nv_lshl_add_u32 v{VXO}, v7, 5, v{VXO}\nv_add_u32 v{VXO}, {XN}, v{VXO}')
    a('s_mov_b64 s[70:71], vcc')
    common_ids()
    a(f's_lshl_b32 s67, s23, 2\nv_add_u32 v15, s67, v{VFL}')
    srd(52, 46, W_STAMP + 0x40000 if stamps else W_END)
    a('v_and_b32 v10, 1, v0\nv_bfe_u32 v11, v0, 1, 2\nv_cmp_eq_u32 vcc, 0, v10')
    a('v_mov_b32 v12, 0x01000c0c\nv_mov_b32 v13, 0x0c0c0100\nv_cndmask_b32 v12, v12, v13, vcc')
    a('v_mov_b32 v10, 0x03020c0c\nv_mov_b32 v13, 0x0c0c0302\nv_cndmask_b32 v13, v10, v13, vcc')
    a('v_mov_b32 v10, 0x0c0c0c0c')
    for i in range(4):
        a(f'v_cmp_eq_u32 vcc, {i}, v11\nv_cndmask_b32 v{SEL+i}, v10, v12, vcc\nv_cndmask_b32 v{SEL+4+i}, v10, v13, vcc')
    a('v_lshrrev_b32 v10, 4, v0\nv_and_b32 v11, 15, v0\ns_lshl_b32 s67, s23, 13\nv_lshlrev_b32 v12, 9, v11\nv_add_u32 v12, s67, v12')
    for j in range(4):
        a(f'v_add_u32 v13, {4*j}, v10\nv_xor_b32 v13, v13, v11\nv_lshl_add_u32 v{KA+j}, v13, 4, v12\nv_add_u32 v{KA+4+j}, 0x10000, v{KA+j}')
    a(f'v_lshlrev_b32 v12, 11, v10\nv_lshl_add_u32 v12, v11, 4, v12\nv_add_u32 v{VA}, s67, v12\nv_add_u32 v{VA+1}, 0x10000, v{VA}')
    a(f'v_mov_b32 v{VM}, 0xff800000')
    a('s_barrier')
    a('s_waitcnt vmcnt(0)')
    stamp(1)
    layernorm(XR, XF, VMK)
    a('s_mov_b64 exec, s[70:71]')
    a(f'ds_write_b128 v{VXO}, {vr(XR,4)} offset:0\nds_write_b128 v{VXO}, {vr(XR+4,4)} offset:16')
    a('s_mov_b64 exec, -1')
    set_flag(F_X)
    stamp(2)
    a(f's_cmp_ge_u32 s19, 14\ns_cbranch_scc1 L_noln2')
    layernorm(XR, XF, VMK)
    a('s_mov_b64 exec, s[70:71]')
    a(f'ds_write_b128 v{VXO}, {vr(XR,4)} offset:{YN-XN}\nds_write_b128 v{VXO}, {vr(XR+4,4)} offset:{YN-XN+16}')
    a('s_mov_b64 exec, -1')
    set_flag(F_Y)
    a('L_noln2:')
    a('s_waitcnt lgkmcnt(0)\ns_add_u32 s64, s64, 1')

    def kfrag(k, ks):
        return ar(32 + 32 * k + 4 * ks, 4) if k < NDRAIN - 1 else vr(FR + 4 * ks, 4)

    def k_reads(k):
        for ks in range(8):
            a(f'ds_read_b128 {kfrag(k, ks)}, v{KA + (4 if k & 2 else 0) + (ks & 3)} offset:{(k&1)*32768 + (ks>>2)*256}')

    def k_finish(k):
        a(f'v_max3_f32 v{VM}, v{VM}, v{DT}, v{DT+1}\nv_max3_f32 v{VM}, v{VM}, v{DT+2}, v{DT+3}')
        a(f'v_cvt_pk_bf16_f32 v{P+2*k}, v{DT}, v{DT+1}\nv_cvt_pk_bf16_f32 v{P+2*k+1}, v{DT+2}, v{DT+3}')

    for k in range(NDRAIN):
        wait_tile(4 * k, sleep)
        k_reads(k)
        a(f'v_mov_b32 v{T0+1}, {k+1}\ns_waitcnt lgkmcnt(0)\nds_write_b32 v15, v{T0+1} offset:{F_CONS}')
    stamp(3)
    wait_flags(F_Q, 1, sleep)
    stamp(4)
    a(f'v_bfe_u32 v10, v0, 3, 1\nv_lshrrev_b32 v11, 4, v0\nv_lshlrev_b32 v10, 9, v10\nv_lshl_add_u32 v10, v11, 4, v10\nv_add_u32 v10, {QL}, v10')
    for ks in range(8):
        a(f'ds_read_b128 {ar(4*ks,4)}, v10 offset:{ks*64}')
    for k in range(NDRAIN):
        for ks in range(8):
            if k == 0:
                a(f's_waitcnt lgkmcnt({7-ks})')
            c = '0' if ks == 0 else vr(DT, 4)
            a(f'v_mfma_f32_16x16x32_bf16 {vr(DT,4)}, {kfrag(k, ks)}, {ar(4*ks,4)}, {c}')
        k_finish(k)

    for k in range(NDRAIN, 16):
        wait_tile(4 * k, sleep)
        k_reads(k)
        a(f'v_mov_b32 v{T0+1}, {k+1}')
        for ks in range(8):
            a(f's_waitcnt lgkmcnt({7-ks})')
            if ks == 7:
                a(f'ds_write_b32 v15, v{T0+1} offset:{F_CONS}')
            c = '0' if ks == 0 else vr(DT, 4)
            a(f'v_mfma_f32_16x16x32_bf16 {vr(DT,4)}, {vr(FR+4*ks,4)}, {ar(4*ks,4)}, {c}')
        k_finish(k)
        if k == 9:
            srd(60, 40, 1792 * 896)
            a('s_lshl2_add_u32 s75, s20, s22\ns_lshl2_add_u32 s75, s75, s23\ns_mul_i32 s78, s75, 14')
            a(f'v_lshrrev_b32 v10, 3, v0\nv_and_b32 v11, 7, v0\nv_mul_u32_u24 v10, {2*896}, v10\nv_lshl_add_u32 v10, v11, 4, v10')
            a('s_mul_i32 s67, s78, 896\ns_add_u32 s75, s67, 896')
            for t in range(0 if now2 else 2):
                for cb in range(7):
                    a(f'buffer_load_dwordx4 {ar(32+4*(t*7+cb),4)}, v10, s[60:63], {"s67" if t == 0 else "s75"} offen offset:{cb*128} {wflags}')
        if k == 11:
            l = lab('hp')
            a(f's_lshl_b32 s67, s21, 13\ns_lshl_b32 s75, s78, 2\ns_add_u32 s67, s67, s75\ns_add_u32 s67, s67, {W_H}')
            a(f'v_lshrrev_b32 v10, 3, v0\nv_cmp_gt_u32 s[68:69], 7, v10\nv_min_u32 v10, 6, v10\nv_lshlrev_b32 v10, 3, v10')
            a(f'{l}:')
            a(f'buffer_load_dwordx2 v[4:5], v10, s[52:55], s67 offen sc1')
            timeout()
            a(f's_waitcnt vmcnt(0)\nv_cmp_ne_u32 vcc, {TAG}, v5')
            if 'noh' not in diag:
                a(f's_cbranch_vccnz {l}')
            a('v_cndmask_b32 v4, 0, v4, s[68:69]')
            build_a(AT, 4, 0)
            build_a(AT + 4, 4, 1)
            for t in range(2):
                for cb in range(7):
                    c = '0' if t == 0 else ar(YA + 4 * cb, 4)
                    a(f'v_mfma_f32_16x16x32_bf16 {ar(YA+4*cb,4)}, {vr(AT+4*t,4)}, {ar(32+4*(t*7+cb),4)}, {c}')
    stamp(5)
    a(f'v_lshrrev_b32 v10, 3, v0\nv_lshlrev_b32 v10, 3, v10\ns_lshl_b32 s67, s23, 6\ns_add_u32 s67, s67, {SC}\nv_add_u32 v10, s67, v10')
    for k in range(NP // 4, 16):
        a(f'ds_write_b64 v10, v[{P+2*k}:{P+2*k+1}] offset:{(k - NP//4)*256}')
    reduce_rows('max', VM, T0)
    rnd(VM)
    a(f'v_bfe_u32 v10, v0, 3, 1\nv_lshl_add_u32 v10, v10, 2, v{VFL}\ns_lshl_b32 s67, s23, 3\nv_add_u32 v11, s67, v10')
    a(f'ds_write_b32 v11, v{VM} offset:{MX}')
    set_flag(F_M)
    wait_flags(F_M, 4)
    a(f'ds_read2_b32 v[4:5], v10 offset0:{MX//4} offset1:{MX//4+2}\nds_read2_b32 v[6:7], v10 offset0:{MX//4+4} offset1:{MX//4+6}')
    a(f's_mov_b32 s75, {fb(LOG2E/16)}\nv_mov_b32 v{VL}, 0\nv_mov_b32 v12, 0')
    a(f's_waitcnt lgkmcnt(0)\nv_max3_f32 v4, v4, v5, v6\nv_max_f32 v{VM}, v4, v7\nv_mul_f32 v13, {fb(-LOG2E/16)}, v{VM}')
    for j in range(0, 32, 2):
        a(f'v_lshlrev_b32 v4, 16, v{P+j}\nv_and_b32 v5, 0xffff0000, v{P+j}\nv_lshlrev_b32 v6, 16, v{P+j+1}\nv_and_b32 v7, 0xffff0000, v{P+j+1}')
        for r in range(4):
            a(f'v_fma_f32 v{4+r}, v{4+r}, s75, v13')
        for r in range(4):
            a(f'v_exp_f32 v{4+r}, v{4+r}')
        a(f'v_add_f32 v{VL}, v{VL}, v4\nv_add_f32 v12, v12, v5\nv_cvt_pk_bf16_f32 v{P+j}, v4, v5')
        a(f'v_add_f32 v{VL}, v{VL}, v6\nv_add_f32 v12, v12, v7\nv_cvt_pk_bf16_f32 v{P+j+1}, v6, v7')
    a(f'v_add_f32 v{VL}, v{VL}, v12')
    reduce_rows('add', VL, T0)
    a(f'ds_write_b32 v11, v{VL} offset:{LS}')
    set_flag(F_L)
    srd(60, 30, 4096 * 896)
    a('s_lshl2_add_u32 s75, s20, s22\ns_lshl2_add_u32 s75, s75, s23\ns_mul_i32 s78, s75, 32*896')
    a(f'v_lshrrev_b32 v10, 3, v0\nv_and_b32 v11, 7, v0\nv_mul_u32_u24 v10, {4*896}, v10\nv_lshl_add_u32 v{VL}, v11, 4, v10')

    def v_mfmas(preg, first, extra, done):
        for r in range(4):
            at = AT + 4 * (r & 1)
            if r == 0 and extra:
                a('s_waitcnt lgkmcnt(8)')
            build_a(at, preg + (r >> 1), r & 1)
            for hf in range(2):
                a(f's_waitcnt lgkmcnt({7-(2*r+hf)})')
                if r == 3 and hf == 1:
                    done()
                c = '0' if (first and r == 0) else vr(OA + 4 * hf, 4)
                a(f'v_mfma_f32_16x16x32_bf16 {vr(OA+4*hf,4)}, {vr(at,4)}, {vr(FR+4*(2*r+hf),4)}, {c}')

    for k in range(NP // 4):
        wait_tile(64 + 4 * k, sleep)
        for r in range(4):
            for hf in range(2):
                a(f'ds_read_b128 {vr(FR+4*(2*r+hf),4)}, v{VA + (1 if k & 2 else 0)} offset:{(k&1)*32768 + r*512 + hf*256}')
        a(f'v_mov_b32 v{T0+1}, {k+17}')
        v_mfmas(P + 2 * k, k == 0, False, lambda: a(f'ds_write_b32 v15, v{T0+1} offset:{F_CONS}'))
        if k < 7 and not nowo:
            for j in range(4 * k, 4 * k + 4):
                t, cb = divmod(j, 7)
                if j % 7 == 0 or j % 4 == 0:
                    a(f's_add_u32 s67, s78, {t*896}')
                a(f'buffer_load_dwordx4 {ar(4*j,4)}, v{VL}, s[60:63], s67 offen offset:{cb*128} {wflags}')
    VO1, VO2, VO3, VO4, VO5 = P, P + 1, P + 2, P + 3, P + 4
    a(f'v_lshrrev_b32 v10, 5, v0\nv_and_b32 v11, 15, v0\nv_lshlrev_b32 v10, 10, v10\nv_lshl_add_u32 v10, v11, 5, v10')
    a(f'v_bfe_u32 v11, v0, 4, 1\nv_lshl_add_u32 v10, v11, 4, v10\ns_lshl_b32 s67, s23, 11\ns_add_u32 s67, s67, {OPL}\nv_add_u32 v{VO2}, s67, v10')
    a(f'v_and_b32 v10, 31, v0\nv_lshlrev_b32 v10, 4, v10\ns_lshl_b32 s67, s23, 9\nv_add_u32 v10, s67, v10')
    a(f'v_cmp_gt_u32 vcc, 32, v0\nv_mov_b32 v13, 0x1000000\nv_cndmask_b32 v{VO3}, v13, v10, vcc')
    a(f'v_lshrrev_b32 v11, 5, v0\nv_lshlrev_b32 v11, 12, v11\nv_add_u32 v10, v10, v11\nv_add_u32 v{VO1}, {OPL}, v10')
    a(f's_lshl_b32 s68, s74, 11\ns_add_u32 s68, s68, {W_OP}')
    a(f'v_and_b32 v10, 3, v0\nv_lshrrev_b32 v11, 3, v0\nv_lshlrev_b32 v10, 11, v10\nv_lshl_add_u32 v{VO4}, v11, 4, v10')
    a(f's_lshl_b32 s69, s73, 13\ns_lshl2_add_u32 s67, s22, s23\ns_lshl_b32 s67, s67, 7\ns_add_u32 s69, s69, s67\ns_add_u32 s69, s69, {W_OP}')
    a(f'v_lshrrev_b32 v10, 5, v0\ns_lshl_b32 s67, s23, 1\nv_add_u32 v10, s67, v10\nv_mul_u32_u24 v10, {RS}, v10')
    a(f'v_and_b32 v11, 7, v0\nv_lshl_add_u32 v10, v11, 5, v10\nv_bfe_u32 v11, v0, 4, 1\nv_lshl_add_u32 v10, v11, 4, v10\nv_add_u32 v{VO5}, {RED}, v10')
    VR1, VR2, VQ, VPT, VPP, VVA = P + 5, P + 6, P + 7, P + 8, P + 10, P + 12
    a(f'v_lshrrev_b32 v10, 1, v0\nv_min_u32 v10, 27, v10\ns_mul_i32 s67, s23, 28\nv_add_u32 v10, s67, v10\nv_lshlrev_b32 v10, 4, v10')
    a(f'v_and_b32 v11, 1, v0\nv_mul_u32_u24 v12, {4*RS}, v11\nv_add3_u32 v{VR1}, v10, v12, v{VFL}')
    a(f'v_add_u32 v{VR1}, {RED-FLG}, v{VR1}')
    a(f'v_cmp_gt_u32 vcc, 56, v0\nv_cndmask_b32 v10, v13, v10, vcc\nv_cmp_eq_u32 vcc, 0, v11\nv_cndmask_b32 v{VR2}, v13, v10, vcc')
    a(f's_lshl_b32 s76, s74, 11\ns_add_u32 s76, s76, {W_YP}')
    a(f's_lshr_b32 s67, s23, 1\ns_lshl_b32 s67, s67, 2\ns_add_u32 s67, s67, {FLG + CQ}\nv_mov_b32 v{VQ}, s67')
    a(f'v_lshrrev_b32 v10, 3, v0\nv_lshlrev_b32 v10, 3, v10\ns_and_b32 s67, s23, 1\ns_lshl_b32 s67, s67, 6\ns_add_u32 s67, s67, {PT}\nv_add_u32 v{VPT}, s67, v10')
    wait_flags(F_P, 1, sleep)
    a(f'v_lshrrev_b32 v10, 5, v0\nv_lshl_add_u32 v10, v10, 2, v{VFL}\nds_read_b32 v11, v10 offset:{FO}\nds_read_b32 v{VW}, v{VFL} offset:{FO+8}')
    a(f's_add_u32 s72, s23, {64 + NP}\ns_waitcnt vmcnt(0) lgkmcnt(0)')
    for j in range(8):
        a(f'v_mul_f32 v{OA+j}, v{OA+j}, v11')
    stamp(10)
    a('L_pool:')
    a(f'ds_read_b32 v4, v{VQ}\nds_read_b32 v5, v{VFL} offset:{F_LAND}\ns_waitcnt lgkmcnt(0)')
    a(f'v_readfirstlane_b32 s24, v4\nv_readfirstlane_b32 s65, v5\ns_cmp_gt_u32 s24, {NCH}\ns_cbranch_scc1 L_pool_end')
    a('s_cmp_gt_i32 s65, s72\ns_cbranch_scc1 L_pool_go')
    timeout()
    a('s_branch L_pool\nL_pool_go:')
    a(f's_cmp_eq_u32 s24, 0\ns_cbranch_scc1 L_pool')
    a('s_sub_u32 s24, s24, 1\ns_and_b32 s25, s24, 3\ns_lshl_b32 s25, s25, 10\ns_lshr_b32 s24, s24, 2\ns_lshl_b32 s24, s24, 7\ns_add_u32 s24, s24, s25')
    a(f's_and_b32 s25, s72, 12\ns_lshl_b32 s25, s25, 13\nv_add_u32 v4, s24, v{VPT}\nv_add_u32 v{VVA}, s25, v{VA}')
    a(f'ds_read_b64 v[{VPP}:{VPP+1}], v4')
    for r in range(4):
        for hf in range(2):
            a(f'ds_read_b128 {vr(FR+4*(2*r+hf),4)}, v{VVA} offset:{r*512 + hf*256}')
    a(f's_lshr_b32 s25, s72, 2\ns_add_u32 s25, s25, 1\nv_mov_b32 v{T0+1}, s25\nv_add_u32 v{VQ}, 8, v{VQ}\ns_add_u32 s72, s72, 4')
    v_mfmas(VPP, False, True, lambda: a(f'ds_write_b32 v15, v{T0+1} offset:{F_CONS}'))
    a('s_branch L_pool')
    a('L_pool_end:')
    a(f'ds_write_b128 v{VO2}, {vr(OA,4)}\nds_write_b128 v{VO2}, {vr(OA+4,4)} offset:512')
    set_flag(F_O)
    stamp(6)
    wait_flags(F_O, 4)
    a(f'ds_read_b128 v[4:7], v{VO1}\nds_read_b128 v[8:11], v{VO1} offset:2048')
    a('s_waitcnt lgkmcnt(0)\nv_pk_add_f32 v[4:5], v[4:5], v[8:9]\nv_pk_add_f32 v[6:7], v[6:7], v[10:11]')
    for r in range(4):
        a(f'v_mov_b32 v{8+r}, v{4+r}')
    for r in range(4):
        a(f'v_permlane32_swap_b32 v{4+r}, v{8+r}')
    a('v_pk_add_f32 v[4:5], v[4:5], v[8:9]\nv_pk_add_f32 v[6:7], v[6:7], v[10:11]')
    a(f'buffer_store_dwordx4 v[4:7], v{VO3}, s[52:55], s68 offen sc1')
    stamp(7)
    a('L_hop1:')
    a(f'buffer_load_dwordx4 v[4:7], v{VO4}, s[52:55], s69 offen sc1')
    timeout()
    a('s_waitcnt vmcnt(0)\nv_max3_u32 v8, v4, v5, v6\nv_max_u32 v8, v8, v7\nv_cmp_eq_u32 vcc, -1, v8\ns_cbranch_vccnz L_hop1')
    stamp(8)
    for r in range(4):
        a(f'v_mul_f32 v{4+r}, v{4+r}, v{VW}')
    for qp in ('[1,0,3,2]', '[2,3,0,1]'):
        for r in range(4):
            a(f'v_add_f32_dpp v{4+r}, v{4+r}, v{4+r} quad_perm:{qp} row_mask:0xf bank_mask:0xf')
    a('v_cvt_pk_bf16_f32 v4, v4, v5\nv_cvt_pk_bf16_f32 v6, v6, v7')
    build_a(AT, 4, 0)
    for t in range(4):
        for cb in range(7):
            a(f'v_mfma_f32_16x16x32_bf16 {ar(YA+4*cb,4)}, {vr(AT+4*(t&1),4)}, {ar(4*(t*7+cb),4)}, {ar(YA+4*cb,4)}')
            if cb == 0 and t < 3:
                build_a(AT + 4 * ((t + 1) & 1), 4 + 2 * ((t + 1) >> 1), (t + 1) & 1)
    a('s_mov_b32 exec_lo, 0x00ff00ff\ns_mov_b32 exec_hi, 0xff00ff00')
    for cb in range(7):
        a(f'ds_write_b128 v{VO5}, {ar(YA+4*cb,4)} offset:{cb*256}')
    a('s_mov_b64 exec, -1\ns_waitcnt lgkmcnt(0)\ns_barrier')
    for j in range(4):
        a(f'ds_read_b128 {vr(FR+4*j,4)}, v{VR1} offset:{j*RS}')
    a(f's_waitcnt lgkmcnt(2)\nv_pk_add_f32 v[4:5], v[{FR}:{FR+1}], v[{FR+4}:{FR+5}]\nv_pk_add_f32 v[6:7], v[{FR+2}:{FR+3}], v[{FR+6}:{FR+7}]')
    a(f's_waitcnt lgkmcnt(1)\nv_pk_add_f32 v[4:5], v[4:5], v[{FR+8}:{FR+9}]\nv_pk_add_f32 v[6:7], v[6:7], v[{FR+10}:{FR+11}]')
    a(f's_waitcnt lgkmcnt(0)\nv_pk_add_f32 v[4:5], v[4:5], v[{FR+12}:{FR+13}]\nv_pk_add_f32 v[6:7], v[6:7], v[{FR+14}:{FR+15}]')
    for r in range(4):
        a(f'v_add_f32_dpp v{4+r}, v{4+r}, v{4+r} quad_perm:[1,0,3,2] row_mask:0xf bank_mask:0xf')
    a(f'buffer_store_dwordx4 v[4:7], v{VR2}, s[52:55], s76 offen sc1')
    stamp(9)
    if stamps:
        a('s_mov_b64 exec, -1')
        a('L_stamp_out:')
        srd(52, 46, W_STAMP + 0x40000)
        a('s_getreg_b32 s95, hwreg(HW_REG_XCC_ID)')
        a(f's_mul_i32 s67, s2, 6\ns_add_u32 s67, s67, s3\ns_lshl_b32 s67, s67, 6\ns_add_u32 s67, s67, {W_STAMP}')
        for k in range(16):
            a(f'v_mov_b32 v{16+k}, s{80+k}')
        a('s_mov_b64 exec, 1')
        for k in range(4 if store_stamps else 0):
            a(f'buffer_store_dwordx4 v[{16+4*k}:{19+4*k}], off, s[52:55], s67 offset:{16*k}')
    a('L_end:')
    a('s_endpgm')
    body = a.finalize()
    head = header or ''
    head += f'; @launch grid=(256,1,1) block=(384,1,1) lds={LDS_BYTES}\n'
    head += f'.amdgcn_target "amdgcn-amd-amdhsa--gfx950"\n.text\n.globl {NAME}\n.p2align 8\n.type {NAME},@function\n'
    tail = f'''.section .rodata,"a"
.p2align 6
.amdhsa_kernel {NAME}
  .amdhsa_next_free_vgpr 256
  .amdhsa_next_free_sgpr 102
  .amdhsa_accum_offset 112
  .amdhsa_group_segment_fixed_size 0
  .amdhsa_kernarg_size 104
  .amdhsa_user_sgpr_count 2
  .amdhsa_user_sgpr_kernarg_segment_ptr 1
  .amdhsa_system_sgpr_workgroup_id_x 1
  .amdhsa_float_denorm_mode_32 3
.end_amdhsa_kernel
'''
    return head + body + tail


if __name__ == '__main__':
    ref = open('parallel_sum__gqa_block_cached__mixer_channel_mlp__decode.s.ref').read().split('\n')
    hdr = '\n'.join(l for l in ref if l.startswith(';') and '@launch' not in l and 'Override' not in l and 'grid=ceil' not in l) + '\n'
    kw = eval('dict(' + (sys.argv[2] if len(sys.argv) > 2 else '') + ')')
    out = sys.argv[1] if len(sys.argv) > 1 else 'parallel_sum__gqa_block_cached__mixer_channel_mlp__decode.s'
    open(out, 'w').write(gen(header=hdr, **kw))
    print('wrote', out)
```

```python
import struct, sys, os
sys.path.insert(0, os.path.dirname(os.path.abspath(__file__)))
from asmkit import Asm

NAME = "parallel_sum__gqa_block_cached__mixer_channel_mlp__decode_kernel"


def fb(x):
    return '0x%08x' % struct.unpack('<I', struct.pack('<f', x))[0]


LOG2E = 1.4426950408889634
RING = 0
FLG = 131072
F_LAND, F_CONS, F_X, F_Q, F_Y, F_M, F_L, F_O, MX, LS = 0, 16, 32, 48, 64, 80, 96, 112, 128, 160
QL = FLG + 1024
XN = QL + 1024
XS = 912
YN = XN + 8 * XS
STG = YN + 8 * XS
LDS_BYTES = STG + 14336
OPL = XN
RED = XN + 6144
RS = 1824
PT = RED + 8 * RS
SC = XN
F_P, FO, CQ = 192, 196, 256
assert PT + 8192 <= LDS_BYTES
W_Q = 0x1000
W_H = 0x21000
W_ST = 0x31000
W_OP = 0x40000
W_YP = 0xC0000
W_SC = 0x140000
W_CT = 0x1c0000
W_END = 0x210000
W_STAMP = 0x220000


def vr(a, n=1):
    return f'v{a}' if n == 1 else f'v[{a}:{a+n-1}]'


def ar(a, n=1):
    return f'a{a}' if n == 1 else f'a[{a}:{a+n-1}]'


def gen(D=22, kflags='nt', vflags='nt', wflags='', stamps=False, sleep=1, prefetch=True, header=None, spin=None, warm=True, NDRAIN=4, diag='', qsleep=0, D0=None, qat=18, qstep=3, pfsplit=True, lateclear=True, remap=3, LEAD=7, h2sleep=0, nowo=False, now2=False, swarm=True, DF=56, gat=None, NP=52, NF=4, psleep=0, ctstride=4352, rwarm='sc1', rwall=False):
    NCH = (64 - NP - NF) * 2
    gat = NF - 2 if gat is None else gat
    S = 64 - NP
    NT = (S + 15) // 16
    a = Asm()
    uid = [0]
    store_stamps = stamps
    if spin is not None:
        stamps = True

    def lab(p):
        uid[0] += 1
        return f'L_{p}_{uid[0]}'

    nstamp = [0]

    def stamp(k):
        if stamps:
            a(f's_memrealtime s[98:99]\ns_waitcnt lgkmcnt(0)\ns_mov_b32 s{80+k}, s98')

    def srd(d, p, size):
        a(f's_mov_b32 s{d}, s{p}\ns_mov_b32 s{d+1}, s{p+1}\ns_mov_b32 s{d+2}, {size}\ns_mov_b32 s{d+3}, 0x20000')

    a(f'{NAME}:')
    a('s_cmp_ge_u32 s2, 256\ns_cbranch_scc1 L_end')
    a('s_load_dwordx4 s[4:7], s[0:1], 8')
    if stamps:
        for k in range(16):
            a(f's_mov_b32 s{80+k}, 0')
        a('s_memrealtime s[98:99]')
    a('v_lshrrev_b32 v1, 6, v0\nv_and_b32 v0, 63, v0')
    a('v_readfirstlane_b32 s3, v1')
    a('s_and_b32 s33, s2, 7\ns_lshr_b32 s19, s2, 3\ns_and_b32 s21, s19, 7\ns_lshr_b32 s22, s19, 3')
    a(f's_mul_i32 s20, s22, {remap}\ns_sub_u32 s20, s33, s20\ns_and_b32 s20, s20, 7')
    a('s_cmp_eq_u32 s3, 5\ns_cbranch_scc1 L_helper\ns_cmp_lg_u32 s3, 0\ns_cbranch_scc1 L_consumer')

    a('s_setprio 3')
    if stamps:
        a('v_mov_b32 v30, 0')
    a('v_lshrrev_b32 v10, 5, v0\nv_and_b32 v11, 31, v0\nv_lshlrev_b32 v12, 9, v10')
    for i in range(8):
        a(f'v_add_u32 v13, {2*i}, v10\nv_xor_b32 v13, v13, v11\nv_lshl_add_u32 v{2+i}, v13, 4, v12')
    a('s_lshl_b32 s17, s21, 3\ns_add_u32 s17, s17, s20\ns_lshl_b32 s17, s17, 2\ns_add_u32 s17, s17, s22\ns_lshl_b32 s17, s17, 19')
    a('s_mov_b32 s10, 0x80000\ns_mov_b32 s11, 0x20000\ns_mov_b32 s12, 0\ns_mov_b32 s14, 0')
    a('s_mov_b32 s18, 0x100000')
    a('s_waitcnt lgkmcnt(0)')
    if stamps:
        a('s_mov_b32 s80, s98')
    a('s_add_u32 s8, s4, s17\ns_addc_u32 s9, s5, 0\ns_and_b32 s17, s17, 0xffe00000\ns_add_u32 s6, s6, s17\ns_addc_u32 s7, s7, 0')
    ipub = (7 + D) % 8
    lag = (7 + D) // 8

    def ld_tile(u, T=None, kvflags=kflags):
        for i in range(8):
            if i % 4 == 0:
                a(f's_add_u32 m0, s14, {u*8192 + (i//4)*4096}')
                a(f's_add_u32 s13, s12, {u*8192 + (i//4)*4096}')
            if T is None:
                a(f's_waitcnt vmcnt({D-1})')
            elif 8 * T + i >= (D0 or D):
                a(f's_waitcnt vmcnt({(D0 or D)-1})')
            if i == ipub:
                if T is None:
                    a(f's_lshl2_add_u32 s17, s15, {u - lag + 1}\nv_mov_b32 v15, s17\nds_write_b32 v14, v15 offset:{F_LAND}')
                elif T - lag + 1 > 0 and not D0:
                    a(f'v_mov_b32 v15, {T - lag + 1}\nds_write_b32 v14, v15 offset:{F_LAND}')
            a(f'buffer_load_dwordx4 v{2+i}, s[8:11], s13 offen offset:{(i%4)*1024} {kvflags} lds')

    ld_tile(0, 0)
    a(f'v_mov_b32 v16, 0\nv_mov_b32 v17, 0\nv_mov_b32 v18, 0\nv_mov_b32 v19, 0')
    a(f'v_mov_b32 v14, {FLG}\nv_lshl_add_u32 v13, v0, 4, v14\nds_write_b128 v13, v[16:19]')
    ld_tile(1, 1)
    a('s_waitcnt lgkmcnt(0)\ns_barrier')
    ld_tile(2, 2)
    ld_tile(3, 3)
    a('s_mov_b32 s15, 1')

    def ld_free(u):
        ok = lab('ldok')
        rt = lab('ldrt')
        a('s_waitcnt lgkmcnt(0)')
        a(f'v_readfirstlane_b32 s17, v{16+u}\ns_cmp_ge_i32 s17, s16\ns_cbranch_scc1 {ok}')
        a(f'{rt}:')
        a(f'ds_read_b128 v[16:19], v14 offset:{F_CONS}\ns_sub_u32 s18, s18, 1\ns_cbranch_scc1 L_end\ns_waitcnt lgkmcnt(0)')
        a(f'v_readfirstlane_b32 s17, v{16+u}\ns_cmp_ge_i32 s17, s16\ns_cbranch_scc0 {rt}')
        a(f'{ok}:')
        a(f'ds_read_b128 v[16:19], v14 offset:{F_CONS}')

    def ld_stamps():
        if stamps:
            a('s_memrealtime s[98:99]\ns_waitcnt lgkmcnt(0)\nv_mov_b32 v31, s98\nv_cmp_eq_u32 vcc, s15, v0\nv_cndmask_b32 v30, v30, v31, vcc')
            for k, it in enumerate((1, 2, 4, 6, 8, 12, 16, 24, 28)):
                a(f's_cmp_eq_u32 s15, {it}\ns_cselect_b32 s{82+k}, s98, s{82+k}')

    for ph in range(2):
        if ph == 1:
            a('s_mov_b32 s8, s6\ns_mov_b32 s9, s7\ns_mov_b32 s10, 0x200000\ns_lshl_b32 s12, s22, 19\ns_sub_u32 s12, s12, 32768')
            for i in range(8):
                a(f'v_lshlrev_b32 v{2+i}, 4, v0')
        a(f'L_ld_loop{ph}:')
        a('s_add_u32 s12, s12, 32768\ns_add_u32 s14, s14, 32768\ns_and_b32 s14, s14, 0x1ffff\ns_sub_u32 s16, s15, 3')
        ld_stamps()
        for u in range(4):
            ld_free(u)
            if ph == 1 and u == 3:
                a(f'ds_read_b32 v20, v14 offset:{CQ}')
            ld_tile(u, None, vflags if ph else kflags)
        a(f's_add_u32 s15, s15, 1\ns_cmp_lt_u32 s15, {16 if ph == 0 else 16 + NP//4}\ns_cbranch_scc1 L_ld_loop{ph}')
    a(f'v_add_u32 v21, {CQ}, v14')
    a('v_lshrrev_b32 v10, 3, v0\nv_bfe_u32 v11, v0, 4, 1\nv_lshlrev_b32 v11, 1, v11\nv_and_b32 v12, 7, v0\nv_xor_b32 v11, v11, v12')
    a('s_lshl_b32 s17, s22, 7\nv_lshlrev_b32 v10, 9, v10\nv_add_u32 v10, s17, v10\nv_lshl_add_u32 v22, v11, 4, v10\nv_xor_b32 v23, 64, v22')
    stamp(11)
    a('L_ld_pool:')
    a('s_add_u32 s14, s14, 32768\ns_and_b32 s14, s14, 0x1ffff\ns_sub_u32 s16, s15, 3')
    ld_stamps()
    for h in range(2):
        ok = lab('cqok')
        rt = lab('cqrt')
        a('s_waitcnt lgkmcnt(0)')
        a(f'v_readfirstlane_b32 s24, v20\ns_cmp_lg_u32 s24, 0\ns_cbranch_scc1 {ok}')
        a(f'{rt}:')
        if stamps:
            a('s_add_u32 s94, s94, 1')
        a(f'ds_read_b32 v20, v21 offset:{4*h}\ns_sub_u32 s18, s18, 1\ns_cbranch_scc1 L_end\ns_waitcnt lgkmcnt(0)')
        a(f'v_readfirstlane_b32 s24, v20\ns_cmp_lg_u32 s24, 0\ns_cbranch_scc0 {rt}')
        a(f'{ok}:')
        a(f's_lshl2_add_u32 s25, s15, {2*h}\ns_cmp_gt_u32 s24, {NCH}\ns_cbranch_scc1 L_ld_fin{h}')
        a(f's_sub_u32 s24, s24, 1\ns_and_b32 s12, s24, 3\ns_lshl_b32 s12, s12, 19\ns_lshr_b32 s24, s24, 2\ns_lshl_b32 s24, s24, 14')
        if 'ownq' in diag:
            a(f's_lshl_b32 s12, s22, 19\ns_lshl_b32 s24, s25, 13\ns_and_b32 s24, s24, 0x1ffff')
        a(f's_add_u32 s12, s12, s24\ns_add_u32 s12, s12, {NP*8192 - 2*h*8192}')
        for u in (2 * h, 2 * h + 1):
            ld_free(u)
            if u & 1:
                a(f'ds_read_b32 v20, v21 offset:{4*h+4}')
            ld_tile(u, None, vflags)
    a('v_add_u32 v21, 8, v21\ns_add_u32 s15, s15, 1\ns_branch L_ld_pool')
    ipf, lagf = (7 + DF) % 8, (7 + DF) // 8
    for h in range(2):
        a(f'L_ld_fin{h}:')
        stamp(12)
        done = -lag
        for f in range(NF):
            u = (2 * h + f) & 3
            if u == 0 and f:
                a('s_add_u32 s14, s14, 32768\ns_and_b32 s14, s14, 0x1ffff\ns_add_u32 s16, s16, 1')
            ld_free(u)
            for i in range(8):
                a(f's_add_u32 m0, s14, {u*8192 + i*1024}\ns_mov_b32 s13, {(f&3)*0x80000 + (64 - NF + 4*(f>>2))*8192 + i*4096}')
                if 8 * f + i + D >= DF:
                    a(f's_waitcnt vmcnt({DF-1})')
                    if i == ipf and f - lagf + 1 > done:
                        done = f - lagf + 1
                        a(f's_add_u32 s17, s25, {done}\nv_mov_b32 v15, s17\nds_write_b32 v14, v15 offset:{F_LAND}')
                a(f'buffer_load_dwordx4 v{22 + (i&1)}, s[8:11], s13 offen {vflags} lds')
        if h == 0:
            a('s_branch L_ld_fin')
    a('L_ld_fin:')
    for j in range(NF - done - 1, -1, -1):
        assert 8 * j < 64
        a(f's_add_u32 s17, s25, {NF - j}\nv_mov_b32 v15, s17\ns_waitcnt vmcnt({8*j})\nds_write_b32 v14, v15 offset:{F_LAND}')
    if stamps:
        a('s_mov_b32 s93, s25')
    if stamps:
        stamp(1)
        a('s_load_dwordx2 s[46:47], s[0:1], 96\ns_waitcnt lgkmcnt(0)')
        srd(52, 46, W_STAMP + 0x40000)
        a(f'v_lshlrev_b32 v31, 2, v0\ns_lshl_b32 s67, s2, 8\ns_add_u32 s67, s67, {W_STAMP + 0x20000}')
        if store_stamps:
            a('buffer_store_dword v30, v31, s[52:55], s67 offen')
        a('s_branch L_stamp_out')
    a('s_endpgm')

    P = 16
    FR = 48
    SEL = 80
    AT = 88
    DT = 96
    OA = 100
    KA = OA
    VA = 108
    VFL, VM, VL, VW, VXB = 1, 110, 111, 2, 3
    T0 = 4
    YA = 112
    TAG = 's64'

    def timeout():
        a('s_sub_u32 s66, s66, 1\ns_cbranch_scc1 L_end')

    def wait_flags(off, n, slp=0):
        l = lab('wf')
        ok = lab('wfok')
        a(f'{l}:')
        if n == 1:
            a(f'ds_read_b32 v{T0}, v{VFL} offset:{off}\ns_waitcnt lgkmcnt(0)')
        else:
            a(f'ds_read_b128 v[{T0}:{T0+3}], v{VFL} offset:{off}\ns_waitcnt lgkmcnt(0)')
            a(f'v_min3_u32 v{T0}, v{T0}, v{T0+1}, v{T0+2}')
            if n == 4:
                a(f'v_min_u32 v{T0}, v{T0}, v{T0+3}')
        a(f'v_readfirstlane_b32 s67, v{T0}\ns_cmp_lg_u32 s67, 0\ns_cbranch_scc1 {ok}')
        timeout()
        if slp:
            a(f's_sleep {slp}')
        a(f's_branch {l}\n{ok}:')

    def set_flag(off):
        a(f'ds_write_b32 v15, v14 offset:{off}')

    def wait_tile(t_const, slp):
        l = lab('wt')
        ok = lab('wtok')
        a(f's_add_u32 s67, s23, {t_const}\ns_cmp_gt_i32 s65, s67\ns_cbranch_scc1 {ok}')
        a(f'{l}:')
        a(f'ds_read_b32 v{T0}, v{VFL} offset:{F_LAND}\ns_waitcnt lgkmcnt(0)')
        a(f'v_readfirstlane_b32 s65, v{T0}\ns_cmp_gt_i32 s65, s67\ns_cbranch_scc1 {ok}')
        timeout()
        if slp:
            a(f's_sleep {slp}')
        a(f's_branch {l}\n{ok}:')

    def reduce32(op, t, u):
        for r in (8, 4, 2, 1):
            a(f'v_{op}_f32_dpp v{t}, v{t}, v{t} row_ror:{r} row_mask:0xf bank_mask:0xf')
        a(f'v_mov_b32 v{u}, v{t}\nv_permlane16_swap_b32 v{t}, v{u}\nv_{op}_f32 v{t}, v{t}, v{u}')

    def reduce_rows(op, t, u):
        a(f'v_mov_b32 v{u}, v{t}\nv_permlane16_swap_b32 v{t}, v{u}\nv_{op}_f32 v{t}, v{t}, v{u}')
        a(f'v_mov_b32 v{u}, v{t}\nv_permlane32_swap_b32 v{t}, v{u}\nv_{op}_f32 v{t}, v{t}, v{u}')

    def rnd(r):
        a(f'v_cvt_pk_bf16_f32 v{r}, v{r}, v{r}\nv_lshlrev_b32 v{r}, 16, v{r}')

    def layernorm(raw, f, vmask):
        t = T0
        for i in range(8):
            a(f'v_lshlrev_b32 v{f+2*i}, 16, v{raw+i}\nv_and_b32 v{f+2*i+1}, 0xffff0000, v{raw+i}')
        pk = lambda r: f'v[{r}:{r+1}]'
        a(f'v_pk_add_f32 {pk(t)}, {pk(f)}, {pk(f+2)}\nv_pk_add_f32 {pk(t+2)}, {pk(f+4)}, {pk(f+6)}')
        a(f'v_pk_add_f32 {pk(t)}, {pk(t)}, {pk(f+8)}\nv_pk_add_f32 {pk(t+2)}, {pk(t+2)}, {pk(f+10)}')
        a(f'v_pk_add_f32 {pk(t)}, {pk(t)}, {pk(f+12)}\nv_pk_add_f32 {pk(t+2)}, {pk(t+2)}, {pk(f+14)}')
        a(f'v_pk_add_f32 {pk(t)}, {pk(t)}, {pk(t+2)}\nv_add_f32 v{t}, v{t}, v{t+1}\nv_mul_f32 v{t}, v{t}, v{vmask}')
        reduce32('add', t, t + 1)
        a(f'v_mul_f32 v{t+2}, {fb(1/448)}, v{t}')
        neg = 'op_sel_hi:[1,0] neg_lo:[0,1] neg_hi:[0,1]'
        for i in range(8):
            d = t + 4 + 2 * (i & 1)
            a(f'v_pk_add_f32 {pk(d)}, {pk(f+2*i)}, {pk(t+2)} {neg}')
            if i == 0:
                a(f'v_pk_mul_f32 {pk(t)}, {pk(d)}, {pk(d)}')
            else:
                a(f'v_pk_fma_f32 {pk(t)}, {pk(d)}, {pk(d)}, {pk(t)}')
        a(f'v_add_f32 v{t}, v{t}, v{t+1}\nv_mul_f32 v{t}, v{t}, v{vmask}')
        rnd(t + 2)
        reduce32('add', t, t + 1)
        a(f'v_mul_f32 v{t}, {fb(1/448)}, v{t}')
        rnd(t)
        a(f'v_add_f32 v{t}, {fb(1e-5)}, v{t}')
        rnd(t)
        a(f'v_sqrt_f32 v{t}, v{t}')
        for i in range(8):
            a(f'v_pk_add_f32 {pk(f+2*i)}, {pk(f+2*i)}, {pk(t+2)} {neg}')
        rnd(t)
        a(f'v_rcp_f32 v{t}, v{t}')
        for i in range(8):
            a(f'v_cvt_pk_bf16_f32 v{raw+i}, v{f+2*i}, v{f+2*i+1}')
        for i in range(8):
            a(f'v_lshlrev_b32 v{f+2*i}, 16, v{raw+i}\nv_and_b32 v{f+2*i+1}, 0xffff0000, v{raw+i}')
        for i in range(8):
            a(f'v_pk_mul_f32 {pk(f+2*i)}, {pk(f+2*i)}, {pk(t)} op_sel_hi:[1,0]')
        for i in range(8):
            a(f'v_cvt_pk_bf16_f32 v{raw+i}, v{f+2*i}, v{f+2*i+1}')

    def slab_mfma(act, abase):
        a(f'v_lshrrev_b32 v{T0}, 4, v0\nv_and_b32 v{T0+1}, 15, v0')
        a(f'v_lshlrev_b32 v{T0+2}, 8, v{T0}\nv_lshl_add_u32 v{T0+2}, v{T0+1}, 3, v{T0+2}\nv_add_u32 v{T0+2}, {STG}, v{T0+2}')
        a(f'v_and_b32 v{T0+1}, 7, v0\nv_mul_u32_u24 v{T0+1}, {XS}, v{T0+1}\nv_lshl_add_u32 v{T0+1}, v{T0}, 4, v{T0+1}\nv_add_u32 v{T0+1}, {act}, v{T0+1}')

        def rd(ks):
            a(f'ds_read_b64_tr_b16 {ar(abase+4*ks,2)}, v{T0+2} offset:{ks*1024}')
            a(f'ds_read_b64_tr_b16 {ar(abase+4*ks+2,2)}, v{T0+2} offset:{ks*1024+128}')
            a(f'ds_read_b128 {ar(abase+56+4*ks,4)}, v{T0+1} offset:{ks*64}')
        for ks in range(4):
            rd(ks)
        for ks in range(14):
            if ks + 4 < 14:
                rd(ks + 4)
            left = min(13 - ks, 4)
            a(f's_waitcnt lgkmcnt({3*left})')
            c = '0' if ks == 0 else vr(DT, 4)
            a(f'v_mfma_f32_16x16x32_bf16 {vr(DT,4)}, {ar(abase+4*ks,4)}, {ar(abase+56+4*ks,4)}, {c}')

    VTW = 13 + 0

    def tag_setup():
        a(f's_mul_i32 s34, {TAG}, 0x3d2f1b65')
        a('s_mov_b32 s8, 0x07060500\ns_mov_b32 s9, 0x07060501\ns_mov_b32 s10, 0x07060502\ns_mov_b32 s11, 0x07060503')
        a('s_mov_b32 s12, 0x0c0c0400\ns_mov_b32 s13, 0x04000c0c')

    def tag_put(r, vw):
        for j in range(4):
            a(f'v_perm_b32 v{r+j}, v{r+j}, v{vw}, s{8+j}')

    def tag_get(dst, r, t):
        a(f'v_perm_b32 v{dst}, v{r+1}, v{r}, s12\nv_perm_b32 v{t}, v{r+3}, v{r+2}, s13\nv_or_b32 v{dst}, v{dst}, v{t}')

    def build_a(dst, src, e):
        for i in range(4):
            a(f'v_perm_b32 v{dst+i}, v{src}, v{src}, v{SEL+4*e+i}')

    XR = P
    XF = P + 8
    VMK = P + 24
    VXO = P + 25

    def common_ids():
        a('s_lshl_b32 s73, s21, 3\ns_add_u32 s73, s73, s20\ns_lshl2_add_u32 s74, s73, s22\ns_lshl2_add_u32 s79, s20, s22')
        a('s_mov_b32 s65, 0\ns_mov_b32 s66, 0x100000')
        a(f'v_mov_b32 v{VFL}, {FLG}\nv_mov_b32 v14, 1')

    def publish_slab(shift, sbase, wbase):
        a(f'v_lshrrev_b32 v8, 4, v0\nv_and_b32 v9, 15, v0\nv_lshlrev_b32 v10, {shift}, v9\nv_lshl_add_u32 v10, v8, 4, v10')
        a(f'v_cmp_gt_u32 vcc, 8, v9\nv_mov_b32 v9, 0x1000000\nv_cndmask_b32 v10, v9, v10, vcc')
        a(f's_lshl_b32 s67, {sbase}, 1\ns_add_u32 s67, s67, {wbase}')
        a(f'v_mov_b32 v5, {TAG}\nv_mov_b32 v7, {TAG}')
        a(f'v_cvt_pk_bf16_f32 v4, v{DT}, v{DT+1}\nv_cvt_pk_bf16_f32 v6, v{DT+2}, v{DT+3}')
        a('buffer_store_dwordx4 v[4:7], v10, s[52:55], s67 offen sc1')

    fin = 'L_stamp_out' if stamps else 'L_end'
    a('L_helper:')
    if prefetch and swarm:
        pass
    elif prefetch and pfsplit:
        a('s_getpc_b64 s[26:27]\nv_and_b32 v4, 7, v0\ns_lshl_b32 s67, s19, 3\nv_add_u32 v4, s67, v4\nv_lshlrev_b32 v4, 7, v4')
        a(f'v_min_u32 v5, L_end-L_helper-64, v4\nglobal_load_dword v{P}, v5, s[26:27]')
    elif prefetch:
        a('s_getpc_b64 s[26:27]\nv_lshlrev_b32 v4, 7, v0')
        for j in range(3):
            a(f'v_min_u32 v5, L_end-L_helper-64, v4\nglobal_load_dword v{P+j}, v5, s[26:27]\nv_add_u32 v4, 0x2000, v4')
    a('s_load_dwordx4 s[28:31], s[0:1], 24\ns_load_dwordx2 s[46:47], s[0:1], 96\ns_load_dwordx2 s[24:25], s[0:1], 0')
    a('s_load_dwordx8 s[36:43], s[0:1], 48\ns_load_dwordx2 s[44:45], s[0:1], 80')
    common_ids()
    a('v_lshrrev_b32 v10, 1, v0\nv_and_b32 v11, 1, v0\nv_lshlrev_b32 v11, 4, v11\nv_lshl_add_u32 v12, v10, 13, v11')
    a('s_lshl_b32 s68, s33, 5\ns_add_u32 s68, s68, s19\ns_lshl_b32 s68, s68, 5')
    a('s_waitcnt lgkmcnt(0)')
    if stamps:
        a('s_mov_b32 s80, s98')
    a('s_load_dword s64, s[46:47], 0')
    srd(56, 28, 448 * 8192)
    for j in range(0 if 'noslab' in diag else 14):
        a(f's_mov_b32 m0, {STG + j*1024}\ns_add_u32 s67, s68, {j << 18}')
        a(f'buffer_load_dwordx4 v12, s[56:59], s67 offen {wflags} lds')
    srd(52, 46, W_STAMP + 0x40000 if stamps else W_END)
    def clears():
        a('v_lshlrev_b32 v10, 4, v0\nv_mov_b32 v4, -1\nv_mov_b32 v5, -1\nv_mov_b32 v6, -1\nv_mov_b32 v7, -1')
        a(f's_lshl_b32 s75, s74, 11\ns_add_u32 s67, s75, {W_OP}\ns_add_u32 s75, s75, {W_YP}')
        cf = '' if 'clrplain' in diag else ('nt' if 'clrnt' in diag else ('sc0 sc1' if 'clrsys' in diag else 'sc1'))
        if 'clr1' in diag:
            a(f'buffer_store_dwordx4 v[4:7], v10, s[52:55], s67 offen {cf}')
        elif 'clrhalf' in diag:
            a('s_bitcmp1_b32 s2, 4\ns_cbranch_scc1 L_clrskip')
            for o in (0, 1024, 2048, 3072):
                a(f'buffer_store_dwordx4 v[4:7], v10, s[52:55], s67 offen offset:{o} {cf}\nbuffer_store_dwordx4 v[4:7], v10, s[52:55], s75 offen offset:{o} {cf}')
            a('L_clrskip:')
        elif 'noclear' not in diag:
            a(f'buffer_store_dwordx4 v[4:7], v10, s[52:55], s67 offen {cf}\nbuffer_store_dwordx4 v[4:7], v10, s[52:55], s67 offen offset:1024 {cf}')
            a(f'buffer_store_dwordx4 v[4:7], v10, s[52:55], s75 offen {cf}\nbuffer_store_dwordx4 v[4:7], v10, s[52:55], s75 offen offset:1024 {cf}')

    def warms():
        if warm:
            a('s_lshl_b32 s67, s74, 19\ns_add_u32 s6, s6, s67\ns_addc_u32 s7, s7, 0\nv_mov_b32 v13, 0')
            a('s_mul_i32 s67, s79, 128*896\ns_add_u32 s30, s30, s67\ns_addc_u32 s31, s31, 0')
            a('s_mul_i32 s67, s79, 56*896\ns_add_u32 s40, s40, s67\ns_addc_u32 s41, s41, 0')
            if swarm:
                for j, p in enumerate((6, 30, 40, 44, 36, 38, 42)):
                    a(f's_load_dword s{8+j}, s[{p}:{p+1}], 0')
                return 0
            for j, p in enumerate((6, 30, 40, 44)):
                a(f'global_load_dword v{P+4+j}, v13, s[{p}:{p+1}]')
            return 4
        return 0
    if prefetch and swarm:
        a('s_getpc_b64 s[26:27]\nL_pf:\ns_lshl_b32 s67, s19, 10\ns_min_u32 s67, s67, L_end-L_pf-1024\ns_add_u32 s26, s26, s67\ns_addc_u32 s27, s27, 0')
        for j in range(8):
            a(f's_load_dword s{8+j}, s[26:27], {j*128}')
    nwarm = 0
    if not lateclear:
        clears()
    a('s_barrier')
    if not lateclear and not swarm:
        nwarm = warms()
    a(f's_waitcnt vmcnt({nwarm}) lgkmcnt(0)')
    a('s_add_u32 s64, s64, 1')
    stamp(1)
    wait_flags(F_X, 4)
    stamp(2)
    slab_mfma(XN, 0)
    if 'nopub' not in diag:
        publish_slab(14, 's68', W_Q)
    stamp(3)
    a(f's_cmp_ge_u32 s19, {0 if "noh" in diag else 14}\ns_cbranch_scc1 L_noh')
    srd(56, 36, 448 * 3584)
    a('v_lshrrev_b32 v10, 1, v0\nv_and_b32 v11, 1, v0\nv_mul_u32_u24 v10, 3584, v10\nv_lshl_add_u32 v10, v11, 4, v10')
    a('s_mul_i32 s77, s33, 14\ns_add_u32 s77, s77, s19\ns_lshl_b32 s77, s77, 5')
    for j in range(14):
        a(f's_mov_b32 m0, {STG + j*1024}\ns_add_u32 s67, s77, {j*32*3584}')
        a(f'buffer_load_dwordx4 v10, s[56:59], s67 offen {wflags} lds')
    srd(60, 38, 3584)
    a(f'v_lshrrev_b32 v10, 4, v0\nv_lshlrev_b32 v10, 3, v10')
    a(f'buffer_load_dwordx2 v[{AT}:{AT+1}], v10, s[60:63], s77 offen')
    wait_flags(F_Y, 4, sleep)
    a('s_waitcnt vmcnt(0)')
    slab_mfma(YN, 0)
    a(f'v_lshlrev_b32 v8, 16, v{AT}\nv_and_b32 v9, 0xffff0000, v{AT}\nv_lshlrev_b32 v10, 16, v{AT+1}\nv_and_b32 v11, 0xffff0000, v{AT+1}')
    c0 = -2 * 0.7978845608028654 * LOG2E
    a(f's_mov_b32 s75, {fb(c0 * 0.044715)}\nv_mov_b32 v12, {fb(c0)}')
    for r in range(4):
        rnd(DT + r)
    for r in range(4):
        a(f'v_add_f32 v{DT+r}, v{DT+r}, v{8+r}')
    for r in range(4):
        rnd(DT + r)
    for r in range(4):
        a(f'v_mul_f32 v{8+r}, v{DT+r}, v{DT+r}\nv_fma_f32 v{8+r}, v{8+r}, s75, v12\nv_mul_f32 v{8+r}, v{8+r}, v{DT+r}')
    for r in range(4):
        a(f'v_exp_f32 v{8+r}, v{8+r}')
    for r in range(4):
        a(f'v_add_f32 v{8+r}, 1.0, v{8+r}')
    for r in range(4):
        a(f'v_rcp_f32 v{8+r}, v{8+r}')
    for r in range(4):
        a(f'v_mul_f32 v{DT+r}, v{DT+r}, v{8+r}')
    publish_slab(13, 's77', W_H)
    a('L_noh:')
    if swarm:
        warms()
    a(f's_lshl_b32 s67, s21, 14\ns_lshl_b32 s75, s20, 11\ns_add_u32 s76, s67, s75\ns_add_u32 s76, s76, {W_Q}')
    a(f'v_lshlrev_b32 v12, 5, v0\ns_mov_b32 s23, {qat - qstep}')
    a('L_qpoll:')
    if qat:
        a(f's_add_u32 s23, s23, {qstep}\ns_min_u32 s23, s23, {31 - lag}')
        wait_tile(0, sleep)
    if 'noqld' not in diag:
        a(f'buffer_load_dwordx4 v[16:19], v12, s[52:55], s76 offen sc1\nbuffer_load_dwordx4 v[8:11], v12, s[52:55], s76 offen offset:16 sc1')
    timeout()
    a('s_waitcnt vmcnt(0)')
    a(f'v_xor_b32 v17, {TAG}, v17\nv_xor_b32 v19, {TAG}, v19\nv_xor_b32 v9, {TAG}, v9\nv_xor_b32 v11, {TAG}, v11')
    a('v_or3_b32 v5, v17, v19, v9\nv_or_b32 v5, v5, v11\nv_cmp_ne_u32 vcc, 0, v5')
    if 'nopoll' not in diag:
        if qsleep:
            a(f's_cbranch_vccz L_qok\ns_sleep {qsleep}\ns_branch L_qpoll\nL_qok:')
        else:
            a('s_cbranch_vccnz L_qpoll')
    a(f'v_mov_b32 v4, v16\nv_mov_b32 v5, v18\nv_mov_b32 v6, v8\nv_mov_b32 v7, v10\nv_lshlrev_b32 v12, 4, v0')
    a(f'v_add_u32 v13, {QL}, v12\nds_write_b128 v13, v[4:7]')
    a(f'ds_write_b32 v{VFL}, v14 offset:{F_Q}')
    stamp(4)
    if lateclear:
        if 'clr' in diag:
            clears()
        if rwarm is not None:
            a(f'v_and_b32 v10, 15, v0\nv_lshlrev_b32 v10, 7, v10\ns_lshl_b32 s75, s74, 11\nv_add_u32 v10, s75, v10')
            a(f'v_lshrrev_b32 v11, 4, v0\nv_mov_b32 v4, {W_OP}\nv_mov_b32 v5, {W_YP}\nv_cmp_eq_u32 vcc, 1, v11\nv_cndmask_b32 v4, v4, v5, vcc')
            if rwall:
                a(f'v_mov_b32 v5, {W_SC}\nv_cmp_eq_u32 vcc, 2, v11\nv_cndmask_b32 v4, v4, v5, vcc')
                a(f'v_add_u32 v10, v10, v4\ns_lshl_b32 s75, s74, 7\ns_add_u32 s75, s75, {W_ST}\nv_mov_b32 v5, s75\nv_cmp_eq_u32 vcc, 3, v11\nv_cndmask_b32 v10, v10, v5, vcc')
            else:
                a(f'v_add_u32 v10, v10, v4\nv_mov_b32 v5, 0x1000000\nv_cmp_lt_u32 vcc, 1, v11\nv_cndmask_b32 v10, v10, v5, vcc')
            a(f'buffer_load_dword v29, v10, s[52:55], 0 offen {rwarm}')
        if not swarm:
            warms()
    a(f's_cmp_lg_u32 s22, 0\ns_cbranch_scc1 L_noct\nv_mov_b32 v12, 0\ns_mul_i32 s67, s73, {ctstride}\ns_add_u32 s67, s67, {W_CT}')
    a('s_mov_b64 exec, 1\nbuffer_store_dword v12, off, s[52:55], s67 sc1\ns_mov_b64 exec, -1\nL_noct:')
    stamp(5)
    VR3, VR4 = P + 16, P + 17
    srd(48, 24, 7168)
    srd(56, 42, 896)
    a('v_and_b32 v11, 3, v0\nv_bfe_u32 v10, v0, 2, 2\nv_lshl_add_u32 v10, v11, 2, v10\nv_lshlrev_b32 v10, 1, v10')
    a('s_lshl_b32 s75, s79, 5\ns_mul_i32 s78, s21, 896\ns_add_u32 s78, s78, s75')
    a('buffer_load_ushort v8, v10, s[48:51], s78 offen\nbuffer_load_ushort v9, v10, s[56:59], s75 offen')
    a(f'v_mov_b32 v13, 0x1000000\nv_cmp_gt_u32 vcc, 16, v0\nv_cndmask_b32 v{VR4}, v13, v10, vcc')
    a(f'v_lshrrev_b32 v10, 2, v0\nv_lshlrev_b32 v10, 11, v10\nv_lshl_add_u32 v{VR3}, v11, 4, v10')
    a(f's_lshl_b32 s77, s21, 16\ns_lshl_b32 s67, s79, 6\ns_add_u32 s77, s77, s67\ns_add_u32 s77, s77, {W_YP}\ns_add_u32 s72, s77, 0x8000')
    a(f's_waitcnt vmcnt(0)\nv_lshlrev_b32 v8, 16, v8\nv_lshlrev_b32 v9, 16, v9\nv_add_f32 v{VXB}, v8, v9')
    wait_flags(F_M, 4, 4)
    a(f'v_lshlrev_b32 v12, 4, v0\nv_add_u32 v11, {SC}, v12')
    a(f'v_cmp_gt_u32 vcc, {4*S - 64*(NT-1)}, v0\nv_cndmask_b32 v28, v13, v12, vcc')
    for j in range(NT):
        a(f'ds_read_b128 v[{20+4*j}:{23+4*j}], v11 offset:{j*1024}')
    a(f's_lshl_b32 s75, s74, 11\ns_add_u32 s75, s75, {W_SC}\ns_waitcnt lgkmcnt(0)')
    for j in range(NT):
        a(f'buffer_store_dwordx4 v[{20+4*j}:{23+4*j}], v{28 if j == NT-1 else 12}, s[52:55], s75 offen offset:{j*1024} sc1')
    wait_flags(F_L, 4, sleep)
    a(f'v_bfe_u32 v10, v0, 3, 1\nv_lshl_add_u32 v10, v10, 2, v{VFL}')
    a(f'ds_read2_b32 v[4:5], v10 offset0:{LS//4} offset1:{LS//4+2}\nds_read2_b32 v[6:7], v10 offset0:{LS//4+4} offset1:{LS//4+6}')
    a(f'ds_read2_b32 v[16:17], v10 offset0:{MX//4} offset1:{MX//4+2}\nds_read2_b32 v[18:19], v10 offset0:{MX//4+4} offset1:{MX//4+6}')
    a(f'v_and_b32 v8, 0x37, v0\nv_cmp_eq_u32 vcc, 0, v8\nv_lshlrev_b32 v8, 1, v0\nv_cndmask_b32 v8, v13, v8, vcc')
    a(f's_lshl_b32 s67, s74, 7\ns_add_u32 s67, s67, {W_ST}\ns_waitcnt lgkmcnt(0)')
    a(f'v_add_f32 v4, v4, v5\nv_add_f32 v6, v6, v7\nv_add_f32 v6, v4, v6')
    a(f'v_max3_f32 v4, v16, v17, v18\nv_max_f32 v4, v4, v19\nv_mov_b32 v5, {TAG}\nv_mov_b32 v7, {TAG}')
    a('s_waitcnt vmcnt(0)\nbuffer_store_dwordx4 v[4:7], v8, s[52:55], s67 offen sc1')
    stamp(6)
    a(f's_lshl_b32 s67, s73, 9\ns_add_u32 s67, s67, {W_ST}\ns_add_u32 s26, s46, s67\ns_addc_u32 s27, s47, 0')
    a('L_stp:')
    for q in range(4):
        a(f's_load_dwordx8 s[{(4,12,36,56)[q]}:{(4,12,36,56)[q]+7}], s[26:27], {q*128} glc')
    timeout()
    a('s_waitcnt lgkmcnt(0)')
    a(f's_xor_b32 s67, s5, {TAG}')
    for q in range(4):
        for o in (1, 3, 5, 7):
            if (q, o) != (0, 1):
                a(f's_xor_b32 s75, s{(4,12,36,56)[q]+o}, {TAG}\ns_or_b32 s67, s67, s75')
    a('s_cmp_eq_u32 s67, 0\ns_cbranch_scc1 L_stp_ok\ns_sleep 8\ns_branch L_stp\nL_stp_ok:')
    a(f's_lshl_b32 s67, s73, 13\ns_add_u32 s67, s67, {W_SC}\ns_add_u32 s72, s67, 4096')
    pieces = [q for q in range(8) if (q & 1) < NT]
    for q in pieces:
        a(f'buffer_load_dwordx4 {vr(FR+4*q,4)}, v{28 if (q&1) == NT-1 else 12}, s[52:55], {"s67" if q < 4 else "s72"} offen offset:{(q&3)*1024} sc1')
    a(f's_mov_b32 s75, {fb(LOG2E/16)}')
    for u in range(2):
        for q in range(4):
            a(f'v_mov_b32 v{4+q}, s{(4,12,36,56)[q]+4*u}\nv_mov_b32 v{8+q}, s{(4,12,36,56)[q]+4*u+2}')
        a(f'v_max3_f32 v{16+u}, v4, v5, v6\nv_max_f32 v{16+u}, v{16+u}, v7\nv_mul_f32 v{22+u}, {fb(-LOG2E/16)}, v{16+u}')
        for q in range(4):
            a(f'v_fma_f32 v{4+q}, v{4+q}, s75, v{22+u}')
        for q in range(4):
            a(f'v_exp_f32 v{4+q}, v{4+q}')
        a(f'v_mul_f32 v8, v8, v4\nv_fmac_f32 v8, v9, v5\nv_fmac_f32 v8, v10, v6\nv_fmac_f32 v8, v11, v7\nv_rcp_f32 v{18+u}, v8')
        a(f'v_mov_b32 v{20+u}, v4')
        for q in range(1, 4):
            a(f's_cmp_eq_u32 s22, {q}\ns_cselect_b64 vcc, -1, 0\nv_cndmask_b32 v{20+u}, v{20+u}, v{4+q}, vcc')
    a(f'ds_write_b32 v{VFL}, v20 offset:{FO}\nds_write_b32 v{VFL}, v21 offset:{FO+4}\nds_write_b32 v{VFL}, v18 offset:{FO+8}\nds_write_b32 v{VFL}, v19 offset:{FO+12}')
    a(f'v_add_u32 v11, {PT}, v12')
    for n_, q in enumerate(pieces):
        a(f's_waitcnt vmcnt({len(pieces)-1-n_})')
        for j in range(4):
            r = FR + 4 * q + j
            a(f'v_lshlrev_b32 v{4+2*(j&1)}, 16, v{r}\nv_and_b32 v{5+2*(j&1)}, 0xffff0000, v{r}')
            a(f'v_fma_f32 v{4+2*(j&1)}, v{4+2*(j&1)}, s75, v{22+(j>>1)}\nv_fma_f32 v{5+2*(j&1)}, v{5+2*(j&1)}, s75, v{22+(j>>1)}')
            a(f'v_exp_f32 v{4+2*(j&1)}, v{4+2*(j&1)}\nv_exp_f32 v{5+2*(j&1)}, v{5+2*(j&1)}')
            a(f'v_cvt_pk_bf16_f32 v{r}, v{4+2*(j&1)}, v{5+2*(j&1)}')
        a(f'ds_write_b128 v11, {vr(FR+4*q,4)} offset:{q*1024}')
    a(f'ds_write_b32 v{VFL}, v14 offset:{F_P}')
    stamp(7)
    srd(56, 44, 7168)
    a('s_add_u32 s72, s77, 0x8000')
    a(f's_mul_i32 s67, s73, {ctstride}\ns_add_u32 s67, s67, {W_CT}\ns_add_u32 s26, s46, s67\ns_addc_u32 s27, s47, 0')
    a(f's_mov_b32 s23, {64 + NP - LEAD - 1}\nv_add_u32 v11, {CQ}, v{VFL}')
    a('L_claim:')
    wait_tile(0, sleep)
    if stamps:
        a('s_memrealtime s[96:97]\ns_waitcnt lgkmcnt(0)')
    a('s_mov_b32 s24, 1\ns_atomic_add s24, s[26:27], 0 glc\ns_waitcnt lgkmcnt(0)')
    if stamps:
        a('s_memrealtime s[98:99]\ns_waitcnt lgkmcnt(0)\ns_sub_u32 s96, s98, s96\ns_max_u32 s92, s92, s96\ns_add_u32 s93, s93, s96\ns_add_u32 s94, s94, 1')
    a(f's_add_u32 s24, s24, 1\ns_cmp_gt_u32 s24, {NCH}\ns_cbranch_scc1 L_claim_end\nv_mov_b32 v4, s24\nds_write_b32 v11, v4')
    a('v_add_u32 v11, 4, v11\ns_add_u32 s23, s23, 2\ns_branch L_claim')
    a('L_claim_end:')
    a(f's_add_u32 s24, s23, {LEAD + 1}\nv_mov_b32 v4, s24\nds_write_b32 v11, v4\nds_write_b32 v11, v4 offset:4')
    stamp(8)
    a(f's_cmp_ge_u32 s79, 28\ns_cbranch_scc1 {fin}')
    tag_setup()
    a('s_barrier')
    a('L_hop2:')
    a(f'buffer_load_dwordx4 v[8:11], v{VR3}, s[52:55], s77 offen sc1\nbuffer_load_dwordx4 {vr(FR,4)}, v{VR3}, s[52:55], s72 offen sc1')
    timeout()
    a('s_waitcnt vmcnt(1)')
    tag_get(12, 8, 13)
    a('s_waitcnt vmcnt(0)')
    tag_get(4, FR, 5)
    a('v_xor_b32 v12, s34, v12\nv_xor_b32 v4, s34, v4\nv_or_b32 v12, v12, v4\nv_cmp_ne_u32 vcc, 0, v12')
    if 'nowait' in diag:
        pass
    elif h2sleep:
        a(f's_cbranch_vccz L_hop2ok\ns_sleep {h2sleep}\ns_branch L_hop2\nL_hop2ok:')
    else:
        a('s_cbranch_vccnz L_hop2')
    a(f'v_pk_add_f32 v[8:9], v[8:9], v[{FR}:{FR+1}]\nv_pk_add_f32 v[10:11], v[10:11], v[{FR+2}:{FR+3}]')
    a('v_add_f32_dpp v4, v8, v8 row_ror:8 row_mask:0xf bank_mask:0x3\nv_add_f32_dpp v5, v9, v9 row_ror:8 row_mask:0xf bank_mask:0x3')
    a('v_add_f32_dpp v4, v10, v10 row_ror:8 row_mask:0xf bank_mask:0xc\nv_add_f32_dpp v5, v11, v11 row_ror:8 row_mask:0xf bank_mask:0xc')
    a('v_add_f32_dpp v6, v4, v4 row_shl:4 row_mask:0xf bank_mask:0x5\nv_add_f32_dpp v6, v5, v5 row_shr:4 row_mask:0xf bank_mask:0xa')
    reduce_rows('add', 6, 7)
    a(f'v_add_f32 v6, v6, v{VXB}\nv_cvt_pk_bf16_f32 v6, v6, v6')
    a(f'buffer_store_short v6, v{VR4}, s[56:59], s78 offen')
    stamp(10)
    if spin is not None:
        a(f's_sub_u32 s96, s{80+spin}, s80')
        a('L_spin:\ns_memrealtime s[98:99]\ns_waitcnt lgkmcnt(0)\ns_sub_u32 s97, s98, s90\ns_cmp_lt_u32 s97, s96\ns_cbranch_scc1 L_spin')
    a(f's_cmp_lg_u32 s74, 0\ns_cbranch_scc1 {fin}')
    a(f'v_mov_b32 v4, {TAG}\ns_mov_b64 exec, 1\nbuffer_store_dword v4, off, s[52:55], 0 sc1')
    a(f's_mov_b64 exec, -1\ns_branch {fin}')

    a('L_consumer:')
    a('s_load_dwordx2 s[24:25], s[0:1], 0\ns_load_dwordx2 s[46:47], s[0:1], 96')
    a('s_load_dwordx2 s[30:31], s[0:1], 32\ns_load_dwordx2 s[40:41], s[0:1], 64')
    a('s_sub_u32 s23, s3, 1')
    a(f'v_lshrrev_b32 v6, 5, v0\nv_and_b32 v7, 31, v0\ns_lshl_b32 s67, s23, 1\nv_add_u32 v6, s67, v6')
    a(f'v_mul_u32_u24 v8, 896, v6\nv_lshl_add_u32 v8, v7, 5, v8\nv_cmp_gt_u32 vcc, 28, v7')
    a(f'v_mov_b32 v9, 0x10000\nv_cndmask_b32 v8, v9, v8, vcc')
    a('s_mov_b32 s50, 7168\ns_mov_b32 s51, 0x20000')
    a('s_waitcnt lgkmcnt(0)')
    if stamps:
        a('s_mov_b32 s80, s98')
    a('s_mov_b32 s48, s24\ns_mov_b32 s49, s25')
    a(f'buffer_load_dwordx4 {vr(XR,4)}, v8, s[48:51], 0 offen\nbuffer_load_dwordx4 {vr(XR+4,4)}, v8, s[48:51], 0 offen offset:16')
    a('s_load_dword s64, s[46:47], 0')
    a(f'v_cndmask_b32 v{VMK}, 0, 1.0, vcc')
    a(f'v_mul_u32_u24 v{VXO}, {XS}, v6\nv_lshl_add_u32 v{VXO}, v7, 5, v{VXO}\nv_add_u32 v{VXO}, {XN}, v{VXO}')
    a('s_mov_b64 s[70:71], vcc')
    common_ids()
    a(f's_lshl_b32 s67, s23, 2\nv_add_u32 v15, s67, v{VFL}')
    srd(52, 46, W_STAMP + 0x40000 if stamps else W_END)
    a('v_and_b32 v10, 1, v0\nv_bfe_u32 v11, v0, 1, 2\nv_cmp_eq_u32 vcc, 0, v10')
    a('v_mov_b32 v12, 0x01000c0c\nv_mov_b32 v13, 0x0c0c0100\nv_cndmask_b32 v12, v12, v13, vcc')
    a('v_mov_b32 v10, 0x03020c0c\nv_mov_b32 v13, 0x0c0c0302\nv_cndmask_b32 v13, v10, v13, vcc')
    a('v_mov_b32 v10, 0x0c0c0c0c')
    for i in range(4):
        a(f'v_cmp_eq_u32 vcc, {i}, v11\nv_cndmask_b32 v{SEL+i}, v10, v12, vcc\nv_cndmask_b32 v{SEL+4+i}, v10, v13, vcc')
    a('v_lshrrev_b32 v10, 4, v0\nv_and_b32 v11, 15, v0\ns_lshl_b32 s67, s23, 13\nv_lshlrev_b32 v12, 9, v11\nv_add_u32 v12, s67, v12')
    for j in range(4):
        a(f'v_add_u32 v13, {4*j}, v10\nv_xor_b32 v13, v13, v11\nv_lshl_add_u32 v{KA+j}, v13, 4, v12\nv_add_u32 v{KA+4+j}, 0x10000, v{KA+j}')
    a(f'v_lshlrev_b32 v12, 11, v10\nv_lshl_add_u32 v12, v11, 4, v12\nv_add_u32 v{VA}, s67, v12\nv_add_u32 v{VA+1}, 0x10000, v{VA}')
    a(f'v_mov_b32 v{VM}, 0xff800000')
    a('s_barrier')
    a('s_waitcnt vmcnt(0)')
    stamp(1)
    layernorm(XR, XF, VMK)
    a('s_mov_b64 exec, s[70:71]')
    a(f'ds_write_b128 v{VXO}, {vr(XR,4)} offset:0\nds_write_b128 v{VXO}, {vr(XR+4,4)} offset:16')
    a('s_mov_b64 exec, -1')
    set_flag(F_X)
    stamp(2)
    a(f's_cmp_ge_u32 s19, 14\ns_cbranch_scc1 L_noln2')
    layernorm(XR, XF, VMK)
    a('s_mov_b64 exec, s[70:71]')
    a(f'ds_write_b128 v{VXO}, {vr(XR,4)} offset:{YN-XN}\nds_write_b128 v{VXO}, {vr(XR+4,4)} offset:{YN-XN+16}')
    a('s_mov_b64 exec, -1')
    set_flag(F_Y)
    a('L_noln2:')
    a('s_waitcnt lgkmcnt(0)\ns_add_u32 s64, s64, 1')

    def kfrag(k, ks):
        return ar(32 + 32 * k + 4 * ks, 4) if k < NDRAIN - 1 else vr(FR + 4 * ks, 4)

    def k_reads(k):
        for ks in range(8):
            a(f'ds_read_b128 {kfrag(k, ks)}, v{KA + (4 if k & 2 else 0) + (ks & 3)} offset:{(k&1)*32768 + (ks>>2)*256}')

    def k_finish(k):
        a(f'v_max3_f32 v{VM}, v{VM}, v{DT}, v{DT+1}\nv_max3_f32 v{VM}, v{VM}, v{DT+2}, v{DT+3}')
        a(f'v_cvt_pk_bf16_f32 v{P+2*k}, v{DT}, v{DT+1}\nv_cvt_pk_bf16_f32 v{P+2*k+1}, v{DT+2}, v{DT+3}')

    for k in range(NDRAIN):
        wait_tile(4 * k, sleep)
        k_reads(k)
        a(f'v_mov_b32 v{T0+1}, {k+1}\ns_waitcnt lgkmcnt(0)\nds_write_b32 v15, v{T0+1} offset:{F_CONS}')
    stamp(3)
    wait_flags(F_Q, 1, sleep)
    stamp(4)
    a(f'v_bfe_u32 v10, v0, 3, 1\nv_lshrrev_b32 v11, 4, v0\nv_lshlrev_b32 v10, 9, v10\nv_lshl_add_u32 v10, v11, 4, v10\nv_add_u32 v10, {QL}, v10')
    for ks in range(8):
        a(f'ds_read_b128 {ar(4*ks,4)}, v10 offset:{ks*64}')
    for k in range(NDRAIN):
        for ks in range(8):
            if k == 0:
                a(f's_waitcnt lgkmcnt({7-ks})')
            c = '0' if ks == 0 else vr(DT, 4)
            a(f'v_mfma_f32_16x16x32_bf16 {vr(DT,4)}, {kfrag(k, ks)}, {ar(4*ks,4)}, {c}')
        k_finish(k)

    for k in range(NDRAIN, 16):
        wait_tile(4 * k, sleep)
        k_reads(k)
        a(f'v_mov_b32 v{T0+1}, {k+1}')
        for ks in range(8):
            a(f's_waitcnt lgkmcnt({7-ks})')
            if ks == 7:
                a(f'ds_write_b32 v15, v{T0+1} offset:{F_CONS}')
            c = '0' if ks == 0 else vr(DT, 4)
            a(f'v_mfma_f32_16x16x32_bf16 {vr(DT,4)}, {vr(FR+4*ks,4)}, {ar(4*ks,4)}, {c}')
        k_finish(k)
        if k == 9:
            srd(60, 40, 1792 * 896)
            a('s_lshl2_add_u32 s75, s20, s22\ns_lshl2_add_u32 s75, s75, s23\ns_mul_i32 s78, s75, 14')
            a(f'v_lshrrev_b32 v10, 3, v0\nv_and_b32 v11, 7, v0\nv_mul_u32_u24 v10, {2*896}, v10\nv_lshl_add_u32 v10, v11, 4, v10')
            a('s_mul_i32 s67, s78, 896\ns_add_u32 s75, s67, 896')
            for t in range(0 if now2 else 2):
                for cb in range(7):
                    a(f'buffer_load_dwordx4 {ar(32+4*(t*7+cb),4)}, v10, s[60:63], {"s67" if t == 0 else "s75"} offen offset:{cb*128} {wflags}')
        if k == 11:
            l = lab('hp')
            a(f's_lshl_b32 s67, s21, 13\ns_lshl_b32 s75, s78, 2\ns_add_u32 s67, s67, s75\ns_add_u32 s67, s67, {W_H}')
            a(f'v_lshrrev_b32 v10, 3, v0\nv_cmp_gt_u32 s[68:69], 7, v10\nv_min_u32 v10, 6, v10\nv_lshlrev_b32 v10, 3, v10')
            a(f'{l}:')
            a(f'buffer_load_dwordx2 v[4:5], v10, s[52:55], s67 offen sc1')
            timeout()
            a(f's_waitcnt vmcnt(0)\nv_cmp_ne_u32 vcc, {TAG}, v5')
            if 'noh' not in diag:
                a(f's_cbranch_vccnz {l}')
            a('v_cndmask_b32 v4, 0, v4, s[68:69]')
            build_a(AT, 4, 0)
            build_a(AT + 4, 4, 1)
            for t in range(2):
                for cb in range(7):
                    c = '0' if t == 0 else ar(YA + 4 * cb, 4)
                    a(f'v_mfma_f32_16x16x32_bf16 {ar(YA+4*cb,4)}, {vr(AT+4*t,4)}, {ar(32+4*(t*7+cb),4)}, {c}')
    stamp(5)
    a(f'v_lshrrev_b32 v10, 3, v0\nv_lshlrev_b32 v10, 3, v10\ns_lshl_b32 s67, s23, 6\ns_add_u32 s67, s67, {SC}\nv_add_u32 v10, s67, v10')
    for k in range(NP // 4, 16):
        a(f'ds_write_b64 v10, v[{P+2*k}:{P+2*k+1}] offset:{(k - NP//4)*256}')
    reduce_rows('max', VM, T0)
    rnd(VM)
    a(f'v_bfe_u32 v10, v0, 3, 1\nv_lshl_add_u32 v10, v10, 2, v{VFL}\ns_lshl_b32 s67, s23, 3\nv_add_u32 v11, s67, v10')
    a(f'ds_write_b32 v11, v{VM} offset:{MX}')
    set_flag(F_M)
    wait_flags(F_M, 4)
    a(f'ds_read2_b32 v[4:5], v10 offset0:{MX//4} offset1:{MX//4+2}\nds_read2_b32 v[6:7], v10 offset0:{MX//4+4} offset1:{MX//4+6}')
    a(f's_mov_b32 s75, {fb(LOG2E/16)}\nv_mov_b32 v{VL}, 0\nv_mov_b32 v12, 0')
    a(f's_waitcnt lgkmcnt(0)\nv_max3_f32 v4, v4, v5, v6\nv_max_f32 v{VM}, v4, v7\nv_mul_f32 v13, {fb(-LOG2E/16)}, v{VM}')
    for j in range(0, 32, 2):
        a(f'v_lshlrev_b32 v4, 16, v{P+j}\nv_and_b32 v5, 0xffff0000, v{P+j}\nv_lshlrev_b32 v6, 16, v{P+j+1}\nv_and_b32 v7, 0xffff0000, v{P+j+1}')
        for r in range(4):
            a(f'v_fma_f32 v{4+r}, v{4+r}, s75, v13')
        for r in range(4):
            a(f'v_exp_f32 v{4+r}, v{4+r}')
        a(f'v_add_f32 v{VL}, v{VL}, v4\nv_add_f32 v12, v12, v5\nv_cvt_pk_bf16_f32 v{P+j}, v4, v5')
        a(f'v_add_f32 v{VL}, v{VL}, v6\nv_add_f32 v12, v12, v7\nv_cvt_pk_bf16_f32 v{P+j+1}, v6, v7')
    a(f'v_add_f32 v{VL}, v{VL}, v12')
    reduce_rows('add', VL, T0)
    a(f'ds_write_b32 v11, v{VL} offset:{LS}')
    set_flag(F_L)
    srd(60, 30, 4096 * 896)
    a('s_lshl_b32 s75, s20, 5\ns_lshl2_add_u32 s78, s22, s23\ns_add_u32 s75, s75, s78\ns_mul_i32 s78, s75, 16*896')
    a(f'v_lshrrev_b32 v10, 4, v0\nv_bfe_u32 v11, v0, 3, 1\nv_lshl_add_u32 v10, v11, 6, v10\nv_and_b32 v11, 7, v0\nv_mul_u32_u24 v10, {4*896}, v10\nv_lshl_add_u32 v{VL}, v11, 4, v10')

    def v_mfmas(preg, first, extra, done):
        for r in range(4):
            at = AT + 4 * (r & 1)
            if r == 0 and extra:
                a('s_waitcnt lgkmcnt(8)')
            build_a(at, preg + (r >> 1), r & 1)
            for hf in range(2):
                a(f's_waitcnt lgkmcnt({7-(2*r+hf)})')
                if r == 3 and hf == 1:
                    done()
                c = '0' if (first and r == 0) else vr(OA + 4 * hf, 4)
                a(f'v_mfma_f32_16x16x32_bf16 {vr(OA+4*hf,4)}, {vr(at,4)}, {vr(FR+4*(2*r+hf),4)}, {c}')

    for k in range(NP // 4):
        wait_tile(64 + 4 * k, sleep)
        for r in range(4):
            for hf in range(2):
                a(f'ds_read_b128 {vr(FR+4*(2*r+hf),4)}, v{VA + (1 if k & 2 else 0)} offset:{(k&1)*32768 + r*512 + hf*256}')
        a(f'v_mov_b32 v{T0+1}, {k+17}')
        v_mfmas(P + 2 * k, k == 0, False, lambda: a(f'ds_write_b32 v15, v{T0+1} offset:{F_CONS}'))
        if k < 7 and not nowo:
            for j in range(4 * k, 4 * k + 4):
                t, cb = divmod(j, 7)
                if j % 7 == 0 or j % 4 == 0:
                    a(f's_add_u32 s67, s78, {t*896}')
                a(f'buffer_load_dwordx4 {ar(4*j,4)}, v{VL}, s[60:63], s67 offen offset:{cb*128} {wflags}')
    VO1, VO2, VO3, VO4, VO5 = P, P + 1, P + 2, P + 3, P + 4
    a(f'v_lshrrev_b32 v10, 5, v0\nv_and_b32 v11, 15, v0\nv_lshlrev_b32 v10, 10, v10\nv_lshl_add_u32 v10, v11, 5, v10')
    a(f'v_bfe_u32 v11, v0, 4, 1\nv_lshl_add_u32 v{VO3}, v11, 4, v10\nv_mov_b32 v13, 0x1000000')
    a(f'v_lshlrev_b32 v10, 4, v0\nv_add_u32 v{VO1}, {OPL}, v10')
    a(f's_lshl_b32 s68, s74, 11\ns_add_u32 s68, s68, {W_OP}')
    a(f'v_and_b32 v10, 3, v0\nv_bfe_u32 v11, v0, 3, 1\nv_lshl_add_u32 v10, v10, 1, v11\nv_lshrrev_b32 v11, 4, v0\nv_lshlrev_b32 v10, 10, v10\nv_lshl_add_u32 v{VO4}, v11, 4, v10')
    a(f's_lshl_b32 s69, s73, 13\ns_lshl2_add_u32 s67, s22, s23\ns_lshl_b32 s67, s67, 6\ns_add_u32 s69, s69, s67\ns_add_u32 s69, s69, {W_OP}')
    a(f'v_lshrrev_b32 v10, 5, v0\ns_lshl_b32 s67, s23, 1\nv_add_u32 v10, s67, v10\nv_mul_u32_u24 v10, {RS}, v10')
    a(f'v_and_b32 v11, 7, v0\nv_lshl_add_u32 v10, v11, 5, v10\nv_bfe_u32 v11, v0, 4, 1\nv_lshl_add_u32 v10, v11, 4, v10\nv_add_u32 v{VO5}, {RED}, v10')
    VR1, VR2, VQ, VPT, VPP, VVA = P + 5, P + 6, P + 7, P + 8, P + 10, P + 12
    a(f'v_lshrrev_b32 v10, 1, v0\nv_min_u32 v10, 27, v10\ns_mul_i32 s67, s23, 28\nv_add_u32 v10, s67, v10\nv_lshlrev_b32 v10, 4, v10')
    a(f'v_and_b32 v11, 1, v0\nv_mul_u32_u24 v12, {4*RS}, v11\nv_add3_u32 v{VR1}, v10, v12, v{VFL}')
    a(f'v_add_u32 v{VR1}, {RED-FLG}, v{VR1}')
    a(f'v_cmp_gt_u32 vcc, 56, v0\nv_cndmask_b32 v10, v13, v10, vcc\nv_cmp_eq_u32 vcc, 0, v11\nv_cndmask_b32 v{VR2}, v13, v10, vcc')
    a(f's_lshl_b32 s76, s74, 11\ns_add_u32 s76, s76, {W_YP}')
    a(f's_lshr_b32 s67, s23, 1\ns_lshl_b32 s67, s67, 2\ns_add_u32 s67, s67, {FLG + CQ}\nv_mov_b32 v{VQ}, s67')
    a(f'v_lshrrev_b32 v10, 3, v0\nv_lshlrev_b32 v10, 3, v10\ns_and_b32 s67, s23, 1\ns_lshl_b32 s67, s67, 6\ns_add_u32 s67, s67, {PT}\nv_add_u32 v{VPT}, s67, v10')
    VFA, VFB, OF = P + 13, P + 14, P + 16
    a(f'v_lshrrev_b32 v10, 4, v0\nv_bfe_u32 v11, v0, 3, 1\nv_and_b32 v12, 1, v10\nv_lshl_add_u32 v11, v12, 1, v11\nv_xor_b32 v11, s23, v11')
    a(f'v_lshlrev_b32 v11, 5, v11\nv_lshl_add_u32 v11, v10, 10, v11\nv_bfe_u32 v12, v0, 2, 2\nv_lshl_add_u32 v11, v12, 7, v11\nv_and_b32 v12, 3, v0\nv_lshl_add_u32 v{VFA}, v12, 3, v11')
    a(f'v_lshrrev_b32 v11, 5, v0\nv_bfe_u32 v12, v0, 4, 1\nv_lshlrev_b32 v11, 6, v11\nv_lshl_add_u32 v11, v12, 5, v11\nv_bfe_u32 v12, v0, 3, 1\nv_lshl_add_u32 v11, v12, 3, v11')
    a(f'v_add_u32 v{VFB}, {PT + (S - NF)*64}, v11')
    tag_setup()
    VTG = P + 9
    a(f'v_mov_b32 v{VTG}, s34')
    wait_flags(F_P, 1, sleep)
    a(f'v_lshrrev_b32 v10, 5, v0\nv_lshl_add_u32 v10, v10, 2, v{VFL}\nds_read_b32 v11, v10 offset:{FO}')
    a(f'v_bfe_u32 v10, v0, 3, 1\nv_lshl_add_u32 v10, v10, 2, v{VFL}\nds_read_b32 v{VW}, v10 offset:{FO+8}')
    a(f's_add_u32 s72, s23, {64 + NP}\ns_waitcnt vmcnt(0) lgkmcnt(0)')
    for j in range(8):
        a(f'v_mul_f32 v{OA+j}, v{OA+j}, v11')
    stamp(10)
    a('L_pool:')
    a(f'ds_read_b32 v4, v{VQ}\nds_read_b32 v5, v{VFL} offset:{F_LAND}\ns_waitcnt lgkmcnt(0)')
    a(f'v_readfirstlane_b32 s24, v4\nv_readfirstlane_b32 s65, v5\ns_cmp_gt_u32 s24, {NCH}\ns_cbranch_scc1 L_pool_end')
    a('s_cmp_gt_i32 s65, s72\ns_cbranch_scc1 L_pool_go')
    timeout()
    if psleep:
        a(f's_sleep {psleep}')
    a('s_branch L_pool\nL_pool_go:')
    a(f's_cmp_eq_u32 s24, 0\ns_cbranch_scc1 L_pool')
    a('s_sub_u32 s24, s24, 1\ns_and_b32 s25, s24, 3\ns_lshl_b32 s25, s25, 11\ns_lshr_b32 s24, s24, 2\ns_lshl_b32 s24, s24, 7\ns_add_u32 s24, s24, s25')
    a(f's_and_b32 s25, s72, 12\ns_lshl_b32 s25, s25, 13\nv_add_u32 v4, s24, v{VPT}\nv_add_u32 v{VVA}, s25, v{VA}')
    a(f'ds_read_b64 v[{VPP}:{VPP+1}], v4')
    for r in range(4):
        for hf in range(2):
            a(f'ds_read_b128 {vr(FR+4*(2*r+hf),4)}, v{VVA} offset:{r*512 + hf*256}')
    a(f's_lshr_b32 s25, s72, 2\ns_add_u32 s25, s25, 1\nv_mov_b32 v{T0+1}, s25\nv_add_u32 v{VQ}, 8, v{VQ}\ns_add_u32 s72, s72, 4')
    v_mfmas(VPP, False, True, lambda: a(f'ds_write_b32 v15, v{T0+1} offset:{F_CONS}'))
    a('s_branch L_pool')
    a('L_pool_end:')
    a('s_sub_u32 s25, s23, s24\ns_and_b32 s25, s25, 3\ns_cmp_eq_u32 s25, 3\ns_cbranch_scc1 L_collect')
    a(f's_lshl_b32 s67, s25, 11\nv_add_u32 v{VO2}, s67, v{VO1}\ns_lshl_b32 s67, s25, 2\nv_add_u32 v4, s67, v{VFL}')
    a(f'ds_write_b128 v{VO2}, {vr(OA,4)}\nds_write_b128 v{VO2}, {vr(OA+4,4)} offset:1024\nds_write_b32 v4, v14 offset:{F_O}')
    stamp(6)
    a('s_branch L_collected')
    a('L_collect:')
    stamp(6)
    a('L_collect_rt:')
    a(f'ds_read_b128 v[4:7], v{VFL} offset:{F_O}')
    for j in range(6):
        a(f'ds_read_b128 {vr(FR+4*j,4)}, v{VO1} offset:{j*1024}')
    timeout()
    a('s_waitcnt lgkmcnt(6)\nv_min3_u32 v4, v4, v5, v6\nv_cmp_eq_u32 vcc, 0, v4\ns_cbranch_vccz L_collect_ok\ns_waitcnt lgkmcnt(0)\ns_branch L_collect_rt\nL_collect_ok:')
    for j in range(6):
        a(f's_waitcnt lgkmcnt({5-j})')
        o = OA + 4 * (j & 1)
        a(f'v_pk_add_f32 v[{o}:{o+1}], v[{o}:{o+1}], v[{FR+4*j}:{FR+4*j+1}]\nv_pk_add_f32 v[{o+2}:{o+3}], v[{o+2}:{o+3}], v[{FR+4*j+2}:{FR+4*j+3}]')
        if j >= 4:
            tag_put(o, VTG)
            a(f'buffer_store_dwordx4 {vr(o,4)}, v{VO3}, s[52:55], s68 offen offset:{512*(j&1)} sc1')
    a('L_collected:')
    stamp(7)
    G = P + 20
    a('s_mov_b32 s72, s23\ns_mov_b32 s23, s24')
    for f in range(NF):
        wait_tile(f, 0)
        a(f's_add_u32 s25, s23, {f}\ns_and_b32 s25, s25, 15\ns_lshl_b32 s25, s25, 13\nv_add_u32 v{VVA}, s25, v{VFA}')
        a(f'v_add_u32 v4, {(f&3)*2048 + (f>>2)*256}, v{VFB}')
        for blk in range(2):
            a(f'ds_read2_b64 {vr(FR+16+4*blk,4)}, v4 offset0:{blk*16} offset1:{blk*16 + 2}')
            for hh in range(2):
                a(f'ds_read_b64_tr_b16 {vr(FR+4*blk+2*hh,2)}, v{VVA} offset:{blk*4096 + hh*512}')
        if f == gat:
            a(f'buffer_load_dwordx4 {vr(G,4)}, v{VO4}, s[52:55], s69 offen sc1')
        for blk in range(2):
            c = '0' if (f == 0 and blk == 0) else vr(OF, 4)
            a(f's_waitcnt lgkmcnt({3 - 3*blk})\nv_mfma_f32_16x16x32_bf16 {vr(OF,4)}, {vr(FR+4*blk,4)}, {vr(FR+16+4*blk,4)}, {c}')
    a('s_mov_b32 s23, s72')
    stamp(3)
    a('s_branch L_hop1_chk')
    a('L_hop1:')
    a(f'buffer_load_dwordx4 {vr(G,4)}, v{VO4}, s[52:55], s69 offen sc1')
    timeout()
    a('L_hop1_chk:')
    a('s_waitcnt vmcnt(0)')
    tag_get(8, G, 9)
    a('v_cmp_ne_u32 vcc, s34, v8')
    if 'nowait' not in diag:
        a('s_cbranch_vccnz L_hop1')
    stamp(8)
    for r in range(4):
        a(f'v_add_f32_dpp v{4+r}, v{G+r}, v{G+r} quad_perm:[1,0,3,2] row_mask:0xf bank_mask:0xf')
    for r in range(4):
        a(f'v_add_f32_dpp v{4+r}, v{4+r}, v{4+r} quad_perm:[2,3,0,1] row_mask:0xf bank_mask:0xf')
    for r in range(4):
        a(f'v_add_f32 v{4+r}, v{4+r}, v{OF+r}')
    for r in range(4):
        a(f'v_mul_f32 v{4+r}, v{4+r}, v{VW}')
    a('v_cvt_pk_bf16_f32 v4, v4, v5\nv_cvt_pk_bf16_f32 v6, v6, v7')
    build_a(AT, 4, 0)
    for t in range(4):
        for cb in range(7):
            a(f'v_mfma_f32_16x16x32_bf16 {ar(YA+4*cb,4)}, {vr(AT+4*(t&1),4)}, {ar(4*(t*7+cb),4)}, {ar(YA+4*cb,4)}')
            if cb == 0 and t < 3:
                build_a(AT + 4 * ((t + 1) & 1), 4 + 2 * ((t + 1) >> 1), (t + 1) & 1)
    a('s_mov_b32 exec_lo, 0x00ff00ff\ns_mov_b32 exec_hi, 0xff00ff00')
    for cb in range(7):
        a(f'ds_write_b128 v{VO5}, {ar(YA+4*cb,4)} offset:{cb*256}')
    a('s_mov_b64 exec, -1\ns_waitcnt lgkmcnt(0)\ns_barrier')
    for j in range(4):
        a(f'ds_read_b128 {vr(FR+4*j,4)}, v{VR1} offset:{j*RS}')
    a(f's_waitcnt lgkmcnt(2)\nv_pk_add_f32 v[4:5], v[{FR}:{FR+1}], v[{FR+4}:{FR+5}]\nv_pk_add_f32 v[6:7], v[{FR+2}:{FR+3}], v[{FR+6}:{FR+7}]')
    a(f's_waitcnt lgkmcnt(1)\nv_pk_add_f32 v[4:5], v[4:5], v[{FR+8}:{FR+9}]\nv_pk_add_f32 v[6:7], v[6:7], v[{FR+10}:{FR+11}]')
    a(f's_waitcnt lgkmcnt(0)\nv_pk_add_f32 v[4:5], v[4:5], v[{FR+12}:{FR+13}]\nv_pk_add_f32 v[6:7], v[6:7], v[{FR+14}:{FR+15}]')
    for r in range(4):
        a(f'v_add_f32_dpp v{4+r}, v{4+r}, v{4+r} quad_perm:[1,0,3,2] row_mask:0xf bank_mask:0xf')
    tag_put(4, VTG)
    a(f'buffer_store_dwordx4 v[4:7], v{VR2}, s[52:55], s76 offen sc1')
    stamp(9)
    if stamps:
        a('s_mov_b64 exec, -1')
        a('L_stamp_out:')
        srd(52, 46, W_STAMP + 0x40000)
        a('s_getreg_b32 s95, hwreg(HW_REG_XCC_ID)')
        a(f's_mul_i32 s67, s2, 6\ns_add_u32 s67, s67, s3\ns_lshl_b32 s67, s67, 6\ns_add_u32 s67, s67, {W_STAMP}')
        for k in range(16):
            a(f'v_mov_b32 v{16+k}, s{80+k}')
        a('s_mov_b64 exec, 1')
        for k in range(4 if store_stamps else 0):
            a(f'buffer_store_dwordx4 v[{16+4*k}:{19+4*k}], off, s[52:55], s67 offset:{16*k}')
    a('L_end:')
    a('s_endpgm')
    body = a.finalize()
    head = header or ''
    head += f'; @launch grid=(256,1,1) block=(384,1,1) lds={LDS_BYTES}\n'
    head += f'.amdgcn_target "amdgcn-amd-amdhsa--gfx950"\n.text\n.globl {NAME}\n.p2align 8\n.type {NAME},@function\n'
    tail = f'''.section .rodata,"a"
.p2align 6
.amdhsa_kernel {NAME}
  .amdhsa_next_free_vgpr 256
  .amdhsa_next_free_sgpr 102
  .amdhsa_accum_offset 112
  .amdhsa_group_segment_fixed_size 0
  .amdhsa_kernarg_size 104
  .amdhsa_user_sgpr_count 2
  .amdhsa_user_sgpr_kernarg_segment_ptr 1
  .amdhsa_system_sgpr_workgroup_id_x 1
  .amdhsa_float_denorm_mode_32 3
.end_amdhsa_kernel
'''
    return head + body + tail


if __name__ == '__main__':
    ref = open('parallel_sum__gqa_block_cached__mixer_channel_mlp__decode.s.ref').read().split('\n')
    hdr = '\n'.join(l for l in ref if l.startswith(';') and '@launch' not in l and 'Override' not in l and 'grid=ceil' not in l) + '\n'
    kw = eval('dict(' + (sys.argv[2] if len(sys.argv) > 2 else '') + ')')
    out = sys.argv[1] if len(sys.argv) > 1 else 'parallel_sum__gqa_block_cached__mixer_channel_mlp__decode.s'
    open(out, 'w').write(gen(header=hdr, **kw))
    print('wrote', out)
```

```python
import struct, sys, os
sys.path.insert(0, os.path.dirname(os.path.abspath(__file__)))
from asmkit import Asm

NAME = "parallel_sum__gqa_block_cached__mixer_channel_mlp__decode_kernel"


def fb(x):
    return '0x%08x' % struct.unpack('<I', struct.pack('<f', x))[0]


LOG2E = 1.4426950408889634
RING = 0
FLG = 131072
F_LAND, F_CONS, F_X, F_Q, F_Y, F_M, F_L, F_O, MX, LS = 0, 16, 32, 48, 64, 80, 96, 112, 128, 160
QL = FLG + 1024
XN = QL + 1024
XS = 912
YN = XN + 8 * XS
STG = YN + 8 * XS
LDS_BYTES = STG + 14336
OPL = XN
RED = XN + 6144
RS = 1824
PT = RED + 8 * RS
SC = XN
F_P, FO, CQ = 192, 196, 256
assert PT + 8192 <= LDS_BYTES
W_Q = 0x1000
W_H = 0x21000
W_ST = 0x31000
W_OP = 0x40000
W_YP = 0xC0000
W_SC = 0x140000
W_CT = 0x1c0000
W_END = 0x210000
W_STAMP = 0x220000


def vr(a, n=1):
    return f'v{a}' if n == 1 else f'v[{a}:{a+n-1}]'


def ar(a, n=1):
    return f'a{a}' if n == 1 else f'a[{a}:{a+n-1}]'


def gen(D=22, kflags='nt', vflags='nt', wflags='', stamps=False, sleep=1, prefetch=True, header=None, spin=None, warm=True, NDRAIN=4, diag='', qsleep=0, D0=None, qat=18, qstep=3, pfsplit=True, lateclear=True, remap=3, LEAD=6, h2sleep=6, nowo=False, now2=False, swarm=True, DF=28, gat=None, NP=52, NF=6, psleep=0, ctstride=4352, rwarm=None, rwall=False, slabd=4, slabd1=2, hlate=True, kw2=10, khp=14, qrot=0, hoff=16, qflags=None, rwy=False, stat_at=0, cbmajor=True, pipe2=2, owarm=False, osc='', mask2=False, mask1=False, hl='sc1', hs='sc1', ylate=True):
    qflags = wflags if qflags is None else qflags
    NCH = (64 - NP - NF) * 2
    gat = NF - 2 if gat is None else gat
    S = 64 - NP
    blocks = [(q, 64 - NF + 2 * j) for q in range(4) for j in range(2)]
    if NF == 6:
        blocks += [(q, 62) for q in range(4)]
    if NF == 8:
        blocks += [(q, 60 + 2 * j) for q in range(4) for j in range(2)]
    NT = (S + 15) // 16
    a = Asm()
    uid = [0]
    store_stamps = stamps
    if spin is not None:
        stamps = True

    def lab(p):
        uid[0] += 1
        return f'L_{p}_{uid[0]}'

    nstamp = [0]

    def stamp(k):
        if stamps:
            a(f's_memrealtime s[98:99]\ns_waitcnt lgkmcnt(0)\ns_mov_b32 s{80+k}, s98')

    def srd(d, p, size):
        a(f's_mov_b32 s{d}, s{p}\ns_mov_b32 s{d+1}, s{p+1}\ns_mov_b32 s{d+2}, {size}\ns_mov_b32 s{d+3}, 0x20000')

    a(f'{NAME}:')
    a('s_cmp_ge_u32 s2, 256\ns_cbranch_scc1 L_end')
    a('s_load_dwordx4 s[4:7], s[0:1], 8')
    if stamps:
        for k in range(16):
            a(f's_mov_b32 s{80+k}, 0')
        a('s_memrealtime s[98:99]')
    a('v_lshrrev_b32 v1, 6, v0\nv_and_b32 v0, 63, v0')
    a('v_readfirstlane_b32 s3, v1')
    a('s_and_b32 s33, s2, 7\ns_lshr_b32 s19, s2, 3\ns_and_b32 s21, s19, 7\ns_lshr_b32 s22, s19, 3')
    a(f's_sub_u32 s32, s19, {hoff}\ns_and_b32 s32, s32, 31')
    a(f's_mul_i32 s20, s22, {remap}\ns_sub_u32 s20, s33, s20\ns_and_b32 s20, s20, 7')
    a('s_cmp_eq_u32 s3, 5\ns_cbranch_scc1 L_helper\ns_cmp_lg_u32 s3, 0\ns_cbranch_scc1 L_consumer')

    a('s_setprio 3')
    if stamps:
        a('v_mov_b32 v30, 0')
    a('v_lshrrev_b32 v10, 5, v0\nv_and_b32 v11, 31, v0\nv_lshlrev_b32 v12, 9, v10')
    for i in range(8):
        a(f'v_add_u32 v13, {2*i}, v10\nv_xor_b32 v13, v13, v11\nv_lshl_add_u32 v{2+i}, v13, 4, v12')
    a('s_lshl_b32 s17, s21, 3\ns_add_u32 s17, s17, s20\ns_lshl_b32 s17, s17, 2\ns_add_u32 s17, s17, s22\ns_lshl_b32 s17, s17, 19')
    a('s_mov_b32 s10, 0x80000\ns_mov_b32 s11, 0x20000\ns_mov_b32 s12, 0\ns_mov_b32 s14, 0')
    a('s_mov_b32 s18, 0x100000')
    a('s_waitcnt lgkmcnt(0)')
    if stamps:
        a('s_mov_b32 s80, s98')
    a('s_add_u32 s8, s4, s17\ns_addc_u32 s9, s5, 0\ns_and_b32 s17, s17, 0xffe00000\ns_add_u32 s6, s6, s17\ns_addc_u32 s7, s7, 0')
    ipub = (7 + D) % 8
    lag = (7 + D) // 8

    def ld_tile(u, T=None, kvflags=kflags):
        for i in range(8):
            if i % 4 == 0:
                a(f's_add_u32 m0, s14, {u*8192 + (i//4)*4096}')
                a(f's_add_u32 s13, s12, {u*8192 + (i//4)*4096}')
            if T is None:
                a(f's_waitcnt vmcnt({D-1})')
            elif 8 * T + i >= (D0 or D):
                a(f's_waitcnt vmcnt({(D0 or D)-1})')
            if i == ipub:
                if T is None:
                    a(f's_lshl2_add_u32 s17, s15, {u - lag + 1}\nv_mov_b32 v15, s17\nds_write_b32 v14, v15 offset:{F_LAND}')
                elif T - lag + 1 > 0 and not D0:
                    a(f'v_mov_b32 v15, {T - lag + 1}\nds_write_b32 v14, v15 offset:{F_LAND}')
            a(f'buffer_load_dwordx4 v{2+i}, s[8:11], s13 offen offset:{(i%4)*1024} {kvflags} lds')

    ld_tile(0, 0)
    a(f'v_mov_b32 v16, 0\nv_mov_b32 v17, 0\nv_mov_b32 v18, 0\nv_mov_b32 v19, 0')
    a(f'v_mov_b32 v14, {FLG}\nv_lshl_add_u32 v13, v0, 4, v14\nds_write_b128 v13, v[16:19]')
    ld_tile(1, 1)
    a('s_waitcnt lgkmcnt(0)\ns_barrier')
    ld_tile(2, 2)
    ld_tile(3, 3)
    a('s_mov_b32 s15, 1')

    def ld_free(u):
        ok = lab('ldok')
        rt = lab('ldrt')
        a('s_waitcnt lgkmcnt(0)')
        a(f'v_readfirstlane_b32 s17, v{16+u}\ns_cmp_ge_i32 s17, s16\ns_cbranch_scc1 {ok}')
        a(f'{rt}:')
        a(f'ds_read_b128 v[16:19], v14 offset:{F_CONS}\ns_sub_u32 s18, s18, 1\ns_cbranch_scc1 L_end\ns_waitcnt lgkmcnt(0)')
        a(f'v_readfirstlane_b32 s17, v{16+u}\ns_cmp_ge_i32 s17, s16\ns_cbranch_scc0 {rt}')
        a(f'{ok}:')
        a(f'ds_read_b128 v[16:19], v14 offset:{F_CONS}')

    def ld_stamps():
        if stamps:
            a('s_memrealtime s[98:99]\ns_waitcnt lgkmcnt(0)\nv_mov_b32 v31, s98\nv_cmp_eq_u32 vcc, s15, v0\nv_cndmask_b32 v30, v30, v31, vcc')
            for k, it in enumerate((1, 2, 4, 6, 8, 12, 16, 24, 28)):
                a(f's_cmp_eq_u32 s15, {it}\ns_cselect_b32 s{82+k}, s98, s{82+k}')

    for ph in range(2):
        if ph == 1:
            a('s_mov_b32 s8, s6\ns_mov_b32 s9, s7\ns_mov_b32 s10, 0x200000\ns_lshl_b32 s12, s22, 19\ns_sub_u32 s12, s12, 32768')
            for i in range(8):
                a(f'v_lshlrev_b32 v{2+i}, 4, v0')
        a(f'L_ld_loop{ph}:')
        a('s_add_u32 s12, s12, 32768\ns_add_u32 s14, s14, 32768\ns_and_b32 s14, s14, 0x1ffff\ns_sub_u32 s16, s15, 3')
        ld_stamps()
        for u in range(4):
            ld_free(u)
            if ph == 1 and u == 3:
                a(f'ds_read_b32 v20, v14 offset:{CQ}')
            ld_tile(u, None, vflags if ph else kflags)
        a(f's_add_u32 s15, s15, 1\ns_cmp_lt_u32 s15, {16 if ph == 0 else 16 + NP//4}\ns_cbranch_scc1 L_ld_loop{ph}')
    a(f'v_add_u32 v21, {CQ}, v14')
    a('v_lshrrev_b32 v10, 3, v0\nv_bfe_u32 v11, v0, 4, 1\nv_lshlrev_b32 v11, 1, v11\nv_and_b32 v12, 7, v0\nv_xor_b32 v11, v11, v12')
    a('s_lshl_b32 s17, s22, 7\nv_lshlrev_b32 v10, 9, v10\nv_add_u32 v10, s17, v10\nv_lshl_add_u32 v22, v11, 4, v10\nv_xor_b32 v23, 64, v22')
    stamp(11)
    a('L_ld_pool:')
    a('s_add_u32 s14, s14, 32768\ns_and_b32 s14, s14, 0x1ffff\ns_sub_u32 s16, s15, 3')
    ld_stamps()
    for h in range(2):
        ok = lab('cqok')
        rt = lab('cqrt')
        a('s_waitcnt lgkmcnt(0)')
        a(f'v_readfirstlane_b32 s24, v20\ns_cmp_lg_u32 s24, 0\ns_cbranch_scc1 {ok}')
        a(f'{rt}:')
        if stamps:
            a('s_add_u32 s94, s94, 1')
        a(f'ds_read_b32 v20, v21 offset:{4*h}\ns_sub_u32 s18, s18, 1\ns_cbranch_scc1 L_end\ns_waitcnt lgkmcnt(0)')
        a(f'v_readfirstlane_b32 s24, v20\ns_cmp_lg_u32 s24, 0\ns_cbranch_scc0 {rt}')
        a(f'{ok}:')
        a(f's_lshl2_add_u32 s25, s15, {2*h}\ns_cmp_gt_u32 s24, {NCH}\ns_cbranch_scc1 L_ld_fin{h}')
        a(f's_sub_u32 s24, s24, 1\ns_and_b32 s12, s24, 3\ns_lshl_b32 s12, s12, 19\ns_lshr_b32 s24, s24, 2\ns_lshl_b32 s24, s24, 14')
        if 'ownq' in diag:
            a(f's_lshl_b32 s12, s22, 19\ns_lshl_b32 s24, s25, 13\ns_and_b32 s24, s24, 0x1ffff')
        a(f's_add_u32 s12, s12, s24\ns_add_u32 s12, s12, {NP*8192 - 2*h*8192}')
        for u in (2 * h, 2 * h + 1):
            ld_free(u)
            if u & 1:
                a(f'ds_read_b32 v20, v21 offset:{4*h+4}')
            ld_tile(u, None, vflags)
    a('v_add_u32 v21, 8, v21\ns_add_u32 s15, s15, 1\ns_branch L_ld_pool')
    ipf, lagf = (7 + DF) % 8, (7 + DF) // 8
    for h in range(2):
        a(f'L_ld_fin{h}:')
        stamp(12)
        done = -lag
        for f in range(NF):
            u = (2 * h + f) & 3
            if u == 0 and f:
                a('s_add_u32 s14, s14, 32768\ns_and_b32 s14, s14, 0x1ffff\ns_add_u32 s16, s16, 1')
            ld_free(u)
            for i in range(8):
                a(f's_add_u32 m0, s14, {u*8192 + i*1024}\ns_mov_b32 s13, {blocks[2*f + (i>>2)][0]*0x80000 + blocks[2*f + (i>>2)][1]*8192 + (i&3)*4096}')
                if 8 * f + i + D >= DF:
                    a(f's_waitcnt vmcnt({DF-1})')
                    if i == ipf and f - lagf + 1 > done:
                        done = f - lagf + 1
                        a(f's_add_u32 s17, s25, {done}\nv_mov_b32 v15, s17\nds_write_b32 v14, v15 offset:{F_LAND}')
                a(f'buffer_load_dwordx4 v{22 + (i&1)}, s[8:11], s13 offen {vflags} lds')
        if h == 0:
            a('s_branch L_ld_fin')
    a('L_ld_fin:')
    for j in range(NF - done - 1, -1, -1):
        assert 8 * j < 64
        a(f's_add_u32 s17, s25, {NF - j}\nv_mov_b32 v15, s17\ns_waitcnt vmcnt({8*j})\nds_write_b32 v14, v15 offset:{F_LAND}')
    if stamps:
        a('s_mov_b32 s93, s25')
    if stamps:
        stamp(1)
        a('s_load_dwordx2 s[46:47], s[0:1], 96\ns_waitcnt lgkmcnt(0)')
        srd(52, 46, W_STAMP + 0x40000)
        a(f'v_lshlrev_b32 v31, 2, v0\ns_lshl_b32 s67, s2, 8\ns_add_u32 s67, s67, {W_STAMP + 0x20000}')
        if store_stamps:
            a('buffer_store_dword v30, v31, s[52:55], s67 offen')
        a('s_branch L_stamp_out')
    a('s_endpgm')

    P = 16
    FR = 48
    SEL = 80
    AT = 88
    DT = 96
    OA = 100
    KA = OA
    VA = 108
    VFL, VM, VL, VW, VXB = 1, 110, 111, 2, 3
    T0 = 4
    YA = 112
    TAG = 's64'

    def timeout():
        a('s_sub_u32 s66, s66, 1\ns_cbranch_scc1 L_end')

    def wait_flags(off, n, slp=0):
        l = lab('wf')
        ok = lab('wfok')
        a(f'{l}:')
        if n == 1:
            a(f'ds_read_b32 v{T0}, v{VFL} offset:{off}\ns_waitcnt lgkmcnt(0)')
        else:
            a(f'ds_read_b128 v[{T0}:{T0+3}], v{VFL} offset:{off}\ns_waitcnt lgkmcnt(0)')
            a(f'v_min3_u32 v{T0}, v{T0}, v{T0+1}, v{T0+2}')
            if n == 4:
                a(f'v_min_u32 v{T0}, v{T0}, v{T0+3}')
        a(f'v_readfirstlane_b32 s67, v{T0}\ns_cmp_lg_u32 s67, 0\ns_cbranch_scc1 {ok}')
        timeout()
        if slp:
            a(f's_sleep {slp}')
        a(f's_branch {l}\n{ok}:')

    def set_flag(off):
        a(f'ds_write_b32 v15, v14 offset:{off}')

    def wait_tile(t_const, slp):
        l = lab('wt')
        ok = lab('wtok')
        a(f's_add_u32 s67, s23, {t_const}\ns_cmp_gt_i32 s65, s67\ns_cbranch_scc1 {ok}')
        a(f'{l}:')
        a(f'ds_read_b32 v{T0}, v{VFL} offset:{F_LAND}\ns_waitcnt lgkmcnt(0)')
        a(f'v_readfirstlane_b32 s65, v{T0}\ns_cmp_gt_i32 s65, s67\ns_cbranch_scc1 {ok}')
        timeout()
        if slp:
            a(f's_sleep {slp}')
        a(f's_branch {l}\n{ok}:')

    def reduce32(op, t, u):
        for r in (8, 4, 2, 1):
            a(f'v_{op}_f32_dpp v{t}, v{t}, v{t} row_ror:{r} row_mask:0xf bank_mask:0xf')
        a(f'v_mov_b32 v{u}, v{t}\nv_permlane16_swap_b32 v{t}, v{u}\nv_{op}_f32 v{t}, v{t}, v{u}')

    def reduce_rows(op, t, u):
        a(f'v_mov_b32 v{u}, v{t}\nv_permlane16_swap_b32 v{t}, v{u}\nv_{op}_f32 v{t}, v{t}, v{u}')
        a(f'v_mov_b32 v{u}, v{t}\nv_permlane32_swap_b32 v{t}, v{u}\nv_{op}_f32 v{t}, v{t}, v{u}')

    def rnd(r):
        a(f'v_cvt_pk_bf16_f32 v{r}, v{r}, v{r}\nv_lshlrev_b32 v{r}, 16, v{r}')

    def layernorm(raw, f, vmask):
        t = T0
        for i in range(8):
            a(f'v_lshlrev_b32 v{f+2*i}, 16, v{raw+i}\nv_and_b32 v{f+2*i+1}, 0xffff0000, v{raw+i}')
        pk = lambda r: f'v[{r}:{r+1}]'
        a(f'v_pk_add_f32 {pk(t)}, {pk(f)}, {pk(f+2)}\nv_pk_add_f32 {pk(t+2)}, {pk(f+4)}, {pk(f+6)}')
        a(f'v_pk_add_f32 {pk(t)}, {pk(t)}, {pk(f+8)}\nv_pk_add_f32 {pk(t+2)}, {pk(t+2)}, {pk(f+10)}')
        a(f'v_pk_add_f32 {pk(t)}, {pk(t)}, {pk(f+12)}\nv_pk_add_f32 {pk(t+2)}, {pk(t+2)}, {pk(f+14)}')
        a(f'v_pk_add_f32 {pk(t)}, {pk(t)}, {pk(t+2)}\nv_add_f32 v{t}, v{t}, v{t+1}\nv_mul_f32 v{t}, v{t}, v{vmask}')
        reduce32('add', t, t + 1)
        a(f'v_mul_f32 v{t+2}, {fb(1/448)}, v{t}')
        neg = 'op_sel_hi:[1,0] neg_lo:[0,1] neg_hi:[0,1]'
        for i in range(8):
            d = t + 4 + 2 * (i & 1)
            a(f'v_pk_add_f32 {pk(d)}, {pk(f+2*i)}, {pk(t+2)} {neg}')
            if i == 0:
                a(f'v_pk_mul_f32 {pk(t)}, {pk(d)}, {pk(d)}')
            else:
                a(f'v_pk_fma_f32 {pk(t)}, {pk(d)}, {pk(d)}, {pk(t)}')
        a(f'v_add_f32 v{t}, v{t}, v{t+1}\nv_mul_f32 v{t}, v{t}, v{vmask}')
        rnd(t + 2)
        reduce32('add', t, t + 1)
        a(f'v_mul_f32 v{t}, {fb(1/448)}, v{t}')
        rnd(t)
        a(f'v_add_f32 v{t}, {fb(1e-5)}, v{t}')
        rnd(t)
        a(f'v_sqrt_f32 v{t}, v{t}')
        for i in range(8):
            a(f'v_pk_add_f32 {pk(f+2*i)}, {pk(f+2*i)}, {pk(t+2)} {neg}')
        rnd(t)
        a(f'v_rcp_f32 v{t}, v{t}')
        for i in range(8):
            a(f'v_cvt_pk_bf16_f32 v{raw+i}, v{f+2*i}, v{f+2*i+1}')
        for i in range(8):
            a(f'v_lshlrev_b32 v{f+2*i}, 16, v{raw+i}\nv_and_b32 v{f+2*i+1}, 0xffff0000, v{raw+i}')
        for i in range(8):
            a(f'v_pk_mul_f32 {pk(f+2*i)}, {pk(f+2*i)}, {pk(t)} op_sel_hi:[1,0]')
        for i in range(8):
            a(f'v_cvt_pk_bf16_f32 v{raw+i}, v{f+2*i}, v{f+2*i+1}')

    def slab_mfma(act, abase):
        a(f'v_lshrrev_b32 v{T0}, 4, v0\nv_and_b32 v{T0+1}, 15, v0')
        a(f'v_lshlrev_b32 v{T0+2}, 8, v{T0}\nv_lshl_add_u32 v{T0+2}, v{T0+1}, 3, v{T0+2}\nv_add_u32 v{T0+2}, {STG}, v{T0+2}')
        a(f'v_and_b32 v{T0+1}, 7, v0\nv_mul_u32_u24 v{T0+1}, {XS}, v{T0+1}\nv_lshl_add_u32 v{T0+1}, v{T0}, 4, v{T0+1}\nv_add_u32 v{T0+1}, {act}, v{T0+1}')

        def rd(ks):
            a(f'ds_read_b64_tr_b16 {ar(abase+4*ks,2)}, v{T0+2} offset:{ks*1024}')
            a(f'ds_read_b64_tr_b16 {ar(abase+4*ks+2,2)}, v{T0+2} offset:{ks*1024+128}')
            a(f'ds_read_b128 {ar(abase+56+4*ks,4)}, v{T0+1} offset:{ks*64}')
        for ks in range(4):
            rd(ks)
        for ks in range(14):
            if ks + 4 < 14:
                rd(ks + 4)
            left = min(13 - ks, 4)
            a(f's_waitcnt lgkmcnt({3*left})')
            c = '0' if ks == 0 else vr(DT, 4)
            a(f'v_mfma_f32_16x16x32_bf16 {vr(DT,4)}, {ar(abase+4*ks,4)}, {ar(abase+56+4*ks,4)}, {c}')

    VTW = 13 + 0

    def tag_setup():
        a(f's_mul_i32 s34, {TAG}, 0x3d2f1b65')
        a('s_mov_b32 s8, 0x07060500\ns_mov_b32 s9, 0x07060501\ns_mov_b32 s10, 0x07060502\ns_mov_b32 s11, 0x07060503')
        a('s_mov_b32 s12, 0x0c0c0400\ns_mov_b32 s13, 0x04000c0c')

    def tag_put(r, vw):
        for j in range(4):
            a(f'v_perm_b32 v{r+j}, v{r+j}, v{vw}, s{8+j}')

    def tag_get(dst, r, t):
        a(f'v_perm_b32 v{dst}, v{r+1}, v{r}, s12\nv_perm_b32 v{t}, v{r+3}, v{r+2}, s13\nv_or_b32 v{dst}, v{dst}, v{t}')

    def build_a(dst, src, e):
        for i in range(4):
            a(f'v_perm_b32 v{dst+i}, v{src}, v{src}, v{SEL+4*e+i}')

    XR = P
    XF = P + 8
    VMK = P + 24
    VXO = P + 25

    def common_ids():
        a('s_lshl_b32 s73, s21, 3\ns_add_u32 s73, s73, s20\ns_lshl2_add_u32 s74, s73, s22\ns_lshl2_add_u32 s79, s20, s22')
        a('s_mov_b32 s65, 0\ns_mov_b32 s66, 0x100000')
        a(f'v_mov_b32 v{VFL}, {FLG}\nv_mov_b32 v14, 1')

    def publish_slab(shift, sbase, wbase):
        a(f'v_lshrrev_b32 v8, 4, v0\nv_and_b32 v9, 15, v0\nv_lshlrev_b32 v10, {shift}, v9\nv_lshl_add_u32 v10, v8, 4, v10')
        a(f'v_cmp_gt_u32 vcc, 8, v9\nv_mov_b32 v9, 0x1000000\nv_cndmask_b32 v10, v9, v10, vcc')
        a(f's_lshl_b32 s67, {sbase}, 1\ns_add_u32 s67, s67, {wbase}')
        a(f'v_mov_b32 v5, {TAG}\nv_mov_b32 v7, {TAG}')
        a(f'v_cvt_pk_bf16_f32 v4, v{DT}, v{DT+1}\nv_cvt_pk_bf16_f32 v6, v{DT+2}, v{DT+3}')
        a('buffer_store_dwordx4 v[4:7], v10, s[52:55], s67 offen sc1')

    fin = 'L_stamp_out' if stamps else 'L_end'
    a('L_helper:')
    if prefetch and swarm:
        pass
    elif prefetch and pfsplit:
        a('s_getpc_b64 s[26:27]\nv_and_b32 v4, 7, v0\ns_lshl_b32 s67, s19, 3\nv_add_u32 v4, s67, v4\nv_lshlrev_b32 v4, 7, v4')
        a(f'v_min_u32 v5, L_end-L_helper-64, v4\nglobal_load_dword v{P}, v5, s[26:27]')
    elif prefetch:
        a('s_getpc_b64 s[26:27]\nv_lshlrev_b32 v4, 7, v0')
        for j in range(3):
            a(f'v_min_u32 v5, L_end-L_helper-64, v4\nglobal_load_dword v{P+j}, v5, s[26:27]\nv_add_u32 v4, 0x2000, v4')
    a('s_load_dwordx4 s[28:31], s[0:1], 24\ns_load_dwordx2 s[46:47], s[0:1], 96\ns_load_dwordx2 s[24:25], s[0:1], 0')
    a('s_load_dwordx8 s[36:43], s[0:1], 48\ns_load_dwordx2 s[44:45], s[0:1], 80')
    common_ids()
    a('v_lshrrev_b32 v10, 1, v0\nv_and_b32 v11, 1, v0\nv_lshlrev_b32 v11, 4, v11\nv_lshl_add_u32 v12, v10, 13, v11')
    a(f's_add_u32 s67, s19, {qrot}\ns_and_b32 s67, s67, 31\ns_lshl_b32 s68, s33, 5\ns_add_u32 s68, s68, s67\ns_lshl_b32 s68, s68, 5')
    a('s_waitcnt lgkmcnt(0)')
    if stamps:
        a('s_mov_b32 s80, s98')
    a('s_load_dword s64, s[46:47], 0')
    srd(56, 28, 448 * 8192)

    def pf_and_barrier():
        if prefetch and swarm:
            a('s_getpc_b64 s[26:27]\nL_pf:\ns_lshl_b32 s75, s19, 10\ns_min_u32 s75, s75, L_end-L_pf-1024\ns_add_u32 s26, s26, s75\ns_addc_u32 s27, s27, 0')
            for j in range(8):
                a(f's_load_dword s{8+j}, s[26:27], {j*128}')
        a('s_barrier')
    if 'noslab' in diag or slabd >= 14:
        pf_and_barrier()
    for j in range(0 if 'noslab' in diag else 14):
        a(f's_mov_b32 m0, {STG + j*1024}\ns_add_u32 s67, s68, {j << 18}')
        if j == slabd:
            pf_and_barrier()
        if j >= slabd:
            a(f's_waitcnt vmcnt({slabd-1})')
        a(f'buffer_load_dwordx4 v12, s[56:59], s67 offen {qflags} lds')
    srd(52, 46, W_STAMP + 0x40000 if stamps else W_END)
    def clears():
        a('v_lshlrev_b32 v10, 4, v0\nv_mov_b32 v4, -1\nv_mov_b32 v5, -1\nv_mov_b32 v6, -1\nv_mov_b32 v7, -1')
        a(f's_lshl_b32 s75, s74, 11\ns_add_u32 s67, s75, {W_OP}\ns_add_u32 s75, s75, {W_YP}')
        cf = '' if 'clrplain' in diag else ('nt' if 'clrnt' in diag else ('sc0 sc1' if 'clrsys' in diag else 'sc1'))
        if 'clr1' in diag:
            a(f'buffer_store_dwordx4 v[4:7], v10, s[52:55], s67 offen {cf}')
        elif 'clrhalf' in diag:
            a('s_bitcmp1_b32 s2, 4\ns_cbranch_scc1 L_clrskip')
            for o in (0, 1024, 2048, 3072):
                a(f'buffer_store_dwordx4 v[4:7], v10, s[52:55], s67 offen offset:{o} {cf}\nbuffer_store_dwordx4 v[4:7], v10, s[52:55], s75 offen offset:{o} {cf}')
            a('L_clrskip:')
        elif 'noclear' not in diag:
            a(f'buffer_store_dwordx4 v[4:7], v10, s[52:55], s67 offen {cf}\nbuffer_store_dwordx4 v[4:7], v10, s[52:55], s67 offen offset:1024 {cf}')
            a(f'buffer_store_dwordx4 v[4:7], v10, s[52:55], s75 offen {cf}\nbuffer_store_dwordx4 v[4:7], v10, s[52:55], s75 offen offset:1024 {cf}')

    def warms():
        if warm:
            a('s_lshl_b32 s67, s74, 19\ns_add_u32 s6, s6, s67\ns_addc_u32 s7, s7, 0\nv_mov_b32 v13, 0')
            a('s_mul_i32 s67, s79, 128*896\ns_add_u32 s30, s30, s67\ns_addc_u32 s31, s31, 0')
            a('s_mul_i32 s67, s79, 56*896\ns_add_u32 s40, s40, s67\ns_addc_u32 s41, s41, 0')
            if swarm:
                for j, p in enumerate((6, 30, 40, 44, 36, 38, 42)):
                    a(f's_load_dword s{8+j}, s[{p}:{p+1}], 0')
                return 0
            for j, p in enumerate((6, 30, 40, 44)):
                a(f'global_load_dword v{P+4+j}, v13, s[{p}:{p+1}]')
            return 4
        return 0
    nwarm = 0
    if not lateclear:
        clears()
    if not lateclear and not swarm:
        nwarm = warms()
    a(f's_waitcnt vmcnt({nwarm}) lgkmcnt(0)')
    a('s_add_u32 s64, s64, 1')
    stamp(1)
    wait_flags(F_X, 4)
    stamp(2)
    slab_mfma(XN, 0)
    if 'nopub' not in diag:
        publish_slab(14, 's68', W_Q)
    stamp(3)
    def hidden():
        a(f's_cmp_ge_u32 s32, {0 if "noh" in diag else 14}\ns_cbranch_scc1 L_noh')
        srd(56, 36, 448 * 3584)
        a('v_lshrrev_b32 v10, 1, v0\nv_and_b32 v11, 1, v0\nv_mul_u32_u24 v10, 3584, v10\nv_lshl_add_u32 v10, v11, 4, v10')
        a('s_mul_i32 s77, s33, 14\ns_add_u32 s77, s77, s32\ns_lshl_b32 s77, s77, 5')
        for j in range(14):
            a(f's_mov_b32 m0, {STG + j*1024}\ns_add_u32 s67, s77, {j*32*3584}')
            if j >= slabd1:
                a(f's_waitcnt vmcnt({slabd1-1})')
            a(f'buffer_load_dwordx4 v10, s[56:59], s67 offen {qflags} lds')
        srd(60, 38, 3584)
        a(f'v_lshrrev_b32 v10, 4, v0\nv_lshlrev_b32 v10, 3, v10')
        a(f'buffer_load_dwordx2 v[{AT}:{AT+1}], v10, s[60:63], s77 offen')
        wait_flags(F_Y, 4, sleep)
        a('s_waitcnt vmcnt(0)')
        slab_mfma(YN, 0)
        a(f'v_lshlrev_b32 v8, 16, v{AT}\nv_and_b32 v9, 0xffff0000, v{AT}\nv_lshlrev_b32 v10, 16, v{AT+1}\nv_and_b32 v11, 0xffff0000, v{AT+1}')
        c0 = -2 * 0.7978845608028654 * LOG2E
        a(f's_mov_b32 s75, {fb(c0 * 0.044715)}\nv_mov_b32 v12, {fb(c0)}')
        for r in range(4):
            rnd(DT + r)
        for r in range(4):
            a(f'v_add_f32 v{DT+r}, v{DT+r}, v{8+r}')
        for r in range(4):
            rnd(DT + r)
        for r in range(4):
            a(f'v_mul_f32 v{8+r}, v{DT+r}, v{DT+r}\nv_fma_f32 v{8+r}, v{8+r}, s75, v12\nv_mul_f32 v{8+r}, v{8+r}, v{DT+r}')
        for r in range(4):
            a(f'v_exp_f32 v{8+r}, v{8+r}')
        for r in range(4):
            a(f'v_add_f32 v{8+r}, 1.0, v{8+r}')
        for r in range(4):
            a(f'v_rcp_f32 v{8+r}, v{8+r}')
        for r in range(4):
            a(f'v_mul_f32 v{DT+r}, v{DT+r}, v{8+r}')
        publish_slab(13, 's77', W_H)
        a('L_noh:')

    if not hlate:
        hidden()
    if swarm:
        warms()
    a(f's_lshl_b32 s67, s21, 14\ns_lshl_b32 s75, s20, 11\ns_add_u32 s76, s67, s75\ns_add_u32 s76, s76, {W_Q}')
    a(f'v_lshlrev_b32 v12, 5, v0\ns_mov_b32 s23, {qat - qstep}')
    a('L_qpoll:')
    if qat:
        a(f's_add_u32 s23, s23, {qstep}\ns_min_u32 s23, s23, {31 - lag}')
        wait_tile(0, sleep)
    if 'noqld' not in diag:
        a(f'buffer_load_dwordx4 v[16:19], v12, s[52:55], s76 offen sc1\nbuffer_load_dwordx4 v[8:11], v12, s[52:55], s76 offen offset:16 sc1')
    timeout()
    a('s_waitcnt vmcnt(0)')
    a(f'v_xor_b32 v17, {TAG}, v17\nv_xor_b32 v19, {TAG}, v19\nv_xor_b32 v9, {TAG}, v9\nv_xor_b32 v11, {TAG}, v11')
    a('v_or3_b32 v5, v17, v19, v9\nv_or_b32 v5, v5, v11\nv_cmp_ne_u32 vcc, 0, v5')
    if 'nopoll' not in diag:
        if qsleep:
            a(f's_cbranch_vccz L_qok\ns_sleep {qsleep}\ns_branch L_qpoll\nL_qok:')
        else:
            a('s_cbranch_vccnz L_qpoll')
    a(f'v_mov_b32 v4, v16\nv_mov_b32 v5, v18\nv_mov_b32 v6, v8\nv_mov_b32 v7, v10\nv_lshlrev_b32 v12, 4, v0')
    a(f'v_add_u32 v13, {QL}, v12\nds_write_b128 v13, v[4:7]')
    a(f'ds_write_b32 v{VFL}, v14 offset:{F_Q}')
    stamp(4)
    if lateclear:
        if 'clr' in diag:
            clears()
        if rwarm is not None:
            a(f'v_and_b32 v10, 15, v0\nv_lshlrev_b32 v10, 7, v10\ns_lshl_b32 s75, s74, 11\nv_add_u32 v10, s75, v10')
            a(f'v_lshrrev_b32 v11, 4, v0\nv_mov_b32 v4, {W_OP}\nv_mov_b32 v5, {W_YP}\nv_cmp_eq_u32 vcc, 1, v11\nv_cndmask_b32 v4, v4, v5, vcc')
            if rwall:
                a(f'v_mov_b32 v5, {W_SC}\nv_cmp_eq_u32 vcc, 2, v11\nv_cndmask_b32 v4, v4, v5, vcc')
                a(f'v_add_u32 v10, v10, v4\ns_lshl_b32 s75, s74, 7\ns_add_u32 s75, s75, {W_ST}\nv_mov_b32 v5, s75\nv_cmp_eq_u32 vcc, 3, v11\nv_cndmask_b32 v10, v10, v5, vcc')
            else:
                a(f'v_add_u32 v10, v10, v4\nv_mov_b32 v5, 0x1000000\nv_cmp_{"ne" if rwy else "lt"}_u32 vcc, 1, v11\nv_cndmask_b32 v10, v10, v5, vcc')
            a(f'buffer_load_dword v29, v10, s[52:55], 0 offen {rwarm}')
        if not swarm:
            warms()
    a(f's_cmp_lg_u32 s22, 0\ns_cbranch_scc1 L_noct\nv_mov_b32 v12, 0\ns_mul_i32 s67, s73, {ctstride}\ns_add_u32 s67, s67, {W_CT}')
    a('s_mov_b64 exec, 1\nbuffer_store_dword v12, off, s[52:55], s67 sc1\ns_mov_b64 exec, -1\nL_noct:')
    if hlate:
        hidden()
    stamp(5)
    VR3, VR4 = P + 16, P + 17
    srd(48, 24, 7168)
    srd(56, 42, 896)
    a('v_and_b32 v11, 3, v0\nv_bfe_u32 v10, v0, 2, 2\nv_lshl_add_u32 v10, v11, 2, v10\nv_lshlrev_b32 v10, 1, v10')
    a('s_lshl_b32 s75, s79, 5\ns_mul_i32 s78, s21, 896\ns_add_u32 s78, s78, s75')
    a('buffer_load_ushort v8, v10, s[48:51], s78 offen\nbuffer_load_ushort v9, v10, s[56:59], s75 offen')
    a(f'v_mov_b32 v13, 0x1000000\nv_cmp_gt_u32 vcc, 16, v0\nv_cndmask_b32 v{VR4}, v13, v10, vcc')
    a(f'v_lshrrev_b32 v10, 2, v0\nv_lshlrev_b32 v10, 11, v10\nv_lshl_add_u32 v{VR3}, v11, 4, v10')
    a(f's_lshl_b32 s77, s21, 16\ns_lshl_b32 s67, s79, 6\ns_add_u32 s77, s77, s67\ns_add_u32 s77, s77, {W_YP}\ns_add_u32 s72, s77, 0x8000')
    a(f's_waitcnt vmcnt(0)\nv_lshlrev_b32 v8, 16, v8\nv_lshlrev_b32 v9, 16, v9\nv_add_f32 v{VXB}, v8, v9')
    wait_flags(F_M, 4, 4)
    a(f'v_lshlrev_b32 v12, 4, v0\nv_add_u32 v11, {SC}, v12')
    a(f'v_cmp_gt_u32 vcc, {4*S - 64*(NT-1)}, v0\nv_cndmask_b32 v28, v13, v12, vcc')
    for j in range(NT):
        a(f'ds_read_b128 v[{20+4*j}:{23+4*j}], v11 offset:{j*1024}')
    a(f's_lshl_b32 s75, s74, 11\ns_add_u32 s75, s75, {W_SC}\ns_waitcnt lgkmcnt(0)')
    for j in range(NT):
        a(f'buffer_store_dwordx4 v[{20+4*j}:{23+4*j}], v{28 if j == NT-1 else 12}, s[52:55], s75 offen offset:{j*1024} sc1')
    wait_flags(F_L, 4, sleep)
    a(f'v_bfe_u32 v10, v0, 3, 1\nv_lshl_add_u32 v10, v10, 2, v{VFL}')
    a(f'ds_read2_b32 v[4:5], v10 offset0:{LS//4} offset1:{LS//4+2}\nds_read2_b32 v[6:7], v10 offset0:{LS//4+4} offset1:{LS//4+6}')
    a(f'ds_read2_b32 v[16:17], v10 offset0:{MX//4} offset1:{MX//4+2}\nds_read2_b32 v[18:19], v10 offset0:{MX//4+4} offset1:{MX//4+6}')
    a(f'v_and_b32 v8, 0x37, v0\nv_cmp_eq_u32 vcc, 0, v8\nv_lshlrev_b32 v8, 1, v0\nv_cndmask_b32 v8, v13, v8, vcc')
    a(f's_lshl_b32 s67, s74, 7\ns_add_u32 s67, s67, {W_ST}\ns_waitcnt lgkmcnt(0)')
    a(f'v_add_f32 v4, v4, v5\nv_add_f32 v6, v6, v7\nv_add_f32 v6, v4, v6')
    a(f'v_max3_f32 v4, v16, v17, v18\nv_max_f32 v4, v4, v19\nv_mov_b32 v5, {TAG}\nv_mov_b32 v7, {TAG}')
    a('s_waitcnt vmcnt(0)\nbuffer_store_dwordx4 v[4:7], v8, s[52:55], s67 offen sc1')
    stamp(6)
    a(f's_lshl_b32 s67, s73, 9\ns_add_u32 s67, s67, {W_ST}\ns_add_u32 s26, s46, s67\ns_addc_u32 s27, s47, 0')
    if stat_at:
        a(f's_mov_b32 s23, {stat_at}')
        wait_tile(0, 4)
    a('L_stp:')
    for q in range(4):
        a(f's_load_dwordx8 s[{(4,12,36,56)[q]}:{(4,12,36,56)[q]+7}], s[26:27], {q*128} glc')
    timeout()
    a('s_waitcnt lgkmcnt(0)')
    a(f's_xor_b32 s67, s5, {TAG}')
    for q in range(4):
        for o in (1, 3, 5, 7):
            if (q, o) != (0, 1):
                a(f's_xor_b32 s75, s{(4,12,36,56)[q]+o}, {TAG}\ns_or_b32 s67, s67, s75')
    a('s_cmp_eq_u32 s67, 0\ns_cbranch_scc1 L_stp_ok\ns_sleep 8\ns_branch L_stp\nL_stp_ok:')
    a(f's_lshl_b32 s67, s73, 13\ns_add_u32 s67, s67, {W_SC}\ns_add_u32 s72, s67, 4096')
    pieces = [q for q in range(8) if (q & 1) < NT]
    for q in pieces:
        a(f'buffer_load_dwordx4 {vr(FR+4*q,4)}, v{28 if (q&1) == NT-1 else 12}, s[52:55], {"s67" if q < 4 else "s72"} offen offset:{(q&3)*1024} sc1')
    a(f's_mov_b32 s75, {fb(LOG2E/16)}')
    for u in range(2):
        for q in range(4):
            a(f'v_mov_b32 v{4+q}, s{(4,12,36,56)[q]+4*u}\nv_mov_b32 v{8+q}, s{(4,12,36,56)[q]+4*u+2}')
        a(f'v_max3_f32 v{16+u}, v4, v5, v6\nv_max_f32 v{16+u}, v{16+u}, v7\nv_mul_f32 v{22+u}, {fb(-LOG2E/16)}, v{16+u}')
        for q in range(4):
            a(f'v_fma_f32 v{4+q}, v{4+q}, s75, v{22+u}')
        for q in range(4):
            a(f'v_exp_f32 v{4+q}, v{4+q}')
        a(f'v_mul_f32 v8, v8, v4\nv_fmac_f32 v8, v9, v5\nv_fmac_f32 v8, v10, v6\nv_fmac_f32 v8, v11, v7\nv_rcp_f32 v{18+u}, v8')
        a(f'v_mov_b32 v{20+u}, v4')
        for q in range(1, 4):
            a(f's_cmp_eq_u32 s22, {q}\ns_cselect_b64 vcc, -1, 0\nv_cndmask_b32 v{20+u}, v{20+u}, v{4+q}, vcc')
    a(f'ds_write_b32 v{VFL}, v20 offset:{FO}\nds_write_b32 v{VFL}, v21 offset:{FO+4}\nds_write_b32 v{VFL}, v18 offset:{FO+8}\nds_write_b32 v{VFL}, v19 offset:{FO+12}')
    a(f'v_add_u32 v11, {PT}, v12')
    for n_, q in enumerate(pieces):
        a(f's_waitcnt vmcnt({len(pieces)-1-n_})')
        for j in range(4):
            r = FR + 4 * q + j
            a(f'v_lshlrev_b32 v{4+2*(j&1)}, 16, v{r}\nv_and_b32 v{5+2*(j&1)}, 0xffff0000, v{r}')
            a(f'v_fma_f32 v{4+2*(j&1)}, v{4+2*(j&1)}, s75, v{22+(j>>1)}\nv_fma_f32 v{5+2*(j&1)}, v{5+2*(j&1)}, s75, v{22+(j>>1)}')
            a(f'v_exp_f32 v{4+2*(j&1)}, v{4+2*(j&1)}\nv_exp_f32 v{5+2*(j&1)}, v{5+2*(j&1)}')
            a(f'v_cvt_pk_bf16_f32 v{r}, v{4+2*(j&1)}, v{5+2*(j&1)}')
        a(f'ds_write_b128 v11, {vr(FR+4*q,4)} offset:{q*1024}')
    a(f'ds_write_b32 v{VFL}, v14 offset:{F_P}')
    stamp(7)
    srd(56, 44, 7168)
    a('s_add_u32 s72, s77, 0x8000')
    if owarm:
        a(f'buffer_load_ushort v29, v{VR4}, s[56:59], s78 offen sc1')
    a(f's_mul_i32 s67, s73, {ctstride}\ns_add_u32 s67, s67, {W_CT}\ns_add_u32 s26, s46, s67\ns_addc_u32 s27, s47, 0')
    a(f's_mov_b32 s23, {64 + NP - LEAD - 1}\nv_add_u32 v11, {CQ}, v{VFL}')
    a('L_claim:')
    wait_tile(0, sleep)
    if stamps:
        a('s_memrealtime s[96:97]\ns_waitcnt lgkmcnt(0)')
    a('s_mov_b32 s24, 1\ns_atomic_add s24, s[26:27], 0 glc\ns_waitcnt lgkmcnt(0)')
    if stamps:
        a('s_memrealtime s[98:99]\ns_waitcnt lgkmcnt(0)\ns_sub_u32 s96, s98, s96\ns_max_u32 s92, s92, s96\ns_add_u32 s93, s93, s96\ns_add_u32 s94, s94, 1')
    a(f's_add_u32 s24, s24, 1\ns_cmp_gt_u32 s24, {NCH}\ns_cbranch_scc1 L_claim_end\nv_mov_b32 v4, s24\nds_write_b32 v11, v4')
    a('v_add_u32 v11, 4, v11\ns_add_u32 s23, s23, 2\ns_branch L_claim')
    a('L_claim_end:')
    a(f's_add_u32 s24, s23, {LEAD + 1}\nv_mov_b32 v4, s24\nds_write_b32 v11, v4\nds_write_b32 v11, v4 offset:4')
    stamp(8)
    if ylate:
        a(f'v_lshlrev_b32 v10, 7, v0\nv_cmp_gt_u32 vcc, 14, v0\nv_mov_b32 v5, 0x1000000\nv_cndmask_b32 v10, v5, v10, vcc\ns_lshl_b32 s75, s74, 11\ns_add_u32 s75, s75, {W_YP}')
        a('buffer_load_dword v29, v10, s[52:55], s75 offen sc1\ns_waitcnt vmcnt(0)')
    a(f's_cmp_ge_u32 s79, 28\ns_cbranch_scc1 {fin}')
    tag_setup()
    a('s_barrier')
    def look(r):
        a(f'buffer_load_dwordx4 {vr(r,4)}, v{VR3}, s[52:55], s77 offen {hl}\nbuffer_load_dwordx4 {vr(r+4,4)}, v{VR3}, s[52:55], s72 offen {hl}')

    def check(r, n):
        a(f's_waitcnt vmcnt({n+1})')
        tag_get(12, r, 13)
        a(f's_waitcnt vmcnt({n})')
        tag_get(4, r + 4, 5)
        a('v_xor_b32 v12, s34, v12\nv_xor_b32 v4, s34, v4\nv_or_b32 v12, v12, v4\nv_cmp_ne_u32 vcc, 0, v12')
    if mask2:
        a('s_mov_b64 s[14:15], -1\ns_mov_b64 s[16:17], -1')
        a('L_hop2:')
        a(f's_mov_b64 exec, s[14:15]\ns_cbranch_execz L_h2a\nbuffer_load_dwordx4 {vr(FR,4)}, v{VR3}, s[52:55], s77 offen sc1\nL_h2a:')
        a(f's_mov_b64 exec, s[16:17]\ns_cbranch_execz L_h2b\nbuffer_load_dwordx4 {vr(FR+4,4)}, v{VR3}, s[52:55], s72 offen sc1\nL_h2b:')
        a('s_mov_b64 exec, -1')
        timeout()
        a('s_waitcnt vmcnt(0)')
        tag_get(12, FR, 13)
        tag_get(4, FR + 4, 5)
        a('v_cmp_ne_u32 s[14:15], s34, v12\nv_cmp_ne_u32 s[16:17], s34, v4\ns_or_b64 vcc, s[14:15], s[16:17]\ns_cbranch_vccnz L_hop2')
        a(f'v_pk_add_f32 v[8:9], v[{FR}:{FR+1}], v[{FR+4}:{FR+5}]\nv_pk_add_f32 v[10:11], v[{FR+2}:{FR+3}], v[{FR+6}:{FR+7}]')
    elif pipe2:
        sets = [FR + 8 * j for j in range(pipe2)]
        for j in range(pipe2 - 1):
            look(sets[j])
            a(f's_sleep {h2sleep}')
        a('L_hop2:')
        for j in range(pipe2):
            look(sets[(j - 1) % pipe2])
            timeout()
            check(sets[j], 2 * (pipe2 - 1))
            a(f's_cbranch_vccz L_hop2_got{j}')
        a('s_branch L_hop2')
        for j in range(pipe2):
            a(f'L_hop2_got{j}:')
            a(f'v_pk_add_f32 v[8:9], v[{sets[j]}:{sets[j]+1}], v[{sets[j]+4}:{sets[j]+5}]\nv_pk_add_f32 v[10:11], v[{sets[j]+2}:{sets[j]+3}], v[{sets[j]+6}:{sets[j]+7}]')
            if j < pipe2 - 1:
                a('s_branch L_hop2_sum')
        a('L_hop2_sum:')
    else:
        a('L_hop2:')
        look(FR)
        timeout()
        check(FR, 0)
        if 'nowait' not in diag:
            a('s_cbranch_vccnz L_hop2')
        a(f'v_pk_add_f32 v[8:9], v[{FR}:{FR+1}], v[{FR+4}:{FR+5}]\nv_pk_add_f32 v[10:11], v[{FR+2}:{FR+3}], v[{FR+6}:{FR+7}]')
    a('v_add_f32_dpp v4, v8, v8 row_ror:8 row_mask:0xf bank_mask:0x3\nv_add_f32_dpp v5, v9, v9 row_ror:8 row_mask:0xf bank_mask:0x3')
    a('v_add_f32_dpp v4, v10, v10 row_ror:8 row_mask:0xf bank_mask:0xc\nv_add_f32_dpp v5, v11, v11 row_ror:8 row_mask:0xf bank_mask:0xc')
    a('v_add_f32_dpp v6, v4, v4 row_shl:4 row_mask:0xf bank_mask:0x5\nv_add_f32_dpp v6, v5, v5 row_shr:4 row_mask:0xf bank_mask:0xa')
    reduce_rows('add', 6, 7)
    a(f'v_add_f32 v6, v6, v{VXB}\nv_cvt_pk_bf16_f32 v6, v6, v6')
    a(f'buffer_store_short v6, v{VR4}, s[56:59], s78 offen {osc}')
    stamp(10)
    if stamps:
        a('s_waitcnt vmcnt(0)')
        stamp(9)
    if spin is not None:
        a(f's_sub_u32 s96, s{80+spin}, s80')
        a('L_spin:\ns_memrealtime s[98:99]\ns_waitcnt lgkmcnt(0)\ns_sub_u32 s97, s98, s90\ns_cmp_lt_u32 s97, s96\ns_cbranch_scc1 L_spin')
    a(f's_cmp_lg_u32 s74, 0\ns_cbranch_scc1 {fin}')
    a(f'v_mov_b32 v4, {TAG}\ns_mov_b64 exec, 1\nbuffer_store_dword v4, off, s[52:55], 0 sc1')
    a(f's_mov_b64 exec, -1\ns_branch {fin}')

    a('L_consumer:')
    a('s_load_dwordx2 s[24:25], s[0:1], 0\ns_load_dwordx2 s[46:47], s[0:1], 96')
    a('s_load_dwordx2 s[30:31], s[0:1], 32\ns_load_dwordx2 s[40:41], s[0:1], 64')
    a('s_sub_u32 s23, s3, 1')
    a(f'v_lshrrev_b32 v6, 5, v0\nv_and_b32 v7, 31, v0\ns_lshl_b32 s67, s23, 1\nv_add_u32 v6, s67, v6')
    a(f'v_mul_u32_u24 v8, 896, v6\nv_lshl_add_u32 v8, v7, 5, v8\nv_cmp_gt_u32 vcc, 28, v7')
    a(f'v_mov_b32 v9, 0x10000\nv_cndmask_b32 v8, v9, v8, vcc')
    a('s_mov_b32 s50, 7168\ns_mov_b32 s51, 0x20000')
    a('s_waitcnt lgkmcnt(0)')
    if stamps:
        a('s_mov_b32 s80, s98')
    a('s_mov_b32 s48, s24\ns_mov_b32 s49, s25')
    a(f'buffer_load_dwordx4 {vr(XR,4)}, v8, s[48:51], 0 offen\nbuffer_load_dwordx4 {vr(XR+4,4)}, v8, s[48:51], 0 offen offset:16')
    a('s_load_dword s64, s[46:47], 0')
    a(f'v_cndmask_b32 v{VMK}, 0, 1.0, vcc')
    a(f'v_mul_u32_u24 v{VXO}, {XS}, v6\nv_lshl_add_u32 v{VXO}, v7, 5, v{VXO}\nv_add_u32 v{VXO}, {XN}, v{VXO}')
    a('s_mov_b64 s[70:71], vcc')
    common_ids()
    a(f's_lshl_b32 s67, s23, 2\nv_add_u32 v15, s67, v{VFL}')
    srd(52, 46, W_STAMP + 0x40000 if stamps else W_END)
    a('v_and_b32 v10, 1, v0\nv_bfe_u32 v11, v0, 1, 2\nv_cmp_eq_u32 vcc, 0, v10')
    a('v_mov_b32 v12, 0x01000c0c\nv_mov_b32 v13, 0x0c0c0100\nv_cndmask_b32 v12, v12, v13, vcc')
    a('v_mov_b32 v10, 0x03020c0c\nv_mov_b32 v13, 0x0c0c0302\nv_cndmask_b32 v13, v10, v13, vcc')
    a('v_mov_b32 v10, 0x0c0c0c0c')
    for i in range(4):
        a(f'v_cmp_eq_u32 vcc, {i}, v11\nv_cndmask_b32 v{SEL+i}, v10, v12, vcc\nv_cndmask_b32 v{SEL+4+i}, v10, v13, vcc')
    a('v_lshrrev_b32 v10, 4, v0\nv_and_b32 v11, 15, v0\ns_lshl_b32 s67, s23, 13\nv_lshlrev_b32 v12, 9, v11\nv_add_u32 v12, s67, v12')
    for j in range(4):
        a(f'v_add_u32 v13, {4*j}, v10\nv_xor_b32 v13, v13, v11\nv_lshl_add_u32 v{KA+j}, v13, 4, v12\nv_add_u32 v{KA+4+j}, 0x10000, v{KA+j}')
    a(f'v_lshlrev_b32 v12, 11, v10\nv_lshl_add_u32 v12, v11, 4, v12\nv_add_u32 v{VA}, s67, v12\nv_add_u32 v{VA+1}, 0x10000, v{VA}')
    a(f'v_mov_b32 v{VM}, 0xff800000')
    a('s_barrier')
    a('s_waitcnt vmcnt(0)')
    stamp(1)
    layernorm(XR, XF, VMK)
    a('s_mov_b64 exec, s[70:71]')
    a(f'ds_write_b128 v{VXO}, {vr(XR,4)} offset:0\nds_write_b128 v{VXO}, {vr(XR+4,4)} offset:16')
    a('s_mov_b64 exec, -1')
    set_flag(F_X)
    stamp(2)
    a(f's_cmp_ge_u32 s32, 14\ns_cbranch_scc1 L_noln2')
    layernorm(XR, XF, VMK)
    a('s_mov_b64 exec, s[70:71]')
    a(f'ds_write_b128 v{VXO}, {vr(XR,4)} offset:{YN-XN}\nds_write_b128 v{VXO}, {vr(XR+4,4)} offset:{YN-XN+16}')
    a('s_mov_b64 exec, -1')
    set_flag(F_Y)
    a('L_noln2:')
    a('s_waitcnt lgkmcnt(0)\ns_add_u32 s64, s64, 1')

    def kfrag(k, ks):
        return ar(32 + 32 * k + 4 * ks, 4) if k < NDRAIN - 1 else vr(FR + 4 * ks, 4)

    def k_reads(k):
        for ks in range(8):
            a(f'ds_read_b128 {kfrag(k, ks)}, v{KA + (4 if k & 2 else 0) + (ks & 3)} offset:{(k&1)*32768 + (ks>>2)*256}')

    def k_finish(k):
        a(f'v_max3_f32 v{VM}, v{VM}, v{DT}, v{DT+1}\nv_max3_f32 v{VM}, v{VM}, v{DT+2}, v{DT+3}')
        a(f'v_cvt_pk_bf16_f32 v{P+2*k}, v{DT}, v{DT+1}\nv_cvt_pk_bf16_f32 v{P+2*k+1}, v{DT+2}, v{DT+3}')

    for k in range(NDRAIN):
        wait_tile(4 * k, sleep)
        k_reads(k)
        a(f'v_mov_b32 v{T0+1}, {k+1}\ns_waitcnt lgkmcnt(0)\nds_write_b32 v15, v{T0+1} offset:{F_CONS}')
    stamp(3)
    wait_flags(F_Q, 1, sleep)
    stamp(4)
    a(f'v_bfe_u32 v10, v0, 3, 1\nv_lshrrev_b32 v11, 4, v0\nv_lshlrev_b32 v10, 9, v10\nv_lshl_add_u32 v10, v11, 4, v10\nv_add_u32 v10, {QL}, v10')
    for ks in range(8):
        a(f'ds_read_b128 {ar(4*ks,4)}, v10 offset:{ks*64}')
    for k in range(NDRAIN):
        for ks in range(8):
            if k == 0:
                a(f's_waitcnt lgkmcnt({7-ks})')
            c = '0' if ks == 0 else vr(DT, 4)
            a(f'v_mfma_f32_16x16x32_bf16 {vr(DT,4)}, {kfrag(k, ks)}, {ar(4*ks,4)}, {c}')
        k_finish(k)

    for k in range(NDRAIN, 16):
        wait_tile(4 * k, sleep)
        k_reads(k)
        a(f'v_mov_b32 v{T0+1}, {k+1}')
        for ks in range(8):
            a(f's_waitcnt lgkmcnt({7-ks})')
            if ks == 7:
                a(f'ds_write_b32 v15, v{T0+1} offset:{F_CONS}')
            c = '0' if ks == 0 else vr(DT, 4)
            a(f'v_mfma_f32_16x16x32_bf16 {vr(DT,4)}, {vr(FR+4*ks,4)}, {ar(4*ks,4)}, {c}')
        k_finish(k)
        if k == kw2:
            srd(60, 40, 1792 * 896)
            a('s_lshl2_add_u32 s75, s20, s22\ns_lshl2_add_u32 s75, s75, s23\ns_mul_i32 s78, s75, 14')
            a(f'v_lshrrev_b32 v10, 3, v0\nv_and_b32 v11, 7, v0\nv_mul_u32_u24 v10, {2*896}, v10\nv_lshl_add_u32 v{VL}, v11, 4, v10')
            a('s_mul_i32 s76, s78, 896\ns_add_u32 s77, s76, 896')
        if kw2 <= k < kw2 + 4 and not now2:
            for j in range(4 * (k - kw2), min(14, 4 * (k - kw2) + 4)):
                t, cb = divmod(j, 7)
                a(f'buffer_load_dwordx4 {ar(32+4*j,4)}, v{VL}, s[60:63], {"s76" if t == 0 else "s77"} offen offset:{cb*128} {wflags}')
        if k == khp:
            l = lab('hp')
            a(f's_lshl_b32 s67, s21, 13\ns_lshl_b32 s75, s78, 2\ns_add_u32 s67, s67, s75\ns_add_u32 s67, s67, {W_H}')
            a(f'v_lshrrev_b32 v10, 3, v0\nv_cmp_gt_u32 s[68:69], 7, v10\nv_min_u32 v10, 6, v10\nv_lshlrev_b32 v10, 3, v10')
            a(f'{l}:')
            a(f'buffer_load_dwordx2 v[4:5], v10, s[52:55], s67 offen sc1')
            timeout()
            a(f's_waitcnt vmcnt(0)\nv_cmp_ne_u32 vcc, {TAG}, v5')
            if 'noh' not in diag:
                a(f's_cbranch_vccnz {l}')
            a('v_cndmask_b32 v4, 0, v4, s[68:69]')
            build_a(AT, 4, 0)
            build_a(AT + 4, 4, 1)
            for t in range(2):
                for cb in range(7):
                    c = '0' if t == 0 else ar(YA + 4 * cb, 4)
                    a(f'v_mfma_f32_16x16x32_bf16 {ar(YA+4*cb,4)}, {vr(AT+4*t,4)}, {ar(32+4*(t*7+cb),4)}, {c}')
    stamp(5)
    a(f'v_lshrrev_b32 v10, 3, v0\nv_lshlrev_b32 v10, 3, v10\ns_lshl_b32 s67, s23, 6\ns_add_u32 s67, s67, {SC}\nv_add_u32 v10, s67, v10')
    for k in range(NP // 4, 16):
        a(f'ds_write_b64 v10, v[{P+2*k}:{P+2*k+1}] offset:{(k - NP//4)*256}')
    reduce_rows('max', VM, T0)
    rnd(VM)
    a(f'v_bfe_u32 v10, v0, 3, 1\nv_lshl_add_u32 v10, v10, 2, v{VFL}\ns_lshl_b32 s67, s23, 3\nv_add_u32 v11, s67, v10')
    a(f'ds_write_b32 v11, v{VM} offset:{MX}')
    set_flag(F_M)
    wait_flags(F_M, 4)
    a(f'ds_read2_b32 v[4:5], v10 offset0:{MX//4} offset1:{MX//4+2}\nds_read2_b32 v[6:7], v10 offset0:{MX//4+4} offset1:{MX//4+6}')
    a(f's_mov_b32 s75, {fb(LOG2E/16)}\nv_mov_b32 v{VL}, 0\nv_mov_b32 v12, 0')
    a(f's_waitcnt lgkmcnt(0)\nv_max3_f32 v4, v4, v5, v6\nv_max_f32 v{VM}, v4, v7\nv_mul_f32 v13, {fb(-LOG2E/16)}, v{VM}')
    for j in range(0, 32, 2):
        a(f'v_lshlrev_b32 v4, 16, v{P+j}\nv_and_b32 v5, 0xffff0000, v{P+j}\nv_lshlrev_b32 v6, 16, v{P+j+1}\nv_and_b32 v7, 0xffff0000, v{P+j+1}')
        for r in range(4):
            a(f'v_fma_f32 v{4+r}, v{4+r}, s75, v13')
        for r in range(4):
            a(f'v_exp_f32 v{4+r}, v{4+r}')
        a(f'v_add_f32 v{VL}, v{VL}, v4\nv_add_f32 v12, v12, v5\nv_cvt_pk_bf16_f32 v{P+j}, v4, v5')
        a(f'v_add_f32 v{VL}, v{VL}, v6\nv_add_f32 v12, v12, v7\nv_cvt_pk_bf16_f32 v{P+j+1}, v6, v7')
    a(f'v_add_f32 v{VL}, v{VL}, v12')
    reduce_rows('add', VL, T0)
    a(f'ds_write_b32 v11, v{VL} offset:{LS}')
    set_flag(F_L)
    srd(60, 30, 4096 * 896)
    a('s_lshl_b32 s75, s20, 5\ns_lshl2_add_u32 s78, s22, s23\ns_add_u32 s75, s75, s78\ns_mul_i32 s78, s75, 16*896')
    a(f'v_lshrrev_b32 v10, 4, v0\nv_bfe_u32 v11, v0, 3, 1\nv_lshl_add_u32 v10, v11, 6, v10\nv_and_b32 v11, 7, v0\nv_mul_u32_u24 v10, {4*896}, v10\nv_lshl_add_u32 v{VL}, v11, 4, v10')

    def v_mfmas(preg, first, extra, done):
        for r in range(4):
            at = AT + 4 * (r & 1)
            if r == 0 and extra:
                a('s_waitcnt lgkmcnt(8)')
            build_a(at, preg + (r >> 1), r & 1)
            for hf in range(2):
                a(f's_waitcnt lgkmcnt({7-(2*r+hf)})')
                if r == 3 and hf == 1:
                    done()
                c = '0' if (first and r == 0) else vr(OA + 4 * hf, 4)
                a(f'v_mfma_f32_16x16x32_bf16 {vr(OA+4*hf,4)}, {vr(at,4)}, {vr(FR+4*(2*r+hf),4)}, {c}')

    for k in range(NP // 4):
        wait_tile(64 + 4 * k, sleep)
        for r in range(4):
            for hf in range(2):
                a(f'ds_read_b128 {vr(FR+4*(2*r+hf),4)}, v{VA + (1 if k & 2 else 0)} offset:{(k&1)*32768 + r*512 + hf*256}')
        a(f'v_mov_b32 v{T0+1}, {k+17}')
        v_mfmas(P + 2 * k, k == 0, False, lambda: a(f'ds_write_b32 v15, v{T0+1} offset:{F_CONS}'))
        if k < 7 and not nowo:
            for j in range(4 * k, 4 * k + 4):
                t, cb = divmod(j, 7)
                if j % 7 == 0 or j % 4 == 0:
                    a(f's_add_u32 s67, s78, {t*896}')
                a(f'buffer_load_dwordx4 {ar(4*j,4)}, v{VL}, s[60:63], s67 offen offset:{cb*128} {wflags}')
    VO1, VO2, VO3, VO4, VO5 = P, P + 1, P + 2, P + 3, P + 4
    a(f'v_lshrrev_b32 v10, 5, v0\nv_and_b32 v11, 15, v0\nv_lshlrev_b32 v10, 10, v10\nv_lshl_add_u32 v10, v11, 5, v10')
    a(f'v_bfe_u32 v11, v0, 4, 1\nv_lshl_add_u32 v{VO3}, v11, 4, v10\nv_mov_b32 v13, 0x1000000')
    a(f'v_lshlrev_b32 v10, 4, v0\nv_add_u32 v{VO1}, {OPL}, v10')
    a(f's_lshl_b32 s68, s74, 11\ns_add_u32 s68, s68, {W_OP}')
    a(f'v_and_b32 v10, 3, v0\nv_bfe_u32 v11, v0, 3, 1\nv_lshl_add_u32 v10, v10, 1, v11\nv_lshrrev_b32 v11, 4, v0\nv_lshlrev_b32 v10, 10, v10\nv_lshl_add_u32 v{VO4}, v11, 4, v10')
    a(f's_lshl_b32 s69, s73, 13\ns_lshl2_add_u32 s67, s22, s23\ns_lshl_b32 s67, s67, 6\ns_add_u32 s69, s69, s67\ns_add_u32 s69, s69, {W_OP}')
    a(f'v_lshrrev_b32 v10, 5, v0\ns_lshl_b32 s67, s23, 1\nv_add_u32 v10, s67, v10\nv_mul_u32_u24 v10, {RS}, v10')
    a(f'v_and_b32 v11, 7, v0\nv_lshl_add_u32 v10, v11, 5, v10\nv_bfe_u32 v11, v0, 4, 1\nv_lshl_add_u32 v10, v11, 4, v10\nv_add_u32 v{VO5}, {RED}, v10')
    VR1, VR2, VQ, VPT, VPP, VVA = P + 5, P + 6, P + 7, P + 8, P + 10, P + 12
    a(f'v_lshrrev_b32 v10, 1, v0\nv_min_u32 v10, 27, v10\ns_mul_i32 s67, s23, 28\nv_add_u32 v10, s67, v10\nv_lshlrev_b32 v10, 4, v10')
    a(f'v_and_b32 v11, 1, v0\nv_mul_u32_u24 v12, {4*RS}, v11\nv_add3_u32 v{VR1}, v10, v12, v{VFL}')
    a(f'v_add_u32 v{VR1}, {RED-FLG}, v{VR1}')
    a(f'v_cmp_gt_u32 vcc, 56, v0\nv_cndmask_b32 v10, v13, v10, vcc\nv_cmp_eq_u32 vcc, 0, v11\nv_cndmask_b32 v{VR2}, v13, v10, vcc')
    a(f's_lshl_b32 s76, s74, 11\ns_add_u32 s76, s76, {W_YP}')
    a(f's_lshr_b32 s67, s23, 1\ns_lshl_b32 s67, s67, 2\ns_add_u32 s67, s67, {FLG + CQ}\nv_mov_b32 v{VQ}, s67')
    a(f'v_lshrrev_b32 v10, 3, v0\nv_lshlrev_b32 v10, 3, v10\ns_and_b32 s67, s23, 1\ns_lshl_b32 s67, s67, 6\ns_add_u32 s67, s67, {PT}\nv_add_u32 v{VPT}, s67, v10')
    VFA, VFB, OF = P + 13, P + 14, P + 16
    a(f'v_lshrrev_b32 v10, 4, v0\nv_bfe_u32 v11, v0, 3, 1\nv_and_b32 v12, 1, v10\nv_lshl_add_u32 v11, v12, 1, v11\nv_xor_b32 v11, s23, v11')
    a(f'v_lshlrev_b32 v11, 5, v11\nv_lshl_add_u32 v11, v10, 10, v11\nv_bfe_u32 v12, v0, 2, 2\nv_lshl_add_u32 v11, v12, 7, v11\nv_and_b32 v12, 3, v0\nv_lshl_add_u32 v{VFA}, v12, 3, v11')
    a(f'v_lshrrev_b32 v11, 5, v0\nv_bfe_u32 v12, v0, 4, 1\nv_lshlrev_b32 v11, 6, v11\nv_lshl_add_u32 v11, v12, 5, v11\nv_bfe_u32 v12, v0, 3, 1\nv_lshl_add_u32 v11, v12, 3, v11')
    a(f'v_add_u32 v{VFB}, {PT + (S - NF)*64}, v11')
    tag_setup()
    VTG = P + 9
    a(f'v_mov_b32 v{VTG}, s34')
    wait_flags(F_P, 1, sleep)
    a(f'v_lshrrev_b32 v10, 5, v0\nv_lshl_add_u32 v10, v10, 2, v{VFL}\nds_read_b32 v11, v10 offset:{FO}')
    a(f'v_bfe_u32 v10, v0, 3, 1\nv_lshl_add_u32 v10, v10, 2, v{VFL}\nds_read_b32 v{VW}, v10 offset:{FO+8}')
    a(f's_add_u32 s72, s23, {64 + NP}\ns_waitcnt vmcnt(0) lgkmcnt(0)')
    for j in range(8):
        a(f'v_mul_f32 v{OA+j}, v{OA+j}, v11')
    stamp(10)
    a('L_pool:')
    a(f'ds_read_b32 v4, v{VQ}\nds_read_b32 v5, v{VFL} offset:{F_LAND}\ns_waitcnt lgkmcnt(0)')
    a(f'v_readfirstlane_b32 s24, v4\nv_readfirstlane_b32 s65, v5\ns_cmp_gt_u32 s24, {NCH}\ns_cbranch_scc1 L_pool_end')
    a('s_cmp_gt_i32 s65, s72\ns_cbranch_scc1 L_pool_go')
    timeout()
    if psleep:
        a(f's_sleep {psleep}')
    a('s_branch L_pool\nL_pool_go:')
    a(f's_cmp_eq_u32 s24, 0\ns_cbranch_scc1 L_pool')
    a('s_sub_u32 s24, s24, 1\ns_and_b32 s25, s24, 3\ns_lshl_b32 s25, s25, 11\ns_lshr_b32 s24, s24, 2\ns_lshl_b32 s24, s24, 7\ns_add_u32 s24, s24, s25')
    a(f's_and_b32 s25, s72, 12\ns_lshl_b32 s25, s25, 13\nv_add_u32 v4, s24, v{VPT}\nv_add_u32 v{VVA}, s25, v{VA}')
    a(f'ds_read_b64 v[{VPP}:{VPP+1}], v4')
    for r in range(4):
        for hf in range(2):
            a(f'ds_read_b128 {vr(FR+4*(2*r+hf),4)}, v{VVA} offset:{r*512 + hf*256}')
    a(f's_lshr_b32 s25, s72, 2\ns_add_u32 s25, s25, 1\nv_mov_b32 v{T0+1}, s25\nv_add_u32 v{VQ}, 8, v{VQ}\ns_add_u32 s72, s72, 4')
    v_mfmas(VPP, False, True, lambda: a(f'ds_write_b32 v15, v{T0+1} offset:{F_CONS}'))
    a('s_branch L_pool')
    a('L_pool_end:')
    a('s_sub_u32 s25, s23, s24\ns_and_b32 s25, s25, 3\ns_cmp_eq_u32 s25, 3\ns_cbranch_scc1 L_collect')
    a(f's_lshl_b32 s67, s25, 11\nv_add_u32 v{VO2}, s67, v{VO1}\ns_lshl_b32 s67, s25, 2\nv_add_u32 v4, s67, v{VFL}')
    a(f'ds_write_b128 v{VO2}, {vr(OA,4)}\nds_write_b128 v{VO2}, {vr(OA+4,4)} offset:1024\nds_write_b32 v4, v14 offset:{F_O}')
    stamp(6)
    a('s_branch L_collected')
    a('L_collect:')
    stamp(6)
    a('L_collect_rt:')
    a(f'ds_read_b128 v[4:7], v{VFL} offset:{F_O}')
    for j in range(6):
        a(f'ds_read_b128 {vr(FR+4*j,4)}, v{VO1} offset:{j*1024}')
    timeout()
    a('s_waitcnt lgkmcnt(6)\nv_min3_u32 v4, v4, v5, v6\nv_cmp_eq_u32 vcc, 0, v4\ns_cbranch_vccz L_collect_ok\ns_waitcnt lgkmcnt(0)\ns_branch L_collect_rt\nL_collect_ok:')
    for j in range(6):
        a(f's_waitcnt lgkmcnt({5-j})')
        o = OA + 4 * (j & 1)
        a(f'v_pk_add_f32 v[{o}:{o+1}], v[{o}:{o+1}], v[{FR+4*j}:{FR+4*j+1}]\nv_pk_add_f32 v[{o+2}:{o+3}], v[{o+2}:{o+3}], v[{FR+4*j+2}:{FR+4*j+3}]')
        if j >= 4:
            tag_put(o, VTG)
            a(f'buffer_store_dwordx4 {vr(o,4)}, v{VO3}, s[52:55], s68 offen offset:{512*(j&1)} {hs}')
    a('L_collected:')
    stamp(7)
    G = P + 20
    a('s_mov_b32 s72, s23\ns_mov_b32 s23, s24')
    for f in range(NF):
        wait_tile(f, 0)
        a(f's_add_u32 s25, s23, {f}\ns_and_b32 s25, s25, 15\ns_lshl_b32 s25, s25, 13\nv_add_u32 v{VVA}, s25, v{VFA}')
        for blk in range(2):
            q_, t_ = blocks[2*f + blk]
            a(f'v_add_u32 v{4+blk}, {q_*2048 + (t_ - (64 - NF))*64}, v{VFB}')
            a(f'ds_read2_b64 {vr(FR+16+4*blk,4)}, v{4+blk} offset0:0 offset1:2')
            for hh in range(2):
                a(f'ds_read_b64_tr_b16 {vr(FR+4*blk+2*hh,2)}, v{VVA} offset:{blk*4096 + hh*512}')
        if f == gat:
            a(f'buffer_load_dwordx4 {vr(G,4)}, v{VO4}, s[52:55], s69 offen {hl}')
        for blk in range(2):
            c = '0' if (f == 0 and blk == 0) else vr(OF, 4)
            a(f's_waitcnt lgkmcnt({3 - 3*blk})\nv_mfma_f32_16x16x32_bf16 {vr(OF,4)}, {vr(FR+4*blk,4)}, {vr(FR+16+4*blk,4)}, {c}')
    a('s_mov_b32 s23, s72')
    stamp(3)
    a('s_branch L_hop1_chk')
    a('L_hop1:')
    if mask1:
        a('s_mov_b64 exec, vcc')
    a(f'buffer_load_dwordx4 {vr(G,4)}, v{VO4}, s[52:55], s69 offen {hl}')
    if mask1:
        a('s_mov_b64 exec, -1')
    timeout()
    a('L_hop1_chk:')
    a('s_waitcnt vmcnt(0)')
    tag_get(8, G, 9)
    a('v_cmp_ne_u32 vcc, s34, v8')
    if 'nowait' not in diag:
        a('s_cbranch_vccnz L_hop1')
    stamp(8)
    for r in range(4):
        a(f'v_add_f32_dpp v{4+r}, v{G+r}, v{G+r} quad_perm:[1,0,3,2] row_mask:0xf bank_mask:0xf')
    for r in range(4):
        a(f'v_add_f32_dpp v{4+r}, v{4+r}, v{4+r} quad_perm:[2,3,0,1] row_mask:0xf bank_mask:0xf')
    for r in range(4):
        a(f'v_add_f32 v{4+r}, v{4+r}, v{OF+r}')
    for r in range(4):
        a(f'v_mul_f32 v{4+r}, v{4+r}, v{VW}')
    a('v_cvt_pk_bf16_f32 v4, v4, v5\nv_cvt_pk_bf16_f32 v6, v6, v7')
    if cbmajor:
        A4 = (AT, AT + 4, FR, FR + 4)
        build_a(A4[0], 4, 0)
        a(f'v_mfma_f32_16x16x32_bf16 {ar(YA,4)}, {vr(A4[0],4)}, {ar(0,4)}, {ar(YA,4)}')
        build_a(A4[1], 4, 1)
        a(f'v_mfma_f32_16x16x32_bf16 {ar(YA+4,4)}, {vr(A4[0],4)}, {ar(4,4)}, {ar(YA+4,4)}')
        build_a(A4[2], 6, 0)
        a(f'v_mfma_f32_16x16x32_bf16 {ar(YA,4)}, {vr(A4[1],4)}, {ar(28,4)}, {ar(YA,4)}')
        build_a(A4[3], 6, 1)
        a('s_mov_b32 s24, 0x00ff00ff\ns_mov_b32 s25, 0xff00ff00')
        todo = [(cb, t) for cb in range(7) for t in range(4) if (cb, t) not in ((0, 0), (1, 0), (0, 1))]
        pend = []
        for n_, (cb, t) in enumerate(todo):
            a(f'v_mfma_f32_16x16x32_bf16 {ar(YA+4*cb,4)}, {vr(A4[t],4)}, {ar(4*(t*7+cb),4)}, {ar(YA+4*cb,4)}')
            if t == 3:
                pend.append((cb, n_))
            if pend and n_ - pend[0][1] >= 4:
                c_ = pend.pop(0)[0]
                a(f's_mov_b64 exec, s[24:25]\nds_write_b128 v{VO5}, {ar(YA+4*c_,4)} offset:{c_*256}\ns_mov_b64 exec, -1')
        a('s_mov_b64 exec, s[24:25]')
        for c_, _ in pend:
            a(f'ds_write_b128 v{VO5}, {ar(YA+4*c_,4)} offset:{c_*256}')
    else:
        build_a(AT, 4, 0)
        for t in range(4):
            for cb in range(7):
                a(f'v_mfma_f32_16x16x32_bf16 {ar(YA+4*cb,4)}, {vr(AT+4*(t&1),4)}, {ar(4*(t*7+cb),4)}, {ar(YA+4*cb,4)}')
                if cb == 0 and t < 3:
                    build_a(AT + 4 * ((t + 1) & 1), 4 + 2 * ((t + 1) >> 1), (t + 1) & 1)
        a('s_mov_b32 exec_lo, 0x00ff00ff\ns_mov_b32 exec_hi, 0xff00ff00')
        for cb in range(7):
            a(f'ds_write_b128 v{VO5}, {ar(YA+4*cb,4)} offset:{cb*256}')
    a('s_mov_b64 exec, -1\ns_waitcnt lgkmcnt(0)\ns_barrier')
    for j in range(4):
        a(f'ds_read_b128 {vr(FR+4*j,4)}, v{VR1} offset:{j*RS}')
    a(f's_waitcnt lgkmcnt(2)\nv_pk_add_f32 v[4:5], v[{FR}:{FR+1}], v[{FR+4}:{FR+5}]\nv_pk_add_f32 v[6:7], v[{FR+2}:{FR+3}], v[{FR+6}:{FR+7}]')
    a(f's_waitcnt lgkmcnt(1)\nv_pk_add_f32 v[4:5], v[4:5], v[{FR+8}:{FR+9}]\nv_pk_add_f32 v[6:7], v[6:7], v[{FR+10}:{FR+11}]')
    a(f's_waitcnt lgkmcnt(0)\nv_pk_add_f32 v[4:5], v[4:5], v[{FR+12}:{FR+13}]\nv_pk_add_f32 v[6:7], v[6:7], v[{FR+14}:{FR+15}]')
    for r in range(4):
        a(f'v_add_f32_dpp v{4+r}, v{4+r}, v{4+r} quad_perm:[1,0,3,2] row_mask:0xf bank_mask:0xf')
    tag_put(4, VTG)
    a(f'buffer_store_dwordx4 v[4:7], v{VR2}, s[52:55], s76 offen {hs}')
    stamp(9)
    if stamps:
        a('s_mov_b64 exec, -1')
        a('L_stamp_out:')
        srd(52, 46, W_STAMP + 0x40000)
        a('s_getreg_b32 s95, hwreg(HW_REG_XCC_ID)')
        a(f's_mul_i32 s67, s2, 6\ns_add_u32 s67, s67, s3\ns_lshl_b32 s67, s67, 6\ns_add_u32 s67, s67, {W_STAMP}')
        for k in range(16):
            a(f'v_mov_b32 v{16+k}, s{80+k}')
        a('s_mov_b64 exec, 1')
        for k in range(4 if store_stamps else 0):
            a(f'buffer_store_dwordx4 v[{16+4*k}:{19+4*k}], off, s[52:55], s67 offset:{16*k}')
    a('L_end:')
    a('s_endpgm')
    body = a.finalize()
    head = header or ''
    head += f'; @launch grid=(256,1,1) block=(384,1,1) lds={LDS_BYTES}\n'
    head += f'.amdgcn_target "amdgcn-amd-amdhsa--gfx950"\n.text\n.globl {NAME}\n.p2align 8\n.type {NAME},@function\n'
    tail = f'''.section .rodata,"a"
.p2align 6
.amdhsa_kernel {NAME}
  .amdhsa_next_free_vgpr 256
  .amdhsa_next_free_sgpr 102
  .amdhsa_accum_offset 112
  .amdhsa_group_segment_fixed_size 0
  .amdhsa_kernarg_size 104
  .amdhsa_user_sgpr_count 2
  .amdhsa_user_sgpr_kernarg_segment_ptr 1
  .amdhsa_system_sgpr_workgroup_id_x 1
  .amdhsa_float_denorm_mode_32 3
.end_amdhsa_kernel
'''
    return head + body + tail


if __name__ == '__main__':
    ref = open('parallel_sum__gqa_block_cached__mixer_channel_mlp__decode.s.ref').read().split('\n')
    hdr = '\n'.join(l for l in ref if l.startswith(';') and '@launch' not in l and 'Override' not in l and 'grid=ceil' not in l) + '\n'
    kw = eval('dict(' + (sys.argv[2] if len(sys.argv) > 2 else '') + ')')
    out = sys.argv[1] if len(sys.argv) > 1 else 'parallel_sum__gqa_block_cached__mixer_channel_mlp__decode.s'
    open(out, 'w').write(gen(header=hdr, **kw))
    print('wrote', out)
```

```python
import struct, sys, os
sys.path.insert(0, os.path.dirname(os.path.abspath(__file__)))
from asmkit import Asm

NAME = "parallel_sum__gqa_block_cached__mixer_channel_mlp__decode_kernel"


def fb(x):
    return '0x%08x' % struct.unpack('<I', struct.pack('<f', x))[0]


LOG2E = 1.4426950408889634
RING = 0
FLG = 131072
F_LAND, F_CONS, F_X, F_Q, F_Y, F_M, F_L, F_O, MX, LS = 0, 16, 32, 48, 64, 80, 96, 112, 128, 160
QL = FLG + 1024
XN = QL + 1024
XS = 912
YN = XN + 8 * XS
STG = YN + 8 * XS
LDS_BYTES = STG + 14336
OPL = XN
RED = XN + 6144
RS = 1824
PT = RED + 8 * RS
SC = XN
F_P, FO, CQ = 192, 196, 256
assert PT + 8192 <= LDS_BYTES
W_Q = 0x1000
W_H = 0x21000
W_ST = 0x31000
W_OP = 0x40000
W_YP = 0xC0000
W_SC = 0x140000
W_CT = 0x1c0000
W_END = 0x210000
W_STAMP = 0x220000


def vr(a, n=1):
    return f'v{a}' if n == 1 else f'v[{a}:{a+n-1}]'


def ar(a, n=1):
    return f'a{a}' if n == 1 else f'a[{a}:{a+n-1}]'


def gen(D=22, kflags='nt', vflags='nt', wflags='', stamps=False, sleep=1, prefetch=True, header=None, spin=None, warm=True, NDRAIN=4, diag='', qsleep=0, D0=None, qat=18, qstep=3, pfsplit=True, lateclear=True, remap=3, LEAD=6, h2sleep=6, nowo=False, now2=False, swarm=True, DF=28, gat=None, NP=52, NF=6, psleep=0, ctstride=4352, rwarm=None, rwall=False, slabd=4, slabd1=2, hlate=True, kw2=10, khp=14, qrot=0, hoff=16, qflags=None, rwy=False, stat_at=0, cbmajor=True, pipe2=2, owarm=False, osc='', mask2=False, mask1=False, hl='sc1', hs='sc1', ylate=True):
    qflags = wflags if qflags is None else qflags
    NCH = (64 - NP - NF) * 2
    gat = NF - 2 if gat is None else gat
    S = 64 - NP
    blocks = [(q, 64 - NF + 2 * j) for q in range(4) for j in range(2)]
    if NF == 6:
        blocks += [(q, 62) for q in range(4)]
    if NF == 8:
        blocks += [(q, 60 + 2 * j) for q in range(4) for j in range(2)]
    NT = (S + 15) // 16
    a = Asm()
    uid = [0]
    store_stamps = stamps
    if spin is not None:
        stamps = True

    def lab(p):
        uid[0] += 1
        return f'L_{p}_{uid[0]}'

    nstamp = [0]

    def stamp(k):
        if stamps:
            a(f's_memrealtime s[98:99]\ns_waitcnt lgkmcnt(0)\ns_mov_b32 s{80+k}, s98')

    def srd(d, p, size):
        a(f's_mov_b32 s{d}, s{p}\ns_mov_b32 s{d+1}, s{p+1}\ns_mov_b32 s{d+2}, {size}\ns_mov_b32 s{d+3}, 0x20000')

    a(f'{NAME}:')
    a('s_cmp_ge_u32 s2, 256\ns_cbranch_scc1 L_end')
    a('s_load_dwordx4 s[4:7], s[0:1], 8')
    if stamps:
        for k in range(16):
            a(f's_mov_b32 s{80+k}, 0')
        a('s_memrealtime s[98:99]')
    a('v_lshrrev_b32 v1, 6, v0\nv_and_b32 v0, 63, v0')
    a('v_readfirstlane_b32 s3, v1')
    a('s_and_b32 s33, s2, 7\ns_lshr_b32 s19, s2, 3\ns_and_b32 s21, s19, 7\ns_lshr_b32 s22, s19, 3')
    a(f's_sub_u32 s32, s19, {hoff}\ns_and_b32 s32, s32, 31')
    a(f's_mul_i32 s20, s22, {remap}\ns_sub_u32 s20, s33, s20\ns_and_b32 s20, s20, 7')
    a('s_cmp_eq_u32 s3, 5\ns_cbranch_scc1 L_helper\ns_cmp_lg_u32 s3, 0\ns_cbranch_scc1 L_consumer')

    a('s_setprio 3')
    if stamps:
        a('v_mov_b32 v30, 0')
    a('v_lshrrev_b32 v10, 5, v0\nv_and_b32 v11, 31, v0\nv_lshlrev_b32 v12, 9, v10')
    for i in range(8):
        a(f'v_add_u32 v13, {2*i}, v10\nv_xor_b32 v13, v13, v11\nv_lshl_add_u32 v{2+i}, v13, 4, v12')
    a('s_lshl_b32 s17, s21, 3\ns_add_u32 s17, s17, s20\ns_lshl_b32 s17, s17, 2\ns_add_u32 s17, s17, s22\ns_lshl_b32 s17, s17, 19')
    a('s_mov_b32 s10, 0x80000\ns_mov_b32 s11, 0x20000\ns_mov_b32 s12, 0\ns_mov_b32 s14, 0')
    a('s_mov_b32 s18, 0x100000')
    a('s_waitcnt lgkmcnt(0)')
    if stamps:
        a('s_mov_b32 s80, s98')
    a('s_add_u32 s8, s4, s17\ns_addc_u32 s9, s5, 0\ns_and_b32 s17, s17, 0xffe00000\ns_add_u32 s6, s6, s17\ns_addc_u32 s7, s7, 0')
    ipub = (7 + D) % 8
    lag = (7 + D) // 8

    def ld_tile(u, T=None, kvflags=kflags):
        for i in range(8):
            if i % 4 == 0:
                a(f's_add_u32 m0, s14, {u*8192 + (i//4)*4096}')
                a(f's_add_u32 s13, s12, {u*8192 + (i//4)*4096}')
            if T is None:
                a(f's_waitcnt vmcnt({D-1})')
            elif 8 * T + i >= (D0 or D):
                a(f's_waitcnt vmcnt({(D0 or D)-1})')
            if i == ipub:
                if T is None:
                    a(f's_lshl2_add_u32 s17, s15, {u - lag + 1}\nv_mov_b32 v15, s17\nds_write_b32 v14, v15 offset:{F_LAND}')
                elif T - lag + 1 > 0 and not D0:
                    a(f'v_mov_b32 v15, {T - lag + 1}\nds_write_b32 v14, v15 offset:{F_LAND}')
            a(f'buffer_load_dwordx4 v{2+i}, s[8:11], s13 offen offset:{(i%4)*1024} {kvflags} lds')

    ld_tile(0, 0)
    a(f'v_mov_b32 v16, 0\nv_mov_b32 v17, 0\nv_mov_b32 v18, 0\nv_mov_b32 v19, 0')
    a(f'v_mov_b32 v14, {FLG}\nv_lshl_add_u32 v13, v0, 4, v14\nds_write_b128 v13, v[16:19]')
    ld_tile(1, 1)
    a('s_waitcnt lgkmcnt(0)\ns_barrier')
    ld_tile(2, 2)
    ld_tile(3, 3)
    a('s_mov_b32 s15, 1')

    def ld_free(u):
        ok = lab('ldok')
        rt = lab('ldrt')
        a('s_waitcnt lgkmcnt(0)')
        a(f'v_readfirstlane_b32 s17, v{16+u}\ns_cmp_ge_i32 s17, s16\ns_cbranch_scc1 {ok}')
        a(f'{rt}:')
        a(f'ds_read_b128 v[16:19], v14 offset:{F_CONS}\ns_sub_u32 s18, s18, 1\ns_cbranch_scc1 L_end\ns_waitcnt lgkmcnt(0)')
        a(f'v_readfirstlane_b32 s17, v{16+u}\ns_cmp_ge_i32 s17, s16\ns_cbranch_scc0 {rt}')
        a(f'{ok}:')
        a(f'ds_read_b128 v[16:19], v14 offset:{F_CONS}')

    def ld_stamps():
        if stamps:
            a('s_memrealtime s[98:99]\ns_waitcnt lgkmcnt(0)\nv_mov_b32 v31, s98\nv_cmp_eq_u32 vcc, s15, v0\nv_cndmask_b32 v30, v30, v31, vcc')
            for k, it in enumerate((1, 2, 4, 6, 8, 12, 16, 24, 28)):
                a(f's_cmp_eq_u32 s15, {it}\ns_cselect_b32 s{82+k}, s98, s{82+k}')

    for ph in range(2):
        if ph == 1:
            a('s_mov_b32 s8, s6\ns_mov_b32 s9, s7\ns_mov_b32 s10, 0x200000\ns_lshl_b32 s12, s22, 19\ns_sub_u32 s12, s12, 32768')
            for i in range(8):
                a(f'v_lshlrev_b32 v{2+i}, 4, v0')
        a(f'L_ld_loop{ph}:')
        a('s_add_u32 s12, s12, 32768\ns_add_u32 s14, s14, 32768\ns_and_b32 s14, s14, 0x1ffff\ns_sub_u32 s16, s15, 3')
        ld_stamps()
        for u in range(4):
            ld_free(u)
            if ph == 1 and u == 3:
                a(f'ds_read_b32 v20, v14 offset:{CQ}')
            ld_tile(u, None, vflags if ph else kflags)
        a(f's_add_u32 s15, s15, 1\ns_cmp_lt_u32 s15, {16 if ph == 0 else 16 + NP//4}\ns_cbranch_scc1 L_ld_loop{ph}')
    a(f'v_add_u32 v21, {CQ}, v14')
    a('v_lshrrev_b32 v10, 3, v0\nv_bfe_u32 v11, v0, 4, 1\nv_lshlrev_b32 v11, 1, v11\nv_and_b32 v12, 7, v0\nv_xor_b32 v11, v11, v12')
    a('s_lshl_b32 s17, s22, 7\nv_lshlrev_b32 v10, 9, v10\nv_add_u32 v10, s17, v10\nv_lshl_add_u32 v22, v11, 4, v10\nv_xor_b32 v23, 64, v22')
    stamp(11)
    a('L_ld_pool:')
    a('s_add_u32 s14, s14, 32768\ns_and_b32 s14, s14, 0x1ffff\ns_sub_u32 s16, s15, 3')
    ld_stamps()
    for h in range(2):
        ok = lab('cqok')
        rt = lab('cqrt')
        a('s_waitcnt lgkmcnt(0)')
        a(f'v_readfirstlane_b32 s24, v20\ns_cmp_lg_u32 s24, 0\ns_cbranch_scc1 {ok}')
        a(f'{rt}:')
        if stamps:
            a('s_add_u32 s94, s94, 1')
        a(f'ds_read_b32 v20, v21 offset:{4*h}\ns_sub_u32 s18, s18, 1\ns_cbranch_scc1 L_end\ns_waitcnt lgkmcnt(0)')
        a(f'v_readfirstlane_b32 s24, v20\ns_cmp_lg_u32 s24, 0\ns_cbranch_scc0 {rt}')
        a(f'{ok}:')
        a(f's_lshl2_add_u32 s25, s15, {2*h}\ns_cmp_gt_u32 s24, {NCH}\ns_cbranch_scc1 L_ld_fin{h}')
        a(f's_sub_u32 s24, s24, 1\ns_and_b32 s12, s24, 3\ns_lshl_b32 s12, s12, 19\ns_lshr_b32 s24, s24, 2\ns_lshl_b32 s24, s24, 14')
        if 'ownq' in diag:
            a(f's_lshl_b32 s12, s22, 19\ns_lshl_b32 s24, s25, 13\ns_and_b32 s24, s24, 0x1ffff')
        a(f's_add_u32 s12, s12, s24\ns_add_u32 s12, s12, {NP*8192 - 2*h*8192}')
        for u in (2 * h, 2 * h + 1):
            ld_free(u)
            if u & 1:
                a(f'ds_read_b32 v20, v21 offset:{4*h+4}')
            ld_tile(u, None, vflags)
    a('v_add_u32 v21, 8, v21\ns_add_u32 s15, s15, 1\ns_branch L_ld_pool')
    ipf, lagf = (7 + DF) % 8, (7 + DF) // 8
    for h in range(2):
        a(f'L_ld_fin{h}:')
        stamp(12)
        done = -lag
        for f in range(NF):
            u = (2 * h + f) & 3
            if u == 0 and f:
                a('s_add_u32 s14, s14, 32768\ns_and_b32 s14, s14, 0x1ffff\ns_add_u32 s16, s16, 1')
            ld_free(u)
            for i in range(8):
                a(f's_add_u32 m0, s14, {u*8192 + i*1024}\ns_mov_b32 s13, {blocks[2*f + (i>>2)][0]*0x80000 + blocks[2*f + (i>>2)][1]*8192 + (i&3)*4096}')
                if 8 * f + i + D >= DF:
                    a(f's_waitcnt vmcnt({DF-1})')
                    if i == ipf and f - lagf + 1 > done:
                        done = f - lagf + 1
                        a(f's_add_u32 s17, s25, {done}\nv_mov_b32 v15, s17\nds_write_b32 v14, v15 offset:{F_LAND}')
                a(f'buffer_load_dwordx4 v{22 + (i&1)}, s[8:11], s13 offen {vflags} lds')
        if h == 0:
            a('s_branch L_ld_fin')
    a('L_ld_fin:')
    for j in range(NF - done - 1, -1, -1):
        assert 8 * j < 64
        a(f's_add_u32 s17, s25, {NF - j}\nv_mov_b32 v15, s17\ns_waitcnt vmcnt({8*j})\nds_write_b32 v14, v15 offset:{F_LAND}')
    if stamps:
        a('s_mov_b32 s93, s25')
    if stamps:
        stamp(1)
        a('s_load_dwordx2 s[46:47], s[0:1], 96\ns_waitcnt lgkmcnt(0)')
        srd(52, 46, W_STAMP + 0x40000)
        a(f'v_lshlrev_b32 v31, 2, v0\ns_lshl_b32 s67, s2, 8\ns_add_u32 s67, s67, {W_STAMP + 0x20000}')
        if store_stamps:
            a('buffer_store_dword v30, v31, s[52:55], s67 offen')
        a('s_branch L_stamp_out')
    a('s_endpgm')

    P = 16
    FR = 48
    SEL = 80
    AT = 88
    DT = 96
    OA = 100
    KA = OA
    VA = 108
    VFL, VM, VL, VW, VXB = 1, 110, 111, 2, 3
    T0 = 4
    YA = 112
    TAG = 's64'

    def timeout():
        a('s_sub_u32 s66, s66, 1\ns_cbranch_scc1 L_end')

    def wait_flags(off, n, slp=0):
        l = lab('wf')
        ok = lab('wfok')
        a(f'{l}:')
        if n == 1:
            a(f'ds_read_b32 v{T0}, v{VFL} offset:{off}\ns_waitcnt lgkmcnt(0)')
        else:
            a(f'ds_read_b128 v[{T0}:{T0+3}], v{VFL} offset:{off}\ns_waitcnt lgkmcnt(0)')
            a(f'v_min3_u32 v{T0}, v{T0}, v{T0+1}, v{T0+2}')
            if n == 4:
                a(f'v_min_u32 v{T0}, v{T0}, v{T0+3}')
        a(f'v_readfirstlane_b32 s67, v{T0}\ns_cmp_lg_u32 s67, 0\ns_cbranch_scc1 {ok}')
        timeout()
        if slp:
            a(f's_sleep {slp}')
        a(f's_branch {l}\n{ok}:')

    def set_flag(off):
        a(f'ds_write_b32 v15, v14 offset:{off}')

    def wait_tile(t_const, slp):
        l = lab('wt')
        ok = lab('wtok')
        a(f's_add_u32 s67, s23, {t_const}\ns_cmp_gt_i32 s65, s67\ns_cbranch_scc1 {ok}')
        a(f'{l}:')
        a(f'ds_read_b32 v{T0}, v{VFL} offset:{F_LAND}\ns_waitcnt lgkmcnt(0)')
        a(f'v_readfirstlane_b32 s65, v{T0}\ns_cmp_gt_i32 s65, s67\ns_cbranch_scc1 {ok}')
        timeout()
        if slp:
            a(f's_sleep {slp}')
        a(f's_branch {l}\n{ok}:')

    def reduce32(op, t, u):
        for r in (8, 4, 2, 1):
            a(f'v_{op}_f32_dpp v{t}, v{t}, v{t} row_ror:{r} row_mask:0xf bank_mask:0xf')
        a(f'v_mov_b32 v{u}, v{t}\nv_permlane16_swap_b32 v{t}, v{u}\nv_{op}_f32 v{t}, v{t}, v{u}')

    def reduce_rows(op, t, u):
        a(f'v_mov_b32 v{u}, v{t}\nv_permlane16_swap_b32 v{t}, v{u}\nv_{op}_f32 v{t}, v{t}, v{u}')
        a(f'v_mov_b32 v{u}, v{t}\nv_permlane32_swap_b32 v{t}, v{u}\nv_{op}_f32 v{t}, v{t}, v{u}')

    def rnd(r):
        a(f'v_cvt_pk_bf16_f32 v{r}, v{r}, v{r}\nv_lshlrev_b32 v{r}, 16, v{r}')

    def layernorm(raw, f, vmask):
        t = T0
        for i in range(8):
            a(f'v_lshlrev_b32 v{f+2*i}, 16, v{raw+i}\nv_and_b32 v{f+2*i+1}, 0xffff0000, v{raw+i}')
        pk = lambda r: f'v[{r}:{r+1}]'
        a(f'v_pk_add_f32 {pk(t)}, {pk(f)}, {pk(f+2)}\nv_pk_add_f32 {pk(t+2)}, {pk(f+4)}, {pk(f+6)}')
        a(f'v_pk_add_f32 {pk(t)}, {pk(t)}, {pk(f+8)}\nv_pk_add_f32 {pk(t+2)}, {pk(t+2)}, {pk(f+10)}')
        a(f'v_pk_add_f32 {pk(t)}, {pk(t)}, {pk(f+12)}\nv_pk_add_f32 {pk(t+2)}, {pk(t+2)}, {pk(f+14)}')
        a(f'v_pk_add_f32 {pk(t)}, {pk(t)}, {pk(t+2)}\nv_add_f32 v{t}, v{t}, v{t+1}\nv_mul_f32 v{t}, v{t}, v{vmask}')
        reduce32('add', t, t + 1)
        a(f'v_mul_f32 v{t+2}, {fb(1/448)}, v{t}')
        neg = 'op_sel_hi:[1,0] neg_lo:[0,1] neg_hi:[0,1]'
        for i in range(8):
            d = t + 4 + 2 * (i & 1)
            a(f'v_pk_add_f32 {pk(d)}, {pk(f+2*i)}, {pk(t+2)} {neg}')
            if i == 0:
                a(f'v_pk_mul_f32 {pk(t)}, {pk(d)}, {pk(d)}')
            else:
                a(f'v_pk_fma_f32 {pk(t)}, {pk(d)}, {pk(d)}, {pk(t)}')
        a(f'v_add_f32 v{t}, v{t}, v{t+1}\nv_mul_f32 v{t}, v{t}, v{vmask}')
        rnd(t + 2)
        reduce32('add', t, t + 1)
        a(f'v_mul_f32 v{t}, {fb(1/448)}, v{t}')
        rnd(t)
        a(f'v_add_f32 v{t}, {fb(1e-5)}, v{t}')
        rnd(t)
        a(f'v_sqrt_f32 v{t}, v{t}')
        for i in range(8):
            a(f'v_pk_add_f32 {pk(f+2*i)}, {pk(f+2*i)}, {pk(t+2)} {neg}')
        rnd(t)
        a(f'v_rcp_f32 v{t}, v{t}')
        for i in range(8):
            a(f'v_cvt_pk_bf16_f32 v{raw+i}, v{f+2*i}, v{f+2*i+1}')
        for i in range(8):
            a(f'v_lshlrev_b32 v{f+2*i}, 16, v{raw+i}\nv_and_b32 v{f+2*i+1}, 0xffff0000, v{raw+i}')
        for i in range(8):
            a(f'v_pk_mul_f32 {pk(f+2*i)}, {pk(f+2*i)}, {pk(t)} op_sel_hi:[1,0]')
        for i in range(8):
            a(f'v_cvt_pk_bf16_f32 v{raw+i}, v{f+2*i}, v{f+2*i+1}')

    def slab_mfma(act, abase):
        a(f'v_lshrrev_b32 v{T0}, 4, v0\nv_and_b32 v{T0+1}, 15, v0')
        a(f'v_lshlrev_b32 v{T0+2}, 8, v{T0}\nv_lshl_add_u32 v{T0+2}, v{T0+1}, 3, v{T0+2}\nv_add_u32 v{T0+2}, {STG}, v{T0+2}')
        a(f'v_and_b32 v{T0+1}, 7, v0\nv_mul_u32_u24 v{T0+1}, {XS}, v{T0+1}\nv_lshl_add_u32 v{T0+1}, v{T0}, 4, v{T0+1}\nv_add_u32 v{T0+1}, {act}, v{T0+1}')

        def rd(ks):
            a(f'ds_read_b64_tr_b16 {ar(abase+4*ks,2)}, v{T0+2} offset:{ks*1024}')
            a(f'ds_read_b64_tr_b16 {ar(abase+4*ks+2,2)}, v{T0+2} offset:{ks*1024+128}')
            a(f'ds_read_b128 {ar(abase+56+4*ks,4)}, v{T0+1} offset:{ks*64}')
        for ks in range(4):
            rd(ks)
        for ks in range(14):
            if ks + 4 < 14:
                rd(ks + 4)
            left = min(13 - ks, 4)
            a(f's_waitcnt lgkmcnt({3*left})')
            c = '0' if ks == 0 else vr(DT, 4)
            a(f'v_mfma_f32_16x16x32_bf16 {vr(DT,4)}, {ar(abase+4*ks,4)}, {ar(abase+56+4*ks,4)}, {c}')

    VTW = 13 + 0

    def tag_setup():
        a(f's_mul_i32 s34, {TAG}, 0x3d2f1b65')
        a('s_mov_b32 s8, 0x07060500\ns_mov_b32 s9, 0x07060501\ns_mov_b32 s10, 0x07060502\ns_mov_b32 s11, 0x07060503')
        a('s_mov_b32 s12, 0x0c0c0400\ns_mov_b32 s13, 0x04000c0c')

    def tag_put(r, vw):
        for j in range(4):
            a(f'v_perm_b32 v{r+j}, v{r+j}, v{vw}, s{8+j}')

    def tag_get(dst, r, t):
        a(f'v_perm_b32 v{dst}, v{r+1}, v{r}, s12\nv_perm_b32 v{t}, v{r+3}, v{r+2}, s13\nv_or_b32 v{dst}, v{dst}, v{t}')

    def build_a(dst, src, e):
        for i in range(4):
            a(f'v_perm_b32 v{dst+i}, v{src}, v{src}, v{SEL+4*e+i}')

    XR = P
    XF = P + 8
    VMK = P + 24
    VXO = P + 25

    def common_ids():
        a('s_lshl_b32 s73, s21, 3\ns_add_u32 s73, s73, s20\ns_lshl2_add_u32 s74, s73, s22\ns_lshl2_add_u32 s79, s20, s22')
        a('s_mov_b32 s65, 0\ns_mov_b32 s66, 0x100000')
        a(f'v_mov_b32 v{VFL}, {FLG}\nv_mov_b32 v14, 1')

    def publish_slab(shift, sbase, wbase):
        a(f'v_lshrrev_b32 v8, 4, v0\nv_and_b32 v9, 15, v0\nv_lshlrev_b32 v10, {shift}, v9\nv_lshl_add_u32 v10, v8, 4, v10')
        a(f'v_cmp_gt_u32 vcc, 8, v9\nv_mov_b32 v9, 0x1000000\nv_cndmask_b32 v10, v9, v10, vcc')
        a(f's_lshl_b32 s67, {sbase}, 1\ns_add_u32 s67, s67, {wbase}')
        a(f'v_mov_b32 v5, {TAG}\nv_mov_b32 v7, {TAG}')
        a(f'v_cvt_pk_bf16_f32 v4, v{DT}, v{DT+1}\nv_cvt_pk_bf16_f32 v6, v{DT+2}, v{DT+3}')
        a('buffer_store_dwordx4 v[4:7], v10, s[52:55], s67 offen sc1')

    fin = 'L_stamp_out' if stamps else 'L_end'
    a('L_helper:')
    if prefetch and swarm:
        pass
    elif prefetch and pfsplit:
        a('s_getpc_b64 s[26:27]\nv_and_b32 v4, 7, v0\ns_lshl_b32 s67, s19, 3\nv_add_u32 v4, s67, v4\nv_lshlrev_b32 v4, 7, v4')
        a(f'v_min_u32 v5, L_end-L_helper-64, v4\nglobal_load_dword v{P}, v5, s[26:27]')
    elif prefetch:
        a('s_getpc_b64 s[26:27]\nv_lshlrev_b32 v4, 7, v0')
        for j in range(3):
            a(f'v_min_u32 v5, L_end-L_helper-64, v4\nglobal_load_dword v{P+j}, v5, s[26:27]\nv_add_u32 v4, 0x2000, v4')
    a('s_load_dwordx4 s[28:31], s[0:1], 24\ns_load_dwordx2 s[46:47], s[0:1], 96\ns_load_dwordx2 s[24:25], s[0:1], 0')
    a('s_load_dwordx8 s[36:43], s[0:1], 48\ns_load_dwordx2 s[44:45], s[0:1], 80')
    common_ids()
    a('v_lshrrev_b32 v10, 1, v0\nv_and_b32 v11, 1, v0\nv_lshlrev_b32 v11, 4, v11\nv_lshl_add_u32 v12, v10, 13, v11')
    a(f's_add_u32 s67, s19, {qrot}\ns_and_b32 s67, s67, 31\ns_lshl_b32 s68, s33, 5\ns_add_u32 s68, s68, s67\ns_lshl_b32 s68, s68, 5')
    a('s_waitcnt lgkmcnt(0)')
    if stamps:
        a('s_mov_b32 s80, s98')
    a('s_load_dword s64, s[46:47], 0')
    srd(56, 28, 448 * 8192)

    def pf_and_barrier():
        if prefetch and swarm:
            a('s_getpc_b64 s[26:27]\nL_pf:\ns_lshl_b32 s75, s19, 10\ns_min_u32 s75, s75, L_end-L_pf-1024\ns_add_u32 s26, s26, s75\ns_addc_u32 s27, s27, 0')
            for j in range(8):
                a(f's_load_dword s{8+j}, s[26:27], {j*128}')
        a('s_barrier')
    if 'noslab' in diag or slabd >= 14:
        pf_and_barrier()
    for j in range(0 if 'noslab' in diag else 14):
        a(f's_mov_b32 m0, {STG + j*1024}\ns_add_u32 s67, s68, {j << 18}')
        if j == slabd:
            pf_and_barrier()
        if j >= slabd:
            a(f's_waitcnt vmcnt({slabd-1})')
        a(f'buffer_load_dwordx4 v12, s[56:59], s67 offen {qflags} lds')
    srd(52, 46, W_STAMP + 0x40000 if stamps else W_END)
    def clears():
        a('v_lshlrev_b32 v10, 4, v0\nv_mov_b32 v4, -1\nv_mov_b32 v5, -1\nv_mov_b32 v6, -1\nv_mov_b32 v7, -1')
        a(f's_lshl_b32 s75, s74, 11\ns_add_u32 s67, s75, {W_OP}\ns_add_u32 s75, s75, {W_YP}')
        cf = '' if 'clrplain' in diag else ('nt' if 'clrnt' in diag else ('sc0 sc1' if 'clrsys' in diag else 'sc1'))
        if 'clr1' in diag:
            a(f'buffer_store_dwordx4 v[4:7], v10, s[52:55], s67 offen {cf}')
        elif 'clrhalf' in diag:
            a('s_bitcmp1_b32 s2, 4\ns_cbranch_scc1 L_clrskip')
            for o in (0, 1024, 2048, 3072):
                a(f'buffer_store_dwordx4 v[4:7], v10, s[52:55], s67 offen offset:{o} {cf}\nbuffer_store_dwordx4 v[4:7], v10, s[52:55], s75 offen offset:{o} {cf}')
            a('L_clrskip:')
        elif 'noclear' not in diag:
            a(f'buffer_store_dwordx4 v[4:7], v10, s[52:55], s67 offen {cf}\nbuffer_store_dwordx4 v[4:7], v10, s[52:55], s67 offen offset:1024 {cf}')
            a(f'buffer_store_dwordx4 v[4:7], v10, s[52:55], s75 offen {cf}\nbuffer_store_dwordx4 v[4:7], v10, s[52:55], s75 offen offset:1024 {cf}')

    def warms():
        if warm:
            a('s_lshl_b32 s67, s74, 19\ns_add_u32 s6, s6, s67\ns_addc_u32 s7, s7, 0\nv_mov_b32 v13, 0')
            a('s_mul_i32 s67, s79, 128*896\ns_add_u32 s30, s30, s67\ns_addc_u32 s31, s31, 0')
            a('s_mul_i32 s67, s79, 56*896\ns_add_u32 s40, s40, s67\ns_addc_u32 s41, s41, 0')
            if swarm:
                for j, p in enumerate((6, 30, 40, 44, 36, 38, 42)):
                    a(f's_load_dword s{8+j}, s[{p}:{p+1}], 0')
                return 0
            for j, p in enumerate((6, 30, 40, 44)):
                a(f'global_load_dword v{P+4+j}, v13, s[{p}:{p+1}]')
            return 4
        return 0
    nwarm = 0
    if not lateclear:
        clears()
    if not lateclear and not swarm:
        nwarm = warms()
    a(f's_waitcnt vmcnt({nwarm}) lgkmcnt(0)')
    a('s_add_u32 s64, s64, 1')
    stamp(1)
    wait_flags(F_X, 4)
    stamp(2)
    slab_mfma(XN, 0)
    if 'nopub' not in diag:
        publish_slab(14, 's68', W_Q)
    stamp(3)
    def hidden():
        a(f's_cmp_ge_u32 s32, {0 if "noh" in diag else 14}\ns_cbranch_scc1 L_noh')
        srd(56, 36, 448 * 3584)
        a('v_lshrrev_b32 v10, 1, v0\nv_and_b32 v11, 1, v0\nv_mul_u32_u24 v10, 3584, v10\nv_lshl_add_u32 v10, v11, 4, v10')
        a('s_mul_i32 s77, s33, 14\ns_add_u32 s77, s77, s32\ns_lshl_b32 s77, s77, 5')
        for j in range(14):
            a(f's_mov_b32 m0, {STG + j*1024}\ns_add_u32 s67, s77, {j*32*3584}')
            if j >= slabd1:
                a(f's_waitcnt vmcnt({slabd1-1})')
            a(f'buffer_load_dwordx4 v10, s[56:59], s67 offen {qflags} lds')
        srd(60, 38, 3584)
        a(f'v_lshrrev_b32 v10, 4, v0\nv_lshlrev_b32 v10, 3, v10')
        a(f'buffer_load_dwordx2 v[{AT}:{AT+1}], v10, s[60:63], s77 offen')
        wait_flags(F_Y, 4, sleep)
        a('s_waitcnt vmcnt(0)')
        slab_mfma(YN, 0)
        a(f'v_lshlrev_b32 v8, 16, v{AT}\nv_and_b32 v9, 0xffff0000, v{AT}\nv_lshlrev_b32 v10, 16, v{AT+1}\nv_and_b32 v11, 0xffff0000, v{AT+1}')
        c0 = -2 * 0.7978845608028654 * LOG2E
        a(f's_mov_b32 s75, {fb(c0 * 0.044715)}\nv_mov_b32 v12, {fb(c0)}')
        for r in range(4):
            rnd(DT + r)
        for r in range(4):
            a(f'v_add_f32 v{DT+r}, v{DT+r}, v{8+r}')
        for r in range(4):
            rnd(DT + r)
        for r in range(4):
            a(f'v_mul_f32 v{8+r}, v{DT+r}, v{DT+r}\nv_fma_f32 v{8+r}, v{8+r}, s75, v12\nv_mul_f32 v{8+r}, v{8+r}, v{DT+r}')
        for r in range(4):
            a(f'v_exp_f32 v{8+r}, v{8+r}')
        for r in range(4):
            a(f'v_add_f32 v{8+r}, 1.0, v{8+r}')
        for r in range(4):
            a(f'v_rcp_f32 v{8+r}, v{8+r}')
        for r in range(4):
            a(f'v_mul_f32 v{DT+r}, v{DT+r}, v{8+r}')
        publish_slab(13, 's77', W_H)
        a('L_noh:')

    if not hlate:
        hidden()
    if swarm:
        warms()
    a(f's_lshl_b32 s67, s21, 14\ns_lshl_b32 s75, s20, 11\ns_add_u32 s76, s67, s75\ns_add_u32 s76, s76, {W_Q}')
    a(f'v_lshlrev_b32 v12, 5, v0\ns_mov_b32 s23, {qat - qstep}')
    a('L_qpoll:')
    if qat:
        a(f's_add_u32 s23, s23, {qstep}\ns_min_u32 s23, s23, {31 - lag}')
        wait_tile(0, sleep)
    if 'noqld' not in diag:
        a(f'buffer_load_dwordx4 v[16:19], v12, s[52:55], s76 offen sc1\nbuffer_load_dwordx4 v[8:11], v12, s[52:55], s76 offen offset:16 sc1')
    timeout()
    a('s_waitcnt vmcnt(0)')
    a(f'v_xor_b32 v17, {TAG}, v17\nv_xor_b32 v19, {TAG}, v19\nv_xor_b32 v9, {TAG}, v9\nv_xor_b32 v11, {TAG}, v11')
    a('v_or3_b32 v5, v17, v19, v9\nv_or_b32 v5, v5, v11\nv_cmp_ne_u32 vcc, 0, v5')
    if 'nopoll' not in diag:
        if qsleep:
            a(f's_cbranch_vccz L_qok\ns_sleep {qsleep}\ns_branch L_qpoll\nL_qok:')
        else:
            a('s_cbranch_vccnz L_qpoll')
    a(f'v_mov_b32 v4, v16\nv_mov_b32 v5, v18\nv_mov_b32 v6, v8\nv_mov_b32 v7, v10\nv_lshlrev_b32 v12, 4, v0')
    a(f'v_add_u32 v13, {QL}, v12\nds_write_b128 v13, v[4:7]')
    a(f'ds_write_b32 v{VFL}, v14 offset:{F_Q}')
    stamp(4)
    if lateclear:
        if 'clr' in diag:
            clears()
        if rwarm is not None:
            a(f'v_and_b32 v10, 15, v0\nv_lshlrev_b32 v10, 7, v10\ns_lshl_b32 s75, s74, 11\nv_add_u32 v10, s75, v10')
            a(f'v_lshrrev_b32 v11, 4, v0\nv_mov_b32 v4, {W_OP}\nv_mov_b32 v5, {W_YP}\nv_cmp_eq_u32 vcc, 1, v11\nv_cndmask_b32 v4, v4, v5, vcc')
            if rwall:
                a(f'v_mov_b32 v5, {W_SC}\nv_cmp_eq_u32 vcc, 2, v11\nv_cndmask_b32 v4, v4, v5, vcc')
                a(f'v_add_u32 v10, v10, v4\ns_lshl_b32 s75, s74, 7\ns_add_u32 s75, s75, {W_ST}\nv_mov_b32 v5, s75\nv_cmp_eq_u32 vcc, 3, v11\nv_cndmask_b32 v10, v10, v5, vcc')
            else:
                a(f'v_add_u32 v10, v10, v4\nv_mov_b32 v5, 0x1000000\nv_cmp_{"ne" if rwy else "lt"}_u32 vcc, 1, v11\nv_cndmask_b32 v10, v10, v5, vcc')
            a(f'buffer_load_dword v29, v10, s[52:55], 0 offen {rwarm}')
        if not swarm:
            warms()
    a(f's_cmp_lg_u32 s22, 0\ns_cbranch_scc1 L_noct\nv_mov_b32 v12, 0\ns_mul_i32 s67, s73, {ctstride}\ns_add_u32 s67, s67, {W_CT}')
    a('s_mov_b64 exec, 1\nbuffer_store_dword v12, off, s[52:55], s67 sc1\ns_mov_b64 exec, -1\nL_noct:')
    if hlate:
        hidden()
    stamp(5)
    VR3, VR4 = P + 16, P + 17
    srd(48, 24, 7168)
    srd(56, 42, 896)
    a('v_and_b32 v11, 3, v0\nv_bfe_u32 v10, v0, 2, 2\nv_lshl_add_u32 v10, v11, 2, v10\nv_lshlrev_b32 v10, 1, v10')
    a('s_lshl_b32 s75, s79, 5\ns_mul_i32 s78, s21, 896\ns_add_u32 s78, s78, s75')
    a('buffer_load_ushort v8, v10, s[48:51], s78 offen\nbuffer_load_ushort v9, v10, s[56:59], s75 offen')
    a(f'v_mov_b32 v13, 0x1000000\nv_cmp_gt_u32 vcc, 16, v0\nv_cndmask_b32 v{VR4}, v13, v10, vcc')
    a(f'v_lshrrev_b32 v10, 2, v0\nv_lshlrev_b32 v10, 11, v10\nv_lshl_add_u32 v{VR3}, v11, 4, v10')
    a(f's_lshl_b32 s77, s21, 16\ns_lshl_b32 s67, s79, 6\ns_add_u32 s77, s77, s67\ns_add_u32 s77, s77, {W_YP}\ns_add_u32 s72, s77, 0x8000')
    a(f's_waitcnt vmcnt(0)\nv_lshlrev_b32 v8, 16, v8\nv_lshlrev_b32 v9, 16, v9\nv_add_f32 v{VXB}, v8, v9')
    wait_flags(F_M, 4, 4)
    a(f'v_lshlrev_b32 v12, 4, v0\nv_add_u32 v11, {SC}, v12')
    a(f'v_cmp_gt_u32 vcc, {4*S - 64*(NT-1)}, v0\nv_cndmask_b32 v28, v13, v12, vcc')
    for j in range(NT):
        a(f'ds_read_b128 v[{20+4*j}:{23+4*j}], v11 offset:{j*1024}')
    a(f's_lshl_b32 s75, s74, 11\ns_add_u32 s75, s75, {W_SC}\ns_waitcnt lgkmcnt(0)')
    for j in range(NT):
        a(f'buffer_store_dwordx4 v[{20+4*j}:{23+4*j}], v{28 if j == NT-1 else 12}, s[52:55], s75 offen offset:{j*1024} sc1')
    wait_flags(F_L, 4, sleep)
    a(f'v_bfe_u32 v10, v0, 3, 1\nv_lshl_add_u32 v10, v10, 2, v{VFL}')
    a(f'ds_read2_b32 v[4:5], v10 offset0:{LS//4} offset1:{LS//4+2}\nds_read2_b32 v[6:7], v10 offset0:{LS//4+4} offset1:{LS//4+6}')
    a(f'ds_read2_b32 v[16:17], v10 offset0:{MX//4} offset1:{MX//4+2}\nds_read2_b32 v[18:19], v10 offset0:{MX//4+4} offset1:{MX//4+6}')
    a(f'v_and_b32 v8, 0x37, v0\nv_cmp_eq_u32 vcc, 0, v8\nv_lshlrev_b32 v8, 1, v0\nv_cndmask_b32 v8, v13, v8, vcc')
    a(f's_lshl_b32 s67, s74, 7\ns_add_u32 s67, s67, {W_ST}\ns_waitcnt lgkmcnt(0)')
    a(f'v_add_f32 v4, v4, v5\nv_add_f32 v6, v6, v7\nv_add_f32 v6, v4, v6')
    a(f'v_max3_f32 v4, v16, v17, v18\nv_max_f32 v4, v4, v19\nv_mov_b32 v5, {TAG}\nv_mov_b32 v7, {TAG}')
    a('s_waitcnt vmcnt(0)\nbuffer_store_dwordx4 v[4:7], v8, s[52:55], s67 offen sc1')
    stamp(6)
    a(f's_lshl_b32 s67, s73, 9\ns_add_u32 s67, s67, {W_ST}\ns_add_u32 s26, s46, s67\ns_addc_u32 s27, s47, 0')
    if stat_at:
        a(f's_mov_b32 s23, {stat_at}')
        wait_tile(0, 4)
    a('L_stp:')
    for q in range(4):
        a(f's_load_dwordx8 s[{(4,12,36,56)[q]}:{(4,12,36,56)[q]+7}], s[26:27], {q*128} glc')
    timeout()
    a('s_waitcnt lgkmcnt(0)')
    a(f's_xor_b32 s67, s5, {TAG}')
    for q in range(4):
        for o in (1, 3, 5, 7):
            if (q, o) != (0, 1):
                a(f's_xor_b32 s75, s{(4,12,36,56)[q]+o}, {TAG}\ns_or_b32 s67, s67, s75')
    a('s_cmp_eq_u32 s67, 0\ns_cbranch_scc1 L_stp_ok\ns_sleep 8\ns_branch L_stp\nL_stp_ok:')
    a(f's_lshl_b32 s67, s73, 13\ns_add_u32 s67, s67, {W_SC}\ns_add_u32 s72, s67, 4096')
    pieces = [q for q in range(8) if (q & 1) < NT]
    for q in pieces:
        a(f'buffer_load_dwordx4 {vr(FR+4*q,4)}, v{28 if (q&1) == NT-1 else 12}, s[52:55], {"s67" if q < 4 else "s72"} offen offset:{(q&3)*1024} sc1')
    a(f's_mov_b32 s75, {fb(LOG2E/16)}')
    for u in range(2):
        for q in range(4):
            a(f'v_mov_b32 v{4+q}, s{(4,12,36,56)[q]+4*u}\nv_mov_b32 v{8+q}, s{(4,12,36,56)[q]+4*u+2}')
        a(f'v_max3_f32 v{16+u}, v4, v5, v6\nv_max_f32 v{16+u}, v{16+u}, v7\nv_mul_f32 v{22+u}, {fb(-LOG2E/16)}, v{16+u}')
        for q in range(4):
            a(f'v_fma_f32 v{4+q}, v{4+q}, s75, v{22+u}')
        for q in range(4):
            a(f'v_exp_f32 v{4+q}, v{4+q}')
        a(f'v_mul_f32 v8, v8, v4\nv_fmac_f32 v8, v9, v5\nv_fmac_f32 v8, v10, v6\nv_fmac_f32 v8, v11, v7\nv_rcp_f32 v{18+u}, v8')
        a(f'v_mov_b32 v{20+u}, v4')
        for q in range(1, 4):
            a(f's_cmp_eq_u32 s22, {q}\ns_cselect_b64 vcc, -1, 0\nv_cndmask_b32 v{20+u}, v{20+u}, v{4+q}, vcc')
    a(f'ds_write_b32 v{VFL}, v20 offset:{FO}\nds_write_b32 v{VFL}, v21 offset:{FO+4}\nds_write_b32 v{VFL}, v18 offset:{FO+8}\nds_write_b32 v{VFL}, v19 offset:{FO+12}')
    a(f'v_add_u32 v11, {PT}, v12')
    for n_, q in enumerate(pieces):
        a(f's_waitcnt vmcnt({len(pieces)-1-n_})')
        for j in range(4):
            r = FR + 4 * q + j
            a(f'v_lshlrev_b32 v{4+2*(j&1)}, 16, v{r}\nv_and_b32 v{5+2*(j&1)}, 0xffff0000, v{r}')
            a(f'v_fma_f32 v{4+2*(j&1)}, v{4+2*(j&1)}, s75, v{22+(j>>1)}\nv_fma_f32 v{5+2*(j&1)}, v{5+2*(j&1)}, s75, v{22+(j>>1)}')
            a(f'v_exp_f32 v{4+2*(j&1)}, v{4+2*(j&1)}\nv_exp_f32 v{5+2*(j&1)}, v{5+2*(j&1)}')
            a(f'v_cvt_pk_bf16_f32 v{r}, v{4+2*(j&1)}, v{5+2*(j&1)}')
        a(f'ds_write_b128 v11, {vr(FR+4*q,4)} offset:{q*1024}')
    a(f'ds_write_b32 v{VFL}, v14 offset:{F_P}')
    stamp(7)
    srd(56, 44, 7168)
    a('s_add_u32 s72, s77, 0x8000')
    if owarm:
        a(f'buffer_load_ushort v29, v{VR4}, s[56:59], s78 offen sc1')
    a(f's_mul_i32 s67, s73, {ctstride}\ns_add_u32 s67, s67, {W_CT}\ns_add_u32 s26, s46, s67\ns_addc_u32 s27, s47, 0')
    a(f's_mov_b32 s23, {64 + NP - LEAD - 1}\nv_add_u32 v11, {CQ}, v{VFL}')
    a('L_claim:')
    wait_tile(0, sleep)
    if stamps:
        a('s_memrealtime s[96:97]\ns_waitcnt lgkmcnt(0)')
    a('s_mov_b32 s24, 1\ns_atomic_add s24, s[26:27], 0 glc\ns_waitcnt lgkmcnt(0)')
    if stamps:
        a('s_memrealtime s[98:99]\ns_waitcnt lgkmcnt(0)\ns_sub_u32 s96, s98, s96\ns_max_u32 s92, s92, s96\ns_add_u32 s93, s93, s96\ns_add_u32 s94, s94, 1')
    a(f's_add_u32 s24, s24, 1\ns_cmp_gt_u32 s24, {NCH}\ns_cbranch_scc1 L_claim_end\nv_mov_b32 v4, s24\nds_write_b32 v11, v4')
    a('v_add_u32 v11, 4, v11\ns_add_u32 s23, s23, 2\ns_branch L_claim')
    a('L_claim_end:')
    a(f's_add_u32 s24, s23, {LEAD + 1}\nv_mov_b32 v4, s24\nds_write_b32 v11, v4\nds_write_b32 v11, v4 offset:4')
    stamp(8)
    if ylate:
        a(f'v_lshlrev_b32 v10, 7, v0\nv_cmp_gt_u32 vcc, 14, v0\nv_mov_b32 v5, 0x1000000\nv_cndmask_b32 v10, v5, v10, vcc\ns_lshl_b32 s75, s74, 11\ns_add_u32 s75, s75, {W_YP}')
        a('buffer_load_dword v29, v10, s[52:55], s75 offen sc1\ns_waitcnt vmcnt(0)')
    a(f's_cmp_ge_u32 s79, 28\ns_cbranch_scc1 {fin}')
    tag_setup()
    a('s_barrier')
    stamp(11)
    def look(r):
        a(f'buffer_load_dwordx4 {vr(r,4)}, v{VR3}, s[52:55], s77 offen {hl}\nbuffer_load_dwordx4 {vr(r+4,4)}, v{VR3}, s[52:55], s72 offen {hl}')

    def check(r, n):
        a(f's_waitcnt vmcnt({n+1})')
        tag_get(12, r, 13)
        a(f's_waitcnt vmcnt({n})')
        tag_get(4, r + 4, 5)
        a('v_xor_b32 v12, s34, v12\nv_xor_b32 v4, s34, v4\nv_or_b32 v12, v12, v4\nv_cmp_ne_u32 vcc, 0, v12')
    if mask2:
        a('s_mov_b64 s[14:15], -1\ns_mov_b64 s[16:17], -1')
        a('L_hop2:')
        a(f's_mov_b64 exec, s[14:15]\ns_cbranch_execz L_h2a\nbuffer_load_dwordx4 {vr(FR,4)}, v{VR3}, s[52:55], s77 offen sc1\nL_h2a:')
        a(f's_mov_b64 exec, s[16:17]\ns_cbranch_execz L_h2b\nbuffer_load_dwordx4 {vr(FR+4,4)}, v{VR3}, s[52:55], s72 offen sc1\nL_h2b:')
        a('s_mov_b64 exec, -1')
        timeout()
        a('s_waitcnt vmcnt(0)')
        tag_get(12, FR, 13)
        tag_get(4, FR + 4, 5)
        a('v_cmp_ne_u32 s[14:15], s34, v12\nv_cmp_ne_u32 s[16:17], s34, v4\ns_or_b64 vcc, s[14:15], s[16:17]\ns_cbranch_vccnz L_hop2')
        a(f'v_pk_add_f32 v[8:9], v[{FR}:{FR+1}], v[{FR+4}:{FR+5}]\nv_pk_add_f32 v[10:11], v[{FR+2}:{FR+3}], v[{FR+6}:{FR+7}]')
    elif pipe2:
        sets = [FR + 8 * j for j in range(pipe2)]
        for j in range(pipe2 - 1):
            look(sets[j])
            a(f's_sleep {h2sleep}')
        a('L_hop2:')
        for j in range(pipe2):
            look(sets[(j - 1) % pipe2])
            timeout()
            check(sets[j], 2 * (pipe2 - 1))
            a(f's_cbranch_vccz L_hop2_got{j}')
        a('s_branch L_hop2')
        for j in range(pipe2):
            a(f'L_hop2_got{j}:')
            a(f'v_pk_add_f32 v[8:9], v[{sets[j]}:{sets[j]+1}], v[{sets[j]+4}:{sets[j]+5}]\nv_pk_add_f32 v[10:11], v[{sets[j]+2}:{sets[j]+3}], v[{sets[j]+6}:{sets[j]+7}]')
            if j < pipe2 - 1:
                a('s_branch L_hop2_sum')
        a('L_hop2_sum:')
    else:
        a('L_hop2:')
        look(FR)
        timeout()
        check(FR, 0)
        if 'nowait' not in diag:
            a('s_cbranch_vccnz L_hop2')
        a(f'v_pk_add_f32 v[8:9], v[{FR}:{FR+1}], v[{FR+4}:{FR+5}]\nv_pk_add_f32 v[10:11], v[{FR+2}:{FR+3}], v[{FR+6}:{FR+7}]')
    a('v_add_f32_dpp v4, v8, v8 row_ror:8 row_mask:0xf bank_mask:0x3\nv_add_f32_dpp v5, v9, v9 row_ror:8 row_mask:0xf bank_mask:0x3')
    a('v_add_f32_dpp v4, v10, v10 row_ror:8 row_mask:0xf bank_mask:0xc\nv_add_f32_dpp v5, v11, v11 row_ror:8 row_mask:0xf bank_mask:0xc')
    a('v_add_f32_dpp v6, v4, v4 row_shl:4 row_mask:0xf bank_mask:0x5\nv_add_f32_dpp v6, v5, v5 row_shr:4 row_mask:0xf bank_mask:0xa')
    reduce_rows('add', 6, 7)
    a(f'v_add_f32 v6, v6, v{VXB}\nv_cvt_pk_bf16_f32 v6, v6, v6')
    a(f'buffer_store_short v6, v{VR4}, s[56:59], s78 offen {osc}')
    stamp(10)
    if stamps:
        a('s_waitcnt vmcnt(0)')
        stamp(9)
    if spin is not None:
        sa, sb, sk, sw = spin if isinstance(spin, tuple) else (spin, 0, 1, None)
        a(f's_sub_u32 s96, s{80+sa}, s{80+sb}\ns_mul_i32 s96, s96, {sk}')
        if sw is not None:
            a(f's_cmp_eq_u32 s2, {sw}\ns_cselect_b32 s96, s96, 0')
        a('L_spin:\ns_memrealtime s[98:99]\ns_waitcnt lgkmcnt(0)\ns_sub_u32 s97, s98, s90\ns_cmp_lt_u32 s97, s96\ns_cbranch_scc1 L_spin')
    a(f's_cmp_lg_u32 s74, 0\ns_cbranch_scc1 {fin}')
    a(f'v_mov_b32 v4, {TAG}\ns_mov_b64 exec, 1\nbuffer_store_dword v4, off, s[52:55], 0 sc1')
    a(f's_mov_b64 exec, -1\ns_branch {fin}')

    a('L_consumer:')
    a('s_load_dwordx2 s[24:25], s[0:1], 0\ns_load_dwordx2 s[46:47], s[0:1], 96')
    a('s_load_dwordx2 s[30:31], s[0:1], 32\ns_load_dwordx2 s[40:41], s[0:1], 64')
    a('s_sub_u32 s23, s3, 1')
    a(f'v_lshrrev_b32 v6, 5, v0\nv_and_b32 v7, 31, v0\ns_lshl_b32 s67, s23, 1\nv_add_u32 v6, s67, v6')
    a(f'v_mul_u32_u24 v8, 896, v6\nv_lshl_add_u32 v8, v7, 5, v8\nv_cmp_gt_u32 vcc, 28, v7')
    a(f'v_mov_b32 v9, 0x10000\nv_cndmask_b32 v8, v9, v8, vcc')
    a('s_mov_b32 s50, 7168\ns_mov_b32 s51, 0x20000')
    a('s_waitcnt lgkmcnt(0)')
    if stamps:
        a('s_mov_b32 s80, s98')
    a('s_mov_b32 s48, s24\ns_mov_b32 s49, s25')
    a(f'buffer_load_dwordx4 {vr(XR,4)}, v8, s[48:51], 0 offen\nbuffer_load_dwordx4 {vr(XR+4,4)}, v8, s[48:51], 0 offen offset:16')
    a('s_load_dword s64, s[46:47], 0')
    a(f'v_cndmask_b32 v{VMK}, 0, 1.0, vcc')
    a(f'v_mul_u32_u24 v{VXO}, {XS}, v6\nv_lshl_add_u32 v{VXO}, v7, 5, v{VXO}\nv_add_u32 v{VXO}, {XN}, v{VXO}')
    a('s_mov_b64 s[70:71], vcc')
    common_ids()
    a(f's_lshl_b32 s67, s23, 2\nv_add_u32 v15, s67, v{VFL}')
    srd(52, 46, W_STAMP + 0x40000 if stamps else W_END)
    a('v_and_b32 v10, 1, v0\nv_bfe_u32 v11, v0, 1, 2\nv_cmp_eq_u32 vcc, 0, v10')
    a('v_mov_b32 v12, 0x01000c0c\nv_mov_b32 v13, 0x0c0c0100\nv_cndmask_b32 v12, v12, v13, vcc')
    a('v_mov_b32 v10, 0x03020c0c\nv_mov_b32 v13, 0x0c0c0302\nv_cndmask_b32 v13, v10, v13, vcc')
    a('v_mov_b32 v10, 0x0c0c0c0c')
    for i in range(4):
        a(f'v_cmp_eq_u32 vcc, {i}, v11\nv_cndmask_b32 v{SEL+i}, v10, v12, vcc\nv_cndmask_b32 v{SEL+4+i}, v10, v13, vcc')
    a('v_lshrrev_b32 v10, 4, v0\nv_and_b32 v11, 15, v0\ns_lshl_b32 s67, s23, 13\nv_lshlrev_b32 v12, 9, v11\nv_add_u32 v12, s67, v12')
    for j in range(4):
        a(f'v_add_u32 v13, {4*j}, v10\nv_xor_b32 v13, v13, v11\nv_lshl_add_u32 v{KA+j}, v13, 4, v12\nv_add_u32 v{KA+4+j}, 0x10000, v{KA+j}')
    a(f'v_lshlrev_b32 v12, 11, v10\nv_lshl_add_u32 v12, v11, 4, v12\nv_add_u32 v{VA}, s67, v12\nv_add_u32 v{VA+1}, 0x10000, v{VA}')
    a(f'v_mov_b32 v{VM}, 0xff800000')
    a('s_barrier')
    a('s_waitcnt vmcnt(0)')
    stamp(1)
    layernorm(XR, XF, VMK)
    a('s_mov_b64 exec, s[70:71]')
    a(f'ds_write_b128 v{VXO}, {vr(XR,4)} offset:0\nds_write_b128 v{VXO}, {vr(XR+4,4)} offset:16')
    a('s_mov_b64 exec, -1')
    set_flag(F_X)
    stamp(2)
    a(f's_cmp_ge_u32 s32, 14\ns_cbranch_scc1 L_noln2')
    layernorm(XR, XF, VMK)
    a('s_mov_b64 exec, s[70:71]')
    a(f'ds_write_b128 v{VXO}, {vr(XR,4)} offset:{YN-XN}\nds_write_b128 v{VXO}, {vr(XR+4,4)} offset:{YN-XN+16}')
    a('s_mov_b64 exec, -1')
    set_flag(F_Y)
    a('L_noln2:')
    a('s_waitcnt lgkmcnt(0)\ns_add_u32 s64, s64, 1')

    def kfrag(k, ks):
        return ar(32 + 32 * k + 4 * ks, 4) if k < NDRAIN - 1 else vr(FR + 4 * ks, 4)

    def k_reads(k):
        for ks in range(8):
            a(f'ds_read_b128 {kfrag(k, ks)}, v{KA + (4 if k & 2 else 0) + (ks & 3)} offset:{(k&1)*32768 + (ks>>2)*256}')

    def k_finish(k):
        a(f'v_max3_f32 v{VM}, v{VM}, v{DT}, v{DT+1}\nv_max3_f32 v{VM}, v{VM}, v{DT+2}, v{DT+3}')
        a(f'v_cvt_pk_bf16_f32 v{P+2*k}, v{DT}, v{DT+1}\nv_cvt_pk_bf16_f32 v{P+2*k+1}, v{DT+2}, v{DT+3}')

    for k in range(NDRAIN):
        wait_tile(4 * k, sleep)
        k_reads(k)
        a(f'v_mov_b32 v{T0+1}, {k+1}\ns_waitcnt lgkmcnt(0)\nds_write_b32 v15, v{T0+1} offset:{F_CONS}')
    stamp(3)
    wait_flags(F_Q, 1, sleep)
    stamp(4)
    a(f'v_bfe_u32 v10, v0, 3, 1\nv_lshrrev_b32 v11, 4, v0\nv_lshlrev_b32 v10, 9, v10\nv_lshl_add_u32 v10, v11, 4, v10\nv_add_u32 v10, {QL}, v10')
    for ks in range(8):
        a(f'ds_read_b128 {ar(4*ks,4)}, v10 offset:{ks*64}')
    for k in range(NDRAIN):
        for ks in range(8):
            if k == 0:
                a(f's_waitcnt lgkmcnt({7-ks})')
            c = '0' if ks == 0 else vr(DT, 4)
            a(f'v_mfma_f32_16x16x32_bf16 {vr(DT,4)}, {kfrag(k, ks)}, {ar(4*ks,4)}, {c}')
        k_finish(k)

    for k in range(NDRAIN, 16):
        wait_tile(4 * k, sleep)
        k_reads(k)
        a(f'v_mov_b32 v{T0+1}, {k+1}')
        for ks in range(8):
            a(f's_waitcnt lgkmcnt({7-ks})')
            if ks == 7:
                a(f'ds_write_b32 v15, v{T0+1} offset:{F_CONS}')
            c = '0' if ks == 0 else vr(DT, 4)
            a(f'v_mfma_f32_16x16x32_bf16 {vr(DT,4)}, {vr(FR+4*ks,4)}, {ar(4*ks,4)}, {c}')
        k_finish(k)
        if k == kw2:
            srd(60, 40, 1792 * 896)
            a('s_lshl2_add_u32 s75, s20, s22\ns_lshl2_add_u32 s75, s75, s23\ns_mul_i32 s78, s75, 14')
            a(f'v_lshrrev_b32 v10, 3, v0\nv_and_b32 v11, 7, v0\nv_mul_u32_u24 v10, {2*896}, v10\nv_lshl_add_u32 v{VL}, v11, 4, v10')
            a('s_mul_i32 s76, s78, 896\ns_add_u32 s77, s76, 896')
        if kw2 <= k < kw2 + 4 and not now2:
            for j in range(4 * (k - kw2), min(14, 4 * (k - kw2) + 4)):
                t, cb = divmod(j, 7)
                a(f'buffer_load_dwordx4 {ar(32+4*j,4)}, v{VL}, s[60:63], {"s76" if t == 0 else "s77"} offen offset:{cb*128} {wflags}')
        if k == khp:
            l = lab('hp')
            a(f's_lshl_b32 s67, s21, 13\ns_lshl_b32 s75, s78, 2\ns_add_u32 s67, s67, s75\ns_add_u32 s67, s67, {W_H}')
            a(f'v_lshrrev_b32 v10, 3, v0\nv_cmp_gt_u32 s[68:69], 7, v10\nv_min_u32 v10, 6, v10\nv_lshlrev_b32 v10, 3, v10')
            a(f'{l}:')
            a(f'buffer_load_dwordx2 v[4:5], v10, s[52:55], s67 offen sc1')
            timeout()
            a(f's_waitcnt vmcnt(0)\nv_cmp_ne_u32 vcc, {TAG}, v5')
            if 'noh' not in diag:
                a(f's_cbranch_vccnz {l}')
            a('v_cndmask_b32 v4, 0, v4, s[68:69]')
            build_a(AT, 4, 0)
            build_a(AT + 4, 4, 1)
            for t in range(2):
                for cb in range(7):
                    c = '0' if t == 0 else ar(YA + 4 * cb, 4)
                    a(f'v_mfma_f32_16x16x32_bf16 {ar(YA+4*cb,4)}, {vr(AT+4*t,4)}, {ar(32+4*(t*7+cb),4)}, {c}')
    stamp(5)
    a(f'v_lshrrev_b32 v10, 3, v0\nv_lshlrev_b32 v10, 3, v10\ns_lshl_b32 s67, s23, 6\ns_add_u32 s67, s67, {SC}\nv_add_u32 v10, s67, v10')
    for k in range(NP // 4, 16):
        a(f'ds_write_b64 v10, v[{P+2*k}:{P+2*k+1}] offset:{(k - NP//4)*256}')
    reduce_rows('max', VM, T0)
    rnd(VM)
    a(f'v_bfe_u32 v10, v0, 3, 1\nv_lshl_add_u32 v10, v10, 2, v{VFL}\ns_lshl_b32 s67, s23, 3\nv_add_u32 v11, s67, v10')
    a(f'ds_write_b32 v11, v{VM} offset:{MX}')
    set_flag(F_M)
    wait_flags(F_M, 4)
    a(f'ds_read2_b32 v[4:5], v10 offset0:{MX//4} offset1:{MX//4+2}\nds_read2_b32 v[6:7], v10 offset0:{MX//4+4} offset1:{MX//4+6}')
    a(f's_mov_b32 s75, {fb(LOG2E/16)}\nv_mov_b32 v{VL}, 0\nv_mov_b32 v12, 0')
    a(f's_waitcnt lgkmcnt(0)\nv_max3_f32 v4, v4, v5, v6\nv_max_f32 v{VM}, v4, v7\nv_mul_f32 v13, {fb(-LOG2E/16)}, v{VM}')
    for j in range(0, 32, 2):
        a(f'v_lshlrev_b32 v4, 16, v{P+j}\nv_and_b32 v5, 0xffff0000, v{P+j}\nv_lshlrev_b32 v6, 16, v{P+j+1}\nv_and_b32 v7, 0xffff0000, v{P+j+1}')
        for r in range(4):
            a(f'v_fma_f32 v{4+r}, v{4+r}, s75, v13')
        for r in range(4):
            a(f'v_exp_f32 v{4+r}, v{4+r}')
        a(f'v_add_f32 v{VL}, v{VL}, v4\nv_add_f32 v12, v12, v5\nv_cvt_pk_bf16_f32 v{P+j}, v4, v5')
        a(f'v_add_f32 v{VL}, v{VL}, v6\nv_add_f32 v12, v12, v7\nv_cvt_pk_bf16_f32 v{P+j+1}, v6, v7')
    a(f'v_add_f32 v{VL}, v{VL}, v12')
    reduce_rows('add', VL, T0)
    a(f'ds_write_b32 v11, v{VL} offset:{LS}')
    set_flag(F_L)
    srd(60, 30, 4096 * 896)
    a('s_lshl_b32 s75, s20, 5\ns_lshl2_add_u32 s78, s22, s23\ns_add_u32 s75, s75, s78\ns_mul_i32 s78, s75, 16*896')
    a(f'v_lshrrev_b32 v10, 4, v0\nv_bfe_u32 v11, v0, 3, 1\nv_lshl_add_u32 v10, v11, 6, v10\nv_and_b32 v11, 7, v0\nv_mul_u32_u24 v10, {4*896}, v10\nv_lshl_add_u32 v{VL}, v11, 4, v10')

    def v_mfmas(preg, first, extra, done):
        for r in range(4):
            at = AT + 4 * (r & 1)
            if r == 0 and extra:
                a('s_waitcnt lgkmcnt(8)')
            build_a(at, preg + (r >> 1), r & 1)
            for hf in range(2):
                a(f's_waitcnt lgkmcnt({7-(2*r+hf)})')
                if r == 3 and hf == 1:
                    done()
                c = '0' if (first and r == 0) else vr(OA + 4 * hf, 4)
                a(f'v_mfma_f32_16x16x32_bf16 {vr(OA+4*hf,4)}, {vr(at,4)}, {vr(FR+4*(2*r+hf),4)}, {c}')

    for k in range(NP // 4):
        wait_tile(64 + 4 * k, sleep)
        for r in range(4):
            for hf in range(2):
                a(f'ds_read_b128 {vr(FR+4*(2*r+hf),4)}, v{VA + (1 if k & 2 else 0)} offset:{(k&1)*32768 + r*512 + hf*256}')
        a(f'v_mov_b32 v{T0+1}, {k+17}')
        v_mfmas(P + 2 * k, k == 0, False, lambda: a(f'ds_write_b32 v15, v{T0+1} offset:{F_CONS}'))
        if k < 7 and not nowo:
            for j in range(4 * k, 4 * k + 4):
                t, cb = divmod(j, 7)
                if j % 7 == 0 or j % 4 == 0:
                    a(f's_add_u32 s67, s78, {t*896}')
                a(f'buffer_load_dwordx4 {ar(4*j,4)}, v{VL}, s[60:63], s67 offen offset:{cb*128} {wflags}')
    VO1, VO2, VO3, VO4, VO5 = P, P + 1, P + 2, P + 3, P + 4
    a(f'v_lshrrev_b32 v10, 5, v0\nv_and_b32 v11, 15, v0\nv_lshlrev_b32 v10, 10, v10\nv_lshl_add_u32 v10, v11, 5, v10')
    a(f'v_bfe_u32 v11, v0, 4, 1\nv_lshl_add_u32 v{VO3}, v11, 4, v10\nv_mov_b32 v13, 0x1000000')
    a(f'v_lshlrev_b32 v10, 4, v0\nv_add_u32 v{VO1}, {OPL}, v10')
    a(f's_lshl_b32 s68, s74, 11\ns_add_u32 s68, s68, {W_OP}')
    a(f'v_and_b32 v10, 3, v0\nv_bfe_u32 v11, v0, 3, 1\nv_lshl_add_u32 v10, v10, 1, v11\nv_lshrrev_b32 v11, 4, v0\nv_lshlrev_b32 v10, 10, v10\nv_lshl_add_u32 v{VO4}, v11, 4, v10')
    a(f's_lshl_b32 s69, s73, 13\ns_lshl2_add_u32 s67, s22, s23\ns_lshl_b32 s67, s67, 6\ns_add_u32 s69, s69, s67\ns_add_u32 s69, s69, {W_OP}')
    a(f'v_lshrrev_b32 v10, 5, v0\ns_lshl_b32 s67, s23, 1\nv_add_u32 v10, s67, v10\nv_mul_u32_u24 v10, {RS}, v10')
    a(f'v_and_b32 v11, 7, v0\nv_lshl_add_u32 v10, v11, 5, v10\nv_bfe_u32 v11, v0, 4, 1\nv_lshl_add_u32 v10, v11, 4, v10\nv_add_u32 v{VO5}, {RED}, v10')
    VR1, VR2, VQ, VPT, VPP, VVA = P + 5, P + 6, P + 7, P + 8, P + 10, P + 12
    a(f'v_lshrrev_b32 v10, 1, v0\nv_min_u32 v10, 27, v10\ns_mul_i32 s67, s23, 28\nv_add_u32 v10, s67, v10\nv_lshlrev_b32 v10, 4, v10')
    a(f'v_and_b32 v11, 1, v0\nv_mul_u32_u24 v12, {4*RS}, v11\nv_add3_u32 v{VR1}, v10, v12, v{VFL}')
    a(f'v_add_u32 v{VR1}, {RED-FLG}, v{VR1}')
    a(f'v_cmp_gt_u32 vcc, 56, v0\nv_cndmask_b32 v10, v13, v10, vcc\nv_cmp_eq_u32 vcc, 0, v11\nv_cndmask_b32 v{VR2}, v13, v10, vcc')
    a(f's_lshl_b32 s76, s74, 11\ns_add_u32 s76, s76, {W_YP}')
    a(f's_lshr_b32 s67, s23, 1\ns_lshl_b32 s67, s67, 2\ns_add_u32 s67, s67, {FLG + CQ}\nv_mov_b32 v{VQ}, s67')
    a(f'v_lshrrev_b32 v10, 3, v0\nv_lshlrev_b32 v10, 3, v10\ns_and_b32 s67, s23, 1\ns_lshl_b32 s67, s67, 6\ns_add_u32 s67, s67, {PT}\nv_add_u32 v{VPT}, s67, v10')
    VFA, VFB, OF = P + 13, P + 14, P + 16
    a(f'v_lshrrev_b32 v10, 4, v0\nv_bfe_u32 v11, v0, 3, 1\nv_and_b32 v12, 1, v10\nv_lshl_add_u32 v11, v12, 1, v11\nv_xor_b32 v11, s23, v11')
    a(f'v_lshlrev_b32 v11, 5, v11\nv_lshl_add_u32 v11, v10, 10, v11\nv_bfe_u32 v12, v0, 2, 2\nv_lshl_add_u32 v11, v12, 7, v11\nv_and_b32 v12, 3, v0\nv_lshl_add_u32 v{VFA}, v12, 3, v11')
    a(f'v_lshrrev_b32 v11, 5, v0\nv_bfe_u32 v12, v0, 4, 1\nv_lshlrev_b32 v11, 6, v11\nv_lshl_add_u32 v11, v12, 5, v11\nv_bfe_u32 v12, v0, 3, 1\nv_lshl_add_u32 v11, v12, 3, v11')
    a(f'v_add_u32 v{VFB}, {PT + (S - NF)*64}, v11')
    tag_setup()
    VTG = P + 9
    a(f'v_mov_b32 v{VTG}, s34')
    wait_flags(F_P, 1, sleep)
    a(f'v_lshrrev_b32 v10, 5, v0\nv_lshl_add_u32 v10, v10, 2, v{VFL}\nds_read_b32 v11, v10 offset:{FO}')
    a(f'v_bfe_u32 v10, v0, 3, 1\nv_lshl_add_u32 v10, v10, 2, v{VFL}\nds_read_b32 v{VW}, v10 offset:{FO+8}')
    a(f's_add_u32 s72, s23, {64 + NP}\ns_waitcnt vmcnt(0) lgkmcnt(0)')
    for j in range(8):
        a(f'v_mul_f32 v{OA+j}, v{OA+j}, v11')
    stamp(10)
    a('L_pool:')
    a(f'ds_read_b32 v4, v{VQ}\nds_read_b32 v5, v{VFL} offset:{F_LAND}\ns_waitcnt lgkmcnt(0)')
    a(f'v_readfirstlane_b32 s24, v4\nv_readfirstlane_b32 s65, v5\ns_cmp_gt_u32 s24, {NCH}\ns_cbranch_scc1 L_pool_end')
    a('s_cmp_gt_i32 s65, s72\ns_cbranch_scc1 L_pool_go')
    timeout()
    if psleep:
        a(f's_sleep {psleep}')
    a('s_branch L_pool\nL_pool_go:')
    a(f's_cmp_eq_u32 s24, 0\ns_cbranch_scc1 L_pool')
    a('s_sub_u32 s24, s24, 1\ns_and_b32 s25, s24, 3\ns_lshl_b32 s25, s25, 11\ns_lshr_b32 s24, s24, 2\ns_lshl_b32 s24, s24, 7\ns_add_u32 s24, s24, s25')
    a(f's_and_b32 s25, s72, 12\ns_lshl_b32 s25, s25, 13\nv_add_u32 v4, s24, v{VPT}\nv_add_u32 v{VVA}, s25, v{VA}')
    a(f'ds_read_b64 v[{VPP}:{VPP+1}], v4')
    for r in range(4):
        for hf in range(2):
            a(f'ds_read_b128 {vr(FR+4*(2*r+hf),4)}, v{VVA} offset:{r*512 + hf*256}')
    a(f's_lshr_b32 s25, s72, 2\ns_add_u32 s25, s25, 1\nv_mov_b32 v{T0+1}, s25\nv_add_u32 v{VQ}, 8, v{VQ}\ns_add_u32 s72, s72, 4')
    v_mfmas(VPP, False, True, lambda: a(f'ds_write_b32 v15, v{T0+1} offset:{F_CONS}'))
    a('s_branch L_pool')
    a('L_pool_end:')
    a('s_sub_u32 s25, s23, s24\ns_and_b32 s25, s25, 3\ns_cmp_eq_u32 s25, 3\ns_cbranch_scc1 L_collect')
    a(f's_lshl_b32 s67, s25, 11\nv_add_u32 v{VO2}, s67, v{VO1}\ns_lshl_b32 s67, s25, 2\nv_add_u32 v4, s67, v{VFL}')
    a(f'ds_write_b128 v{VO2}, {vr(OA,4)}\nds_write_b128 v{VO2}, {vr(OA+4,4)} offset:1024\nds_write_b32 v4, v14 offset:{F_O}')
    stamp(6)
    a('s_branch L_collected')
    a('L_collect:')
    stamp(6)
    a('L_collect_rt:')
    a(f'ds_read_b128 v[4:7], v{VFL} offset:{F_O}')
    for j in range(6):
        a(f'ds_read_b128 {vr(FR+4*j,4)}, v{VO1} offset:{j*1024}')
    timeout()
    a('s_waitcnt lgkmcnt(6)\nv_min3_u32 v4, v4, v5, v6\nv_cmp_eq_u32 vcc, 0, v4\ns_cbranch_vccz L_collect_ok\ns_waitcnt lgkmcnt(0)\ns_branch L_collect_rt\nL_collect_ok:')
    for j in range(6):
        a(f's_waitcnt lgkmcnt({5-j})')
        o = OA + 4 * (j & 1)
        a(f'v_pk_add_f32 v[{o}:{o+1}], v[{o}:{o+1}], v[{FR+4*j}:{FR+4*j+1}]\nv_pk_add_f32 v[{o+2}:{o+3}], v[{o+2}:{o+3}], v[{FR+4*j+2}:{FR+4*j+3}]')
        if j >= 4:
            tag_put(o, VTG)
            a(f'buffer_store_dwordx4 {vr(o,4)}, v{VO3}, s[52:55], s68 offen offset:{512*(j&1)} {hs}')
    a('L_collected:')
    stamp(7)
    G = P + 20
    a('s_mov_b32 s72, s23\ns_mov_b32 s23, s24')
    for f in range(NF):
        wait_tile(f, 0)
        a(f's_add_u32 s25, s23, {f}\ns_and_b32 s25, s25, 15\ns_lshl_b32 s25, s25, 13\nv_add_u32 v{VVA}, s25, v{VFA}')
        for blk in range(2):
            q_, t_ = blocks[2*f + blk]
            a(f'v_add_u32 v{4+blk}, {q_*2048 + (t_ - (64 - NF))*64}, v{VFB}')
            a(f'ds_read2_b64 {vr(FR+16+4*blk,4)}, v{4+blk} offset0:0 offset1:2')
            for hh in range(2):
                a(f'ds_read_b64_tr_b16 {vr(FR+4*blk+2*hh,2)}, v{VVA} offset:{blk*4096 + hh*512}')
        if f == gat:
            a(f'buffer_load_dwordx4 {vr(G,4)}, v{VO4}, s[52:55], s69 offen {hl}')
        for blk in range(2):
            c = '0' if (f == 0 and blk == 0) else vr(OF, 4)
            a(f's_waitcnt lgkmcnt({3 - 3*blk})\nv_mfma_f32_16x16x32_bf16 {vr(OF,4)}, {vr(FR+4*blk,4)}, {vr(FR+16+4*blk,4)}, {c}')
    a('s_mov_b32 s23, s72')
    stamp(3)
    a('s_branch L_hop1_chk')
    a('L_hop1:')
    if mask1:
        a('s_mov_b64 exec, vcc')
    a(f'buffer_load_dwordx4 {vr(G,4)}, v{VO4}, s[52:55], s69 offen {hl}')
    if mask1:
        a('s_mov_b64 exec, -1')
    timeout()
    a('L_hop1_chk:')
    a('s_waitcnt vmcnt(0)')
    tag_get(8, G, 9)
    a('v_cmp_ne_u32 vcc, s34, v8')
    if 'nowait' not in diag:
        a('s_cbranch_vccnz L_hop1')
    stamp(8)
    for r in range(4):
        a(f'v_add_f32_dpp v{4+r}, v{G+r}, v{G+r} quad_perm:[1,0,3,2] row_mask:0xf bank_mask:0xf')
    for r in range(4):
        a(f'v_add_f32_dpp v{4+r}, v{4+r}, v{4+r} quad_perm:[2,3,0,1] row_mask:0xf bank_mask:0xf')
    for r in range(4):
        a(f'v_add_f32 v{4+r}, v{4+r}, v{OF+r}')
    for r in range(4):
        a(f'v_mul_f32 v{4+r}, v{4+r}, v{VW}')
    a('v_cvt_pk_bf16_f32 v4, v4, v5\nv_cvt_pk_bf16_f32 v6, v6, v7')
    if cbmajor:
        A4 = (AT, AT + 4, FR, FR + 4)
        build_a(A4[0], 4, 0)
        a(f'v_mfma_f32_16x16x32_bf16 {ar(YA,4)}, {vr(A4[0],4)}, {ar(0,4)}, {ar(YA,4)}')
        build_a(A4[1], 4, 1)
        a(f'v_mfma_f32_16x16x32_bf16 {ar(YA+4,4)}, {vr(A4[0],4)}, {ar(4,4)}, {ar(YA+4,4)}')
        build_a(A4[2], 6, 0)
        a(f'v_mfma_f32_16x16x32_bf16 {ar(YA,4)}, {vr(A4[1],4)}, {ar(28,4)}, {ar(YA,4)}')
        build_a(A4[3], 6, 1)
        a('s_mov_b32 s24, 0x00ff00ff\ns_mov_b32 s25, 0xff00ff00')
        todo = [(cb, t) for cb in range(7) for t in range(4) if (cb, t) not in ((0, 0), (1, 0), (0, 1))]
        pend = []
        for n_, (cb, t) in enumerate(todo):
            a(f'v_mfma_f32_16x16x32_bf16 {ar(YA+4*cb,4)}, {vr(A4[t],4)}, {ar(4*(t*7+cb),4)}, {ar(YA+4*cb,4)}')
            if t == 3:
                pend.append((cb, n_))
            if pend and n_ - pend[0][1] >= 4:
                c_ = pend.pop(0)[0]
                a(f's_mov_b64 exec, s[24:25]\nds_write_b128 v{VO5}, {ar(YA+4*c_,4)} offset:{c_*256}\ns_mov_b64 exec, -1')
        a('s_mov_b64 exec, s[24:25]')
        for c_, _ in pend:
            a(f'ds_write_b128 v{VO5}, {ar(YA+4*c_,4)} offset:{c_*256}')
    else:
        build_a(AT, 4, 0)
        for t in range(4):
            for cb in range(7):
                a(f'v_mfma_f32_16x16x32_bf16 {ar(YA+4*cb,4)}, {vr(AT+4*(t&1),4)}, {ar(4*(t*7+cb),4)}, {ar(YA+4*cb,4)}')
                if cb == 0 and t < 3:
                    build_a(AT + 4 * ((t + 1) & 1), 4 + 2 * ((t + 1) >> 1), (t + 1) & 1)
        a('s_mov_b32 exec_lo, 0x00ff00ff\ns_mov_b32 exec_hi, 0xff00ff00')
        for cb in range(7):
            a(f'ds_write_b128 v{VO5}, {ar(YA+4*cb,4)} offset:{cb*256}')
    a('s_mov_b64 exec, -1\ns_waitcnt lgkmcnt(0)\ns_barrier')
    for j in range(4):
        a(f'ds_read_b128 {vr(FR+4*j,4)}, v{VR1} offset:{j*RS}')
    a(f's_waitcnt lgkmcnt(2)\nv_pk_add_f32 v[4:5], v[{FR}:{FR+1}], v[{FR+4}:{FR+5}]\nv_pk_add_f32 v[6:7], v[{FR+2}:{FR+3}], v[{FR+6}:{FR+7}]')
    a(f's_waitcnt lgkmcnt(1)\nv_pk_add_f32 v[4:5], v[4:5], v[{FR+8}:{FR+9}]\nv_pk_add_f32 v[6:7], v[6:7], v[{FR+10}:{FR+11}]')
    a(f's_waitcnt lgkmcnt(0)\nv_pk_add_f32 v[4:5], v[4:5], v[{FR+12}:{FR+13}]\nv_pk_add_f32 v[6:7], v[6:7], v[{FR+14}:{FR+15}]')
    for r in range(4):
        a(f'v_add_f32_dpp v{4+r}, v{4+r}, v{4+r} quad_perm:[1,0,3,2] row_mask:0xf bank_mask:0xf')
    tag_put(4, VTG)
    a(f'buffer_store_dwordx4 v[4:7], v{VR2}, s[52:55], s76 offen {hs}')
    stamp(9)
    if stamps:
        a('s_mov_b64 exec, -1')
        a('L_stamp_out:')
        srd(52, 46, W_STAMP + 0x40000)
        a('s_getreg_b32 s95, hwreg(HW_REG_XCC_ID)')
        a(f's_mul_i32 s67, s2, 6\ns_add_u32 s67, s67, s3\ns_lshl_b32 s67, s67, 6\ns_add_u32 s67, s67, {W_STAMP}')
        for k in range(16):
            a(f'v_mov_b32 v{16+k}, s{80+k}')
        a('s_mov_b64 exec, 1')
        for k in range(4 if store_stamps else 0):
            a(f'buffer_store_dwordx4 v[{16+4*k}:{19+4*k}], off, s[52:55], s67 offset:{16*k}')
    a('L_end:')
    a('s_endpgm')
    body = a.finalize()
    head = header or ''
    head += f'; @launch grid=(256,1,1) block=(384,1,1) lds={LDS_BYTES}\n'
    head += f'.amdgcn_target "amdgcn-amd-amdhsa--gfx950"\n.text\n.globl {NAME}\n.p2align 8\n.type {NAME},@function\n'
    tail = f'''.section .rodata,"a"
.p2align 6
.amdhsa_kernel {NAME}
  .amdhsa_next_free_vgpr 256
  .amdhsa_next_free_sgpr 102
  .amdhsa_accum_offset 112
  .amdhsa_group_segment_fixed_size 0
  .amdhsa_kernarg_size 104
  .amdhsa_user_sgpr_count 2
  .amdhsa_user_sgpr_kernarg_segment_ptr 1
  .amdhsa_system_sgpr_workgroup_id_x 1
  .amdhsa_float_denorm_mode_32 3
.end_amdhsa_kernel
'''
    return head + body + tail


if __name__ == '__main__':
    ref = open('parallel_sum__gqa_block_cached__mixer_channel_mlp__decode.s.ref').read().split('\n')
    hdr = '\n'.join(l for l in ref if l.startswith(';') and '@launch' not in l and 'Override' not in l and 'grid=ceil' not in l) + '\n'
    kw = eval('dict(' + (sys.argv[2] if len(sys.argv) > 2 else '') + ')')
    out = sys.argv[1] if len(sys.argv) > 1 else 'parallel_sum__gqa_block_cached__mixer_channel_mlp__decode.s'
    open(out, 'w').write(gen(header=hdr, **kw))
    print('wrote', out)
```

```python
import struct, sys, os
sys.path.insert(0, os.path.dirname(os.path.abspath(__file__)))
from asmkit import Asm

NAME = "parallel_sum__gqa_block_cached__mixer_channel_mlp__decode_kernel"


def fb(x):
    return '0x%08x' % struct.unpack('<I', struct.pack('<f', x))[0]


LOG2E = 1.4426950408889634
RING = 0
FLG = 131072
F_LAND, F_CONS, F_X, F_Q, F_Y, F_M, F_L, F_O, MX, LS = 0, 16, 32, 48, 64, 80, 96, 112, 128, 160
QL = FLG + 1024
XN = QL + 1024
XS = 912
YN = XN + 8 * XS
STG = YN + 8 * XS
LDS_BYTES = STG + 14336
OPL = XN
RED = XN + 6144
RS = 1824
PT = RED + 8 * RS
SC = XN
F_P, FO, CQ = 192, 196, 256
assert PT + 8192 <= LDS_BYTES
W_Q = 0x1000
W_H = 0x21000
W_ST = 0x31000
W_OP = 0x40000
W_YP = 0xC0000
W_SC = 0x140000
W_CT = 0x1c0000
W_END = 0x210000
W_STAMP = 0x220000


def vr(a, n=1):
    return f'v{a}' if n == 1 else f'v[{a}:{a+n-1}]'


def ar(a, n=1):
    return f'a{a}' if n == 1 else f'a[{a}:{a+n-1}]'


def gen(D=21, kflags='nt', vflags='nt', wflags='', stamps=False, sleep=1, prefetch=True, header=None, spin=None, warm=True, NDRAIN=4, diag='', qsleep=0, D0=None, qat=20, qstep=3, pfsplit=True, lateclear=True, remap=0x6530, LEAD=6, h2sleep=6, nowo=False, now2=False, swarm=True, DF=28, gat=None, NP=52, NF=6, psleep=0, ctstride=4352, rwarm=None, rwall=False, slabd=3, slabd1=2, hlate=True, kw2=10, khp=14, qrot=0, hoff=16, qflags=None, rwy=False, stat_at=0, cbmajor=True, pipe2=2, owarm=False, osc='', mask2=False, mask1=True, hl='sc1', hs='sc1', ylate=True, DP=22, DV=22, pad=0, x16=True, qline=False, olate=False, T1=4, T2=1000, slab_after=1, wob0=False, oflags=None, touch='q12o', tflags='', wo_at=40, tspace=False, segs=None):
    oflags = wflags if oflags is None else oflags
    qflags = wflags if qflags is None else qflags
    NCH = (64 - NP - NF) * 4
    assert NCH < 64 + NP
    gat = NF - 3 if gat is None else gat
    S = 64 - NP
    blocks = [(q, 64 - NF + 2 * j) for q in range(4) for j in range(2)]
    if NF == 6:
        blocks += [(q, 62) for q in range(4)]
    if NF == 8:
        blocks += [(q, 60 + 2 * j) for q in range(4) for j in range(2)]
    NT = (S + 15) // 16
    a = Asm()
    uid = [0]
    store_stamps = stamps
    if spin is not None:
        stamps = True

    def lab(p):
        uid[0] += 1
        return f'L_{p}_{uid[0]}'

    nstamp = [0]

    def stamp(k):
        if stamps:
            a(f's_memrealtime s[98:99]\ns_waitcnt lgkmcnt(0)\ns_mov_b32 s{80+k}, s98')

    def srd(d, p, size):
        a(f's_mov_b32 s{d}, s{p}\ns_mov_b32 s{d+1}, s{p+1}\ns_mov_b32 s{d+2}, {size}\ns_mov_b32 s{d+3}, 0x20000')

    a(f'{NAME}:')
    a('s_cmp_ge_u32 s2, 256\ns_cbranch_scc1 L_end')
    a('s_load_dwordx4 s[4:7], s[0:1], 8')
    if stamps:
        for k in range(16):
            a(f's_mov_b32 s{80+k}, 0')
        a('s_memrealtime s[98:99]')
    a('v_lshrrev_b32 v1, 6, v0\nv_and_b32 v0, 63, v0')
    a('v_readfirstlane_b32 s3, v1')
    a('s_and_b32 s33, s2, 7\ns_lshr_b32 s19, s2, 3\ns_and_b32 s21, s19, 7\ns_lshr_b32 s22, s19, 3')
    a(f's_sub_u32 s32, s19, {hoff}\ns_and_b32 s32, s32, 31')
    if remap > 7:
        a(f's_lshl_b32 s20, s22, 2\ns_lshr_b32 s20, {remap}, s20\ns_xor_b32 s20, s20, s33\ns_and_b32 s20, s20, 7')
    else:
        a(f's_mul_i32 s20, s22, {remap}\ns_sub_u32 s20, s33, s20\ns_and_b32 s20, s20, 7')
    a('s_cmp_eq_u32 s3, 5\ns_cbranch_scc1 L_helper\ns_cmp_lg_u32 s3, 0\ns_cbranch_scc1 L_consumer')

    a('s_setprio 3')
    if stamps:
        a('v_mov_b32 v30, 0')
    a('v_lshrrev_b32 v10, 5, v0\nv_and_b32 v11, 31, v0\nv_lshlrev_b32 v12, 9, v10')
    for i in range(8):
        a(f'v_add_u32 v13, {2*i}, v10\nv_xor_b32 v13, v13, v11\nv_lshl_add_u32 v{2+i}, v13, 4, v12')
    a('s_lshl_b32 s17, s21, 3\ns_add_u32 s17, s17, s20\ns_lshl_b32 s17, s17, 2\ns_add_u32 s17, s17, s22\ns_lshl_b32 s17, s17, 19')
    a('s_mov_b32 s10, 0x80000\ns_mov_b32 s11, 0x20000\ns_mov_b32 s12, 0\ns_mov_b32 s14, 0')
    a('s_mov_b32 s18, 0x100000')
    a('s_waitcnt lgkmcnt(0)')
    if stamps:
        a('s_mov_b32 s80, s98')
    a('s_add_u32 s8, s4, s17\ns_addc_u32 s9, s5, 0\ns_and_b32 s17, s17, 0xffe00000\ns_add_u32 s6, s6, s17\ns_addc_u32 s7, s7, 0')
    ipub = (7 + D) % 8
    lag = (7 + D) // 8

    DP = DP or D
    DV = DV or D

    def ld_tile(u, T=None, kvflags=kflags, Dx=None):
        Dx = Dx or D
        ip, lg = (7 + Dx) % 8, (7 + Dx) // 8
        for i in range(8):
            if i % 4 == 0:
                a(f's_add_u32 m0, s14, {u*8192 + (i//4)*4096}')
                a(f's_add_u32 s13, s12, {u*8192 + (i//4)*4096}')
            if T is None:
                a(f's_waitcnt vmcnt({Dx-1})')
            elif 8 * T + i >= (D0 or D):
                a(f's_waitcnt vmcnt({(D0 or D)-1})')
            if i == ip:
                if T is None:
                    a(f's_lshl2_add_u32 s17, s15, {u - lg + 1}\nv_mov_b32 v15, s17\nds_write_b32 v14, v15 offset:{F_LAND}')
                elif T - lg + 1 > 0 and not D0:
                    a(f'v_mov_b32 v15, {T - lg + 1}\nds_write_b32 v14, v15 offset:{F_LAND}')
            a(f'buffer_load_dwordx4 v{2+i}, s[8:11], s13 offen offset:{(i%4)*1024} {kvflags} lds')

    ld_tile(0, 0)
    a(f'v_mov_b32 v16, 0\nv_mov_b32 v17, 0\nv_mov_b32 v18, 0\nv_mov_b32 v19, 0')
    a(f'v_mov_b32 v14, {FLG}\nv_lshl_add_u32 v13, v0, 4, v14\nds_write_b128 v13, v[16:19]')
    ld_tile(1, 1)
    a('s_waitcnt lgkmcnt(0)\ns_barrier')
    ld_tile(2, 2)
    ld_tile(3, 3)
    a('s_mov_b32 s15, 1')

    def ld_free(u):
        ok = lab('ldok')
        rt = lab('ldrt')
        a('s_waitcnt lgkmcnt(0)')
        a(f'v_readfirstlane_b32 s17, v{16+u}\ns_cmp_ge_i32 s17, s16\ns_cbranch_scc1 {ok}')
        a(f'{rt}:')
        a(f'ds_read_b128 v[16:19], v14 offset:{F_CONS}\ns_sub_u32 s18, s18, 1\ns_cbranch_scc1 L_end\ns_waitcnt lgkmcnt(0)')
        a(f'v_readfirstlane_b32 s17, v{16+u}\ns_cmp_ge_i32 s17, s16\ns_cbranch_scc0 {rt}')
        a(f'{ok}:')
        a(f'ds_read_b128 v[16:19], v14 offset:{F_CONS}')

    def ld_stamps():
        if stamps:
            a('s_memrealtime s[98:99]\ns_waitcnt lgkmcnt(0)\nv_mov_b32 v31, s98\nv_cmp_eq_u32 vcc, s15, v0\nv_cndmask_b32 v30, v30, v31, vcc')
            for k, it in enumerate((1, 2, 4, 6, 8, 12, 16, 24, 28)):
                a(f's_cmp_eq_u32 s15, {it}\ns_cselect_b32 s{82+k}, s98, s{82+k}')

    segs = segs or [(16, D), (16 + NP // 4, DV)]
    assert any(e == 16 for e, _ in segs) and segs[-1][0] == 16 + NP // 4
    first = 1
    for n_, (end, Dx) in enumerate(segs):
        ph = first >= 16
        if first == 16:
            a('s_mov_b32 s8, s6\ns_mov_b32 s9, s7\ns_mov_b32 s10, 0x200000\ns_lshl_b32 s12, s22, 19\ns_sub_u32 s12, s12, 32768')
            for i in range(8):
                a(f'v_lshlrev_b32 v{2+i}, 4, v0')
        a(f'L_ld_loop{n_}:')
        a('s_add_u32 s12, s12, 32768\ns_add_u32 s14, s14, 32768\ns_and_b32 s14, s14, 0x1ffff\ns_sub_u32 s16, s15, 3')
        ld_stamps()
        for u in range(4):
            ld_free(u)
            if n_ == len(segs) - 1 and u == 3:
                a(f'ds_read_b32 v20, v14 offset:{CQ}')
            ld_tile(u, None, vflags if ph else kflags, Dx)
        a(f's_add_u32 s15, s15, 1\ns_cmp_lt_u32 s15, {end}\ns_cbranch_scc1 L_ld_loop{n_}')
        first = end
    DV = segs[-1][1]
    lag = max((7 + d) // 8 for e, d in segs if e <= 16)
    a(f'v_add_u32 v21, {CQ}, v14')
    a('v_lshrrev_b32 v10, 3, v0\nv_bfe_u32 v11, v0, 4, 1\nv_lshlrev_b32 v11, 1, v11\nv_and_b32 v12, 7, v0\nv_xor_b32 v11, v11, v12')
    a('s_lshl_b32 s17, s22, 7\nv_lshlrev_b32 v10, 9, v10\nv_add_u32 v10, s17, v10\nv_lshl_add_u32 v22, v11, 4, v10\nv_xor_b32 v23, 64, v22')
    stamp(11)
    ipp, lagp = (7 + DP) % 8, (7 + DP) // 8

    def free_upto(extra):
        ok = lab('fok')
        rt = lab('frt')
        a(f's_add_u32 s16, s25, {extra}\ns_lshr_b32 s16, s16, 2\ns_sub_u32 s16, s16, 3')
        a(f'v_min3_i32 v16, v16, v17, v18\nv_min_i32 v16, v16, v19\nv_readfirstlane_b32 s17, v16\ns_cmp_ge_i32 s17, s16\ns_cbranch_scc1 {ok}')
        a(f'{rt}:')
        a(f'ds_read_b128 v[16:19], v14 offset:{F_CONS}\ns_sub_u32 s18, s18, 1\ns_cbranch_scc1 L_end\ns_waitcnt lgkmcnt(0)')
        a(f'v_min3_i32 v16, v16, v17, v18\nv_min_i32 v16, v16, v19\nv_readfirstlane_b32 s17, v16\ns_cmp_ge_i32 s17, s16\ns_cbranch_scc0 {rt}')
        a(f'{ok}:')

    a(f's_mov_b32 s25, {64 + NP}')
    a('L_ld_pool:')
    if stamps:
        a('s_and_b32 s17, s25, 3\ns_cmp_lg_u32 s17, 0\ns_cbranch_scc1 L_ld_nost\ns_lshr_b32 s15, s25, 2')
        ld_stamps()
        a('L_ld_nost:')
    a('s_waitcnt lgkmcnt(0)\nv_readfirstlane_b32 s24, v20\ns_cmp_lg_u32 s24, 0\ns_cbranch_scc1 L_cqok')
    a('L_cqrt:')
    if stamps:
        a('s_add_u32 s94, s94, 1')
    a(f'ds_read_b32 v20, v21\ns_sub_u32 s18, s18, 1\ns_cbranch_scc1 L_end\ns_waitcnt lgkmcnt(0)')
    a(f'v_readfirstlane_b32 s24, v20\ns_cmp_lg_u32 s24, 0\ns_cbranch_scc0 L_cqrt')
    a('L_cqok:')
    a(f's_cmp_gt_u32 s24, {NCH}\ns_cbranch_scc1 L_ld_final')
    a('s_sub_u32 s24, s24, 1\ns_bfe_u32 s12, s24, 0x20001\ns_lshl_b32 s12, s12, 19\ns_and_b32 s13, s24, 1\ns_lshr_b32 s24, s24, 3\ns_lshl1_add_u32 s24, s24, s13')
    a(f's_add_u32 s24, s24, {NP}\ns_lshl_b32 s24, s24, 13\ns_add_u32 s12, s12, s24\ns_and_b32 s14, s25, 15\ns_lshl_b32 s14, s14, 13')
    free_upto(0)
    a(f'v_add_u32 v21, 4, v21\nds_read_b128 v[16:19], v14 offset:{F_CONS}\nds_read_b32 v20, v21')
    for i in range(8):
        if i % 4 == 0:
            a(f's_add_u32 m0, s14, {(i//4)*4096}\ns_add_u32 s13, s12, {(i//4)*4096}')
        a(f's_waitcnt vmcnt({DP-1})')
        if i == ipp:
            a(f's_sub_u32 s17, s25, {lagp - 1}\nv_mov_b32 v15, s17\nds_write_b32 v14, v15 offset:{F_LAND}')
        a(f'buffer_load_dwordx4 v{2+i}, s[8:11], s13 offen offset:{(i%4)*1024} {vflags} lds')
    a('s_add_u32 s25, s25, 1\ns_branch L_ld_pool')
    ipf, lagf = (7 + DF) % 8, (7 + DF) // 8
    a('L_ld_final:')
    stamp(12)
    free_upto(NF - 1)
    done = -((7 + max(DP, DV)) // 8)
    for f in range(NF):
        a(f's_add_u32 s14, s25, {f}\ns_and_b32 s14, s14, 15\ns_lshl_b32 s14, s14, 13')
        for i in range(8):
            a(f's_add_u32 m0, s14, {i*1024}\ns_mov_b32 s13, {blocks[2*f + (i>>2)][0]*0x80000 + blocks[2*f + (i>>2)][1]*8192 + (i&3)*4096}')
            if 8 * f + i + max(DP, DV) >= DF:
                a(f's_waitcnt vmcnt({DF-1})')
                if i == ipf and f - lagf + 1 > done:
                    done = f - lagf + 1
                    a(f's_add_u32 s17, s25, {done}\nv_mov_b32 v15, s17\nds_write_b32 v14, v15 offset:{F_LAND}')
            a(f'buffer_load_dwordx4 v{22 + (i&1)}, s[8:11], s13 offen {vflags} lds')
    a('L_ld_fin:')
    for j in range(NF - done - 1, -1, -1):
        assert 8 * j < 64
        a(f's_add_u32 s17, s25, {NF - j}\nv_mov_b32 v15, s17\ns_waitcnt vmcnt({8*j})\nds_write_b32 v14, v15 offset:{F_LAND}')
    if stamps:
        a('s_mov_b32 s93, s25')
    if stamps:
        stamp(1)
        a('s_load_dwordx2 s[46:47], s[0:1], 96\ns_waitcnt lgkmcnt(0)')
        srd(52, 46, W_STAMP + 0x40000)
        a(f'v_lshlrev_b32 v31, 2, v0\ns_lshl_b32 s67, s2, 8\ns_add_u32 s67, s67, {W_STAMP + 0x20000}')
        if store_stamps:
            a('buffer_store_dword v30, v31, s[52:55], s67 offen')
        a('s_branch L_stamp_out')
    a('s_endpgm')

    P = 16
    FR = 48
    SEL = 80
    AT = 88
    DT = 96
    OA = 100
    KA = OA
    VA = 108
    VFL, VM, VL, VW, VXB = 1, 110, 111, 2, 3
    T0 = 4
    YA = 112
    TAG = 's64'

    def timeout():
        a('s_sub_u32 s66, s66, 1\ns_cbranch_scc1 L_end')

    def wait_flags(off, n, slp=0):
        l = lab('wf')
        ok = lab('wfok')
        a(f'{l}:')
        if n == 1:
            a(f'ds_read_b32 v{T0}, v{VFL} offset:{off}\ns_waitcnt lgkmcnt(0)')
        else:
            a(f'ds_read_b128 v[{T0}:{T0+3}], v{VFL} offset:{off}\ns_waitcnt lgkmcnt(0)')
            a(f'v_min3_u32 v{T0}, v{T0}, v{T0+1}, v{T0+2}')
            if n == 4:
                a(f'v_min_u32 v{T0}, v{T0}, v{T0+3}')
        a(f'v_readfirstlane_b32 s67, v{T0}\ns_cmp_lg_u32 s67, 0\ns_cbranch_scc1 {ok}')
        timeout()
        if slp:
            a(f's_sleep {slp}')
        a(f's_branch {l}\n{ok}:')

    def set_flag(off):
        a(f'ds_write_b32 v15, v14 offset:{off}')

    def wait_tile(t_const, slp):
        l = lab('wt')
        ok = lab('wtok')
        a(f's_add_u32 s67, s23, {t_const}\ns_cmp_gt_i32 s65, s67\ns_cbranch_scc1 {ok}')
        a(f'{l}:')
        a(f'ds_read_b32 v{T0}, v{VFL} offset:{F_LAND}\ns_waitcnt lgkmcnt(0)')
        a(f'v_readfirstlane_b32 s65, v{T0}\ns_cmp_gt_i32 s65, s67\ns_cbranch_scc1 {ok}')
        timeout()
        if slp:
            a(f's_sleep {slp}')
        a(f's_branch {l}\n{ok}:')

    def reduce32(op, t, u):
        for r in (8, 4, 2, 1):
            a(f'v_{op}_f32_dpp v{t}, v{t}, v{t} row_ror:{r} row_mask:0xf bank_mask:0xf')
        a(f'v_mov_b32 v{u}, v{t}\nv_permlane16_swap_b32 v{t}, v{u}\nv_{op}_f32 v{t}, v{t}, v{u}')

    def reduce_rows(op, t, u):
        a(f'v_mov_b32 v{u}, v{t}\nv_permlane16_swap_b32 v{t}, v{u}\nv_{op}_f32 v{t}, v{t}, v{u}')
        a(f'v_mov_b32 v{u}, v{t}\nv_permlane32_swap_b32 v{t}, v{u}\nv_{op}_f32 v{t}, v{t}, v{u}')

    def rnd(r):
        a(f'v_cvt_pk_bf16_f32 v{r}, v{r}, v{r}\nv_lshlrev_b32 v{r}, 16, v{r}')

    def layernorm(raw, f, vmask):
        t = T0
        for i in range(8):
            a(f'v_lshlrev_b32 v{f+2*i}, 16, v{raw+i}\nv_and_b32 v{f+2*i+1}, 0xffff0000, v{raw+i}')
        pk = lambda r: f'v[{r}:{r+1}]'
        a(f'v_pk_add_f32 {pk(t)}, {pk(f)}, {pk(f+2)}\nv_pk_add_f32 {pk(t+2)}, {pk(f+4)}, {pk(f+6)}')
        a(f'v_pk_add_f32 {pk(t)}, {pk(t)}, {pk(f+8)}\nv_pk_add_f32 {pk(t+2)}, {pk(t+2)}, {pk(f+10)}')
        a(f'v_pk_add_f32 {pk(t)}, {pk(t)}, {pk(f+12)}\nv_pk_add_f32 {pk(t+2)}, {pk(t+2)}, {pk(f+14)}')
        a(f'v_pk_add_f32 {pk(t)}, {pk(t)}, {pk(t+2)}\nv_add_f32 v{t}, v{t}, v{t+1}\nv_mul_f32 v{t}, v{t}, v{vmask}')
        reduce32('add', t, t + 1)
        a(f'v_mul_f32 v{t+2}, {fb(1/448)}, v{t}')
        neg = 'op_sel_hi:[1,0] neg_lo:[0,1] neg_hi:[0,1]'
        for i in range(8):
            d = t + 4 + 2 * (i & 1)
            a(f'v_pk_add_f32 {pk(d)}, {pk(f+2*i)}, {pk(t+2)} {neg}')
            if i == 0:
                a(f'v_pk_mul_f32 {pk(t)}, {pk(d)}, {pk(d)}')
            else:
                a(f'v_pk_fma_f32 {pk(t)}, {pk(d)}, {pk(d)}, {pk(t)}')
        a(f'v_add_f32 v{t}, v{t}, v{t+1}\nv_mul_f32 v{t}, v{t}, v{vmask}')
        rnd(t + 2)
        reduce32('add', t, t + 1)
        a(f'v_mul_f32 v{t}, {fb(1/448)}, v{t}')
        rnd(t)
        a(f'v_add_f32 v{t}, {fb(1e-5)}, v{t}')
        rnd(t)
        a(f'v_sqrt_f32 v{t}, v{t}')
        for i in range(8):
            a(f'v_pk_add_f32 {pk(f+2*i)}, {pk(f+2*i)}, {pk(t+2)} {neg}')
        rnd(t)
        a(f'v_rcp_f32 v{t}, v{t}')
        for i in range(8):
            a(f'v_cvt_pk_bf16_f32 v{raw+i}, v{f+2*i}, v{f+2*i+1}')
        for i in range(8):
            a(f'v_lshlrev_b32 v{f+2*i}, 16, v{raw+i}\nv_and_b32 v{f+2*i+1}, 0xffff0000, v{raw+i}')
        for i in range(8):
            a(f'v_pk_mul_f32 {pk(f+2*i)}, {pk(f+2*i)}, {pk(t)} op_sel_hi:[1,0]')
        for i in range(8):
            a(f'v_cvt_pk_bf16_f32 v{raw+i}, v{f+2*i}, v{f+2*i+1}')

    def slab_mfma(act, abase):
        a(f'v_lshrrev_b32 v{T0}, 4, v0\nv_and_b32 v{T0+1}, 15, v0')
        a(f'v_lshlrev_b32 v{T0+2}, 8, v{T0}\nv_lshl_add_u32 v{T0+2}, v{T0+1}, 3, v{T0+2}\nv_add_u32 v{T0+2}, {STG}, v{T0+2}')
        a(f'v_and_b32 v{T0+1}, 7, v0\nv_mul_u32_u24 v{T0+1}, {XS}, v{T0+1}\nv_lshl_add_u32 v{T0+1}, v{T0}, 4, v{T0+1}\nv_add_u32 v{T0+1}, {act}, v{T0+1}')

        def rd(ks):
            a(f'ds_read_b64_tr_b16 {ar(abase+4*ks,2)}, v{T0+2} offset:{ks*1024}')
            a(f'ds_read_b64_tr_b16 {ar(abase+4*ks+2,2)}, v{T0+2} offset:{ks*1024+128}')
            a(f'ds_read_b128 {ar(abase+56+4*ks,4)}, v{T0+1} offset:{ks*64}')
        for ks in range(4):
            rd(ks)
        for ks in range(14):
            if ks + 4 < 14:
                rd(ks + 4)
            left = min(13 - ks, 4)
            a(f's_waitcnt lgkmcnt({3*left})')
            c = '0' if ks == 0 else vr(DT, 4)
            a(f'v_mfma_f32_16x16x32_bf16 {vr(DT,4)}, {ar(abase+4*ks,4)}, {ar(abase+56+4*ks,4)}, {c}')

    VTW = 13 + 0

    def tag_setup():
        a(f's_mul_i32 s34, {TAG}, 0x3d2f1b65')
        a('s_mov_b32 s8, 0x07060500\ns_mov_b32 s9, 0x07060501\ns_mov_b32 s10, 0x07060502\ns_mov_b32 s11, 0x07060503')
        a('s_mov_b32 s12, 0x0c0c0400\ns_mov_b32 s13, 0x04000c0c')

    def tag_put(r, vw):
        for j in range(4):
            a(f'v_perm_b32 v{r+j}, v{r+j}, v{vw}, s{8+j}')

    def tag_get(dst, r, t):
        a(f'v_perm_b32 v{dst}, v{r+1}, v{r}, s12\nv_perm_b32 v{t}, v{r+3}, v{r+2}, s13\nv_or_b32 v{dst}, v{dst}, v{t}')

    def build_a(dst, src, e):
        for i in range(4):
            a(f'v_perm_b32 v{dst+i}, v{src}, v{src}, v{SEL+4*e+i}')

    XR = P
    XF = P + 8
    VMK = P + 24
    VXO = P + 25

    def common_ids():
        a('s_lshl_b32 s73, s21, 3\ns_add_u32 s73, s73, s20\ns_lshl2_add_u32 s74, s73, s22\ns_lshl2_add_u32 s79, s20, s22')
        a('s_mov_b32 s65, 0\ns_mov_b32 s66, 0x100000')
        a(f'v_mov_b32 v{VFL}, {FLG}\nv_mov_b32 v14, 1')

    def publish_slab(shift, sbase, wbase):
        a(f'v_lshrrev_b32 v8, 4, v0\nv_and_b32 v9, 15, v0\nv_lshlrev_b32 v10, {shift}, v9\nv_lshl_add_u32 v10, v8, 4, v10')
        a(f'v_cmp_gt_u32 vcc, 8, v9\nv_mov_b32 v9, 0x1000000\nv_cndmask_b32 v10, v9, v10, vcc')
        a(f's_lshl_b32 s67, {sbase}, 1\ns_add_u32 s67, s67, {wbase}')
        a(f'v_mov_b32 v5, {TAG}\nv_mov_b32 v7, {TAG}')
        a(f'v_cvt_pk_bf16_f32 v4, v{DT}, v{DT+1}\nv_cvt_pk_bf16_f32 v6, v{DT+2}, v{DT+3}')
        a('buffer_store_dwordx4 v[4:7], v10, s[52:55], s67 offen sc1')

    fin = 'L_stamp_out' if stamps else 'L_end'
    a('L_helper:')
    if prefetch and swarm:
        pass
    elif prefetch and pfsplit:
        a('s_getpc_b64 s[26:27]\nv_and_b32 v4, 7, v0\ns_lshl_b32 s67, s19, 3\nv_add_u32 v4, s67, v4\nv_lshlrev_b32 v4, 7, v4')
        a(f'v_min_u32 v5, L_end-L_helper-64, v4\nglobal_load_dword v{P}, v5, s[26:27]')
    elif prefetch:
        a('s_getpc_b64 s[26:27]\nv_lshlrev_b32 v4, 7, v0')
        for j in range(3):
            a(f'v_min_u32 v5, L_end-L_helper-64, v4\nglobal_load_dword v{P+j}, v5, s[26:27]\nv_add_u32 v4, 0x2000, v4')
    a('s_load_dwordx4 s[28:31], s[0:1], 24\ns_load_dwordx2 s[46:47], s[0:1], 96\ns_load_dwordx2 s[24:25], s[0:1], 0')
    a('s_load_dwordx8 s[36:43], s[0:1], 48\ns_load_dwordx2 s[44:45], s[0:1], 80')
    common_ids()
    a('v_lshrrev_b32 v10, 1, v0\nv_and_b32 v11, 1, v0\nv_lshlrev_b32 v11, 4, v11\nv_lshl_add_u32 v12, v10, 13, v11')
    a(f's_add_u32 s67, s19, {qrot}\ns_and_b32 s67, s67, 31\ns_lshl_b32 s68, s33, 5\ns_add_u32 s68, s68, s67\ns_lshl_b32 s68, s68, 5')
    a('s_waitcnt lgkmcnt(0)')
    if stamps:
        a('s_mov_b32 s80, s98')
    a('s_load_dword s64, s[46:47], 0')
    srd(56, 28, 448 * 8192)
    if 'q' in touch:
        a('v_lshrrev_b32 v4, 3, v0\nv_and_b32 v5, 7, v0\nv_lshlrev_b32 v4, 13, v4\nv_lshl_add_u32 v4, v5, 7, v4')
        a('s_mul_i32 s67, s19, 14*8192\ns_lshl_b32 s75, s33, 10\ns_add_u32 s67, s67, s75\ns_add_u32 s75, s67, 8*8192')
        a('v_cmp_gt_u32 vcc, 48, v0\nv_mov_b32 v5, 0x1000000\nv_cndmask_b32 v5, v5, v4, vcc')
        a(f'buffer_load_dword v30, v4, s[56:59], s67 offen {tflags}\nbuffer_load_dword v31, v5, s[56:59], s75 offen {tflags}')

    def pf_and_barrier():
        if prefetch and swarm:
            a('s_getpc_b64 s[26:27]\nL_pf:\ns_lshl_b32 s75, s19, 10\ns_min_u32 s75, s75, L_end-L_pf-1024\ns_add_u32 s26, s26, s75\ns_addc_u32 s27, s27, 0')
            for j in range(8):
                a(f's_load_dword s{8+j}, s[26:27], {j*128}')
        a('s_barrier')
    if 'noslab' in diag or slabd >= 14 or slab_after is not None:
        pf_and_barrier()
    if slab_after is not None:
        a(f's_waitcnt lgkmcnt(0)\ns_mov_b32 s23, {slab_after}')
        wait_tile(0, sleep)
    for j in range(0 if 'noslab' in diag else 14):
        a(f's_mov_b32 m0, {STG + j*1024}\ns_add_u32 s67, s68, {j << 18}')
        if j == slabd and slab_after is None:
            pf_and_barrier()
        if j >= slabd:
            a(f's_waitcnt vmcnt({slabd-1})')
        a(f'buffer_load_dwordx4 v12, s[56:59], s67 offen {qflags} lds')
    srd(52, 46, W_STAMP + 0x40000 if stamps else W_END)
    def clears():
        a('v_lshlrev_b32 v10, 4, v0\nv_mov_b32 v4, -1\nv_mov_b32 v5, -1\nv_mov_b32 v6, -1\nv_mov_b32 v7, -1')
        a(f's_lshl_b32 s75, s74, 11\ns_add_u32 s67, s75, {W_OP}\ns_add_u32 s75, s75, {W_YP}')
        cf = '' if 'clrplain' in diag else ('nt' if 'clrnt' in diag else ('sc0 sc1' if 'clrsys' in diag else 'sc1'))
        if 'clr1' in diag:
            a(f'buffer_store_dwordx4 v[4:7], v10, s[52:55], s67 offen {cf}')
        elif 'clrhalf' in diag:
            a('s_bitcmp1_b32 s2, 4\ns_cbranch_scc1 L_clrskip')
            for o in (0, 1024, 2048, 3072):
                a(f'buffer_store_dwordx4 v[4:7], v10, s[52:55], s67 offen offset:{o} {cf}\nbuffer_store_dwordx4 v[4:7], v10, s[52:55], s75 offen offset:{o} {cf}')
            a('L_clrskip:')
        elif 'noclear' not in diag:
            a(f'buffer_store_dwordx4 v[4:7], v10, s[52:55], s67 offen {cf}\nbuffer_store_dwordx4 v[4:7], v10, s[52:55], s67 offen offset:1024 {cf}')
            a(f'buffer_store_dwordx4 v[4:7], v10, s[52:55], s75 offen {cf}\nbuffer_store_dwordx4 v[4:7], v10, s[52:55], s75 offen offset:1024 {cf}')

    def warms():
        if warm:
            a('s_lshl_b32 s67, s74, 19\ns_add_u32 s6, s6, s67\ns_addc_u32 s7, s7, 0\nv_mov_b32 v13, 0')
            a('s_mul_i32 s67, s79, 128*896\ns_add_u32 s30, s30, s67\ns_addc_u32 s31, s31, 0')
            a('s_mul_i32 s67, s79, 56*896\ns_add_u32 s40, s40, s67\ns_addc_u32 s41, s41, 0')
            if swarm:
                for j, p in enumerate((6, 30, 40, 44, 36, 38, 42)):
                    a(f's_load_dword s{8+j}, s[{p}:{p+1}], 0')
                return 0
            for j, p in enumerate((6, 30, 40, 44)):
                a(f'global_load_dword v{P+4+j}, v13, s[{p}:{p+1}]')
            return 4
        return 0
    nwarm = 0
    if not lateclear:
        clears()
    if not lateclear and not swarm:
        nwarm = warms()
    a(f's_waitcnt vmcnt({nwarm}) lgkmcnt(0)')
    a('s_add_u32 s64, s64, 1')
    stamp(1)
    wait_flags(F_X, 4)
    stamp(2)
    slab_mfma(XN, 0)
    if 'nopub' not in diag:
        if qline:
            a('s_lshl_b32 s68, s68, 3')
        publish_slab(6 if qline else 14, 's68', W_Q)
    stamp(3)
    def hidden():
        a(f's_cmp_ge_u32 s32, {0 if "noh" in diag else 14}\ns_cbranch_scc1 L_noh')
        srd(56, 36, 448 * 3584)
        a('v_lshrrev_b32 v10, 1, v0\nv_and_b32 v11, 1, v0\nv_mul_u32_u24 v10, 3584, v10\nv_lshl_add_u32 v10, v11, 4, v10')
        a('s_mul_i32 s77, s33, 14\ns_add_u32 s77, s77, s32\ns_lshl_b32 s77, s77, 5')
        for j in range(14):
            a(f's_mov_b32 m0, {STG + j*1024}\ns_add_u32 s67, s77, {j*32*3584}')
            if j >= slabd1:
                a(f's_waitcnt vmcnt({slabd1-1})')
            a(f'buffer_load_dwordx4 v10, s[56:59], s67 offen {qflags} lds')
        srd(60, 38, 3584)
        a(f'v_lshrrev_b32 v10, 4, v0\nv_lshlrev_b32 v10, 3, v10')
        a(f'buffer_load_dwordx2 v[{AT}:{AT+1}], v10, s[60:63], s77 offen')
        wait_flags(F_Y, 4, sleep)
        a('s_waitcnt vmcnt(0)')
        slab_mfma(YN, 0)
        a(f'v_lshlrev_b32 v8, 16, v{AT}\nv_and_b32 v9, 0xffff0000, v{AT}\nv_lshlrev_b32 v10, 16, v{AT+1}\nv_and_b32 v11, 0xffff0000, v{AT+1}')
        c0 = -2 * 0.7978845608028654 * LOG2E
        a(f's_mov_b32 s75, {fb(c0 * 0.044715)}\nv_mov_b32 v12, {fb(c0)}')
        for r in range(4):
            rnd(DT + r)
        for r in range(4):
            a(f'v_add_f32 v{DT+r}, v{DT+r}, v{8+r}')
        for r in range(4):
            rnd(DT + r)
        for r in range(4):
            a(f'v_mul_f32 v{8+r}, v{DT+r}, v{DT+r}\nv_fma_f32 v{8+r}, v{8+r}, s75, v12\nv_mul_f32 v{8+r}, v{8+r}, v{DT+r}')
        for r in range(4):
            a(f'v_exp_f32 v{8+r}, v{8+r}')
        for r in range(4):
            a(f'v_add_f32 v{8+r}, 1.0, v{8+r}')
        for r in range(4):
            a(f'v_rcp_f32 v{8+r}, v{8+r}')
        for r in range(4):
            a(f'v_mul_f32 v{DT+r}, v{DT+r}, v{8+r}')
        publish_slab(13, 's77', W_H)
        a('L_noh:')

    if not hlate:
        hidden()
    if '1' in touch:
        srd(56, 36, 448 * 3584)
        a('v_mul_u32_u24 v4, 52429, v0\nv_lshrrev_b32 v4, 18, v4\nv_mul_u32_u24 v5, 5, v4\nv_sub_u32 v5, v0, v5')
        a('v_mul_u32_u24 v6, 3584, v4\nv_min_u32 v5, 3, v5\nv_cmp_eq_u32 vcc, v5, v5')
        a('v_mul_u32_u24 v4, 52429, v0\nv_lshrrev_b32 v4, 18, v4\nv_mul_u32_u24 v5, 5, v4\nv_sub_u32 v5, v0, v5\nv_lshlrev_b32 v5, 7, v5\nv_min_u32 v5, 444, v5\nv_add_u32 v4, v6, v5')
        a('s_mul_i32 s67, s19, 14*3584\ns_mul_i32 s75, s33, 448\ns_add_u32 s67, s67, s75\ns_add_u32 s75, s67, 12*3584')
        a('v_cmp_gt_u32 vcc, 60, v0\nv_mov_b32 v7, 0x1000000\nv_cndmask_b32 v5, v7, v4, vcc\nv_cmp_gt_u32 vcc, 10, v0\nv_cndmask_b32 v6, v7, v4, vcc')
        a(f'buffer_load_dword v30, v5, s[56:59], s67 offen {tflags}\nbuffer_load_dword v31, v6, s[56:59], s75 offen {tflags}')
        if tspace:
            a('s_waitcnt vmcnt(0)')
    if '2' in touch:
        srd(56, 40, 1792 * 896)
        a('s_mul_i32 s67, s79, 56*896\ns_mul_i32 s75, s21, 49*128\ns_add_u32 s67, s67, s75')
        a('v_lshlrev_b32 v4, 7, v0\nv_cmp_gt_u32 vcc, 49, v0\nv_mov_b32 v7, 0x1000000\nv_cndmask_b32 v4, v7, v4, vcc')
        a(f'buffer_load_dword v29, v4, s[56:59], s67 offen {tflags}')
    if 'o' in touch:
        a('s_mov_b32 s16, s30\ns_mov_b32 s17, s31')
    if swarm:
        warms()
    if qline:
        a(f's_lshl_b32 s67, s21, 6\ns_lshl_b32 s75, s20, 14\ns_add_u32 s76, s67, s75\ns_add_u32 s76, s76, {W_Q}')
        a(f'v_lshrrev_b32 v12, 1, v0\nv_lshlrev_b32 v12, 9, v12\nv_and_b32 v11, 1, v0\nv_lshl_add_u32 v12, v11, 5, v12\ns_mov_b32 s23, {qat - qstep}')
    else:
        a(f's_lshl_b32 s67, s21, 14\ns_lshl_b32 s75, s20, 11\ns_add_u32 s76, s67, s75\ns_add_u32 s76, s76, {W_Q}')
        a(f'v_lshlrev_b32 v12, 5, v0\ns_mov_b32 s23, {qat - qstep}')
    a('L_qpoll:')
    if qat:
        a(f's_add_u32 s23, s23, {qstep}\ns_min_u32 s23, s23, {31 - lag}')
        wait_tile(0, sleep)
    if 'noqld' not in diag:
        a(f'buffer_load_dwordx4 v[16:19], v12, s[52:55], s76 offen sc1\nbuffer_load_dwordx4 v[8:11], v12, s[52:55], s76 offen offset:16 sc1')
    timeout()
    a('s_waitcnt vmcnt(0)')
    a(f'v_xor_b32 v17, {TAG}, v17\nv_xor_b32 v19, {TAG}, v19\nv_xor_b32 v9, {TAG}, v9\nv_xor_b32 v11, {TAG}, v11')
    a('v_or3_b32 v5, v17, v19, v9\nv_or_b32 v5, v5, v11\nv_cmp_ne_u32 vcc, 0, v5')
    if 'nopoll' not in diag:
        if qsleep:
            a(f's_cbranch_vccz L_qok\ns_sleep {qsleep}\ns_branch L_qpoll\nL_qok:')
        else:
            a('s_cbranch_vccnz L_qpoll')
    a(f'v_mov_b32 v4, v16\nv_mov_b32 v5, v18\nv_mov_b32 v6, v8\nv_mov_b32 v7, v10\nv_lshlrev_b32 v12, 4, v0')
    a(f'v_add_u32 v13, {QL}, v12\nds_write_b128 v13, v[4:7]')
    a(f'ds_write_b32 v{VFL}, v14 offset:{F_Q}')
    stamp(4)
    if lateclear:
        if 'clr' in diag:
            clears()
        if rwarm is not None:
            a(f'v_and_b32 v10, 15, v0\nv_lshlrev_b32 v10, 7, v10\ns_lshl_b32 s75, s74, 11\nv_add_u32 v10, s75, v10')
            a(f'v_lshrrev_b32 v11, 4, v0\nv_mov_b32 v4, {W_OP}\nv_mov_b32 v5, {W_YP}\nv_cmp_eq_u32 vcc, 1, v11\nv_cndmask_b32 v4, v4, v5, vcc')
            if rwall:
                a(f'v_mov_b32 v5, {W_SC}\nv_cmp_eq_u32 vcc, 2, v11\nv_cndmask_b32 v4, v4, v5, vcc')
                a(f'v_add_u32 v10, v10, v4\ns_lshl_b32 s75, s74, 7\ns_add_u32 s75, s75, {W_ST}\nv_mov_b32 v5, s75\nv_cmp_eq_u32 vcc, 3, v11\nv_cndmask_b32 v10, v10, v5, vcc')
            else:
                a(f'v_add_u32 v10, v10, v4\nv_mov_b32 v5, 0x1000000\nv_cmp_{"ne" if rwy else "lt"}_u32 vcc, 1, v11\nv_cndmask_b32 v10, v10, v5, vcc')
            a(f'buffer_load_dword v29, v10, s[52:55], 0 offen {rwarm}')
        if not swarm:
            warms()
    a(f's_cmp_lg_u32 s22, 0\ns_cbranch_scc1 L_noct\nv_mov_b32 v12, 0\ns_mul_i32 s67, s73, {ctstride}\ns_add_u32 s67, s67, {W_CT}')
    a('s_mov_b64 exec, 1\nbuffer_store_dword v12, off, s[52:55], s67 sc1\ns_mov_b64 exec, -1\nL_noct:')
    if hlate:
        hidden()
    stamp(5)
    VR3, VR4 = P + 16, P + 17
    srd(48, 24, 7168)
    srd(56, 42, 896)
    a('v_and_b32 v11, 3, v0\nv_bfe_u32 v10, v0, 2, 2\nv_lshl_add_u32 v10, v11, 2, v10\nv_lshlrev_b32 v10, 1, v10')
    a('s_lshl_b32 s75, s79, 5\ns_mul_i32 s78, s21, 896\ns_add_u32 s78, s78, s75')
    a('buffer_load_ushort v8, v10, s[48:51], s78 offen\nbuffer_load_ushort v9, v10, s[56:59], s75 offen')
    a(f'v_mov_b32 v13, 0x1000000\nv_cmp_gt_u32 vcc, 16, v0\nv_cndmask_b32 v{VR4}, v13, v10, vcc')
    a(f'v_lshrrev_b32 v10, 2, v0\nv_lshlrev_b32 v10, 11, v10\nv_lshl_add_u32 v{VR3}, v11, 4, v10')
    a(f's_lshl_b32 s77, s21, 16\ns_lshl_b32 s67, s79, 6\ns_add_u32 s77, s77, s67\ns_add_u32 s77, s77, {W_YP}\ns_add_u32 s72, s77, 0x8000')
    a(f's_waitcnt vmcnt(0)\nv_lshlrev_b32 v8, 16, v8\nv_lshlrev_b32 v9, 16, v9\nv_add_f32 v{VXB}, v8, v9')
    if 'o' in touch:
        a(f's_mov_b32 s23, {wo_at}')
        wait_tile(0, 4)
        srd(56, 16, 4096 * 896)
        a('s_lshl_b32 s67, s20, 3\ns_add_u32 s67, s67, s22\ns_mul_i32 s67, s67, 64*896\ns_mul_i32 s75, s21, 56*128\ns_add_u32 s67, s67, s75\ns_add_u32 s75, s67, 256*896')
        a('v_lshlrev_b32 v4, 7, v0\nv_cmp_gt_u32 vcc, 56, v0\nv_cndmask_b32 v4, v13, v4, vcc')
        if tspace:
            a('v_cmp_gt_u32 vcc, 28, v0\nv_cndmask_b32 v4, v13, v4, vcc')
            for so, o in (('s67', 0), ('s67', 28 * 128), ('s75', 0), ('s75', 28 * 128)):
                a(f'buffer_load_dword v30, v4, s[56:59], {so} offen offset:{o} {tflags}\ns_waitcnt vmcnt(0)')
        else:
            a(f'buffer_load_dword v30, v4, s[56:59], s67 offen {tflags}\nbuffer_load_dword v31, v4, s[56:59], s75 offen {tflags}')
    wait_flags(F_M, 4, 4)
    a(f'v_lshlrev_b32 v12, 4, v0\nv_add_u32 v11, {SC}, v12')
    a(f'v_cmp_gt_u32 vcc, {4*S - 64*(NT-1)}, v0\nv_cndmask_b32 v28, v13, v12, vcc')
    for j in range(NT):
        a(f'ds_read_b128 v[{20+4*j}:{23+4*j}], v11 offset:{j*1024}')
    a(f's_lshl_b32 s75, s74, 11\ns_add_u32 s75, s75, {W_SC}\ns_waitcnt lgkmcnt(0)')
    for j in range(NT):
        a(f'buffer_store_dwordx4 v[{20+4*j}:{23+4*j}], v{28 if j == NT-1 else 12}, s[52:55], s75 offen offset:{j*1024} sc1')
    wait_flags(F_L, 4, sleep)
    a(f'v_bfe_u32 v10, v0, 3, 1\nv_lshl_add_u32 v10, v10, 2, v{VFL}')
    a(f'ds_read2_b32 v[4:5], v10 offset0:{LS//4} offset1:{LS//4+2}\nds_read2_b32 v[6:7], v10 offset0:{LS//4+4} offset1:{LS//4+6}')
    a(f'ds_read2_b32 v[16:17], v10 offset0:{MX//4} offset1:{MX//4+2}\nds_read2_b32 v[18:19], v10 offset0:{MX//4+4} offset1:{MX//4+6}')
    a(f'v_and_b32 v8, 0x37, v0\nv_cmp_eq_u32 vcc, 0, v8\nv_lshlrev_b32 v8, 1, v0\nv_cndmask_b32 v8, v13, v8, vcc')
    a(f's_lshl_b32 s67, s74, 7\ns_add_u32 s67, s67, {W_ST}\ns_waitcnt lgkmcnt(0)')
    a(f'v_add_f32 v4, v4, v5\nv_add_f32 v6, v6, v7\nv_add_f32 v6, v4, v6')
    a(f'v_max3_f32 v4, v16, v17, v18\nv_max_f32 v4, v4, v19\nv_mov_b32 v5, {TAG}\nv_mov_b32 v7, {TAG}')
    a('s_waitcnt vmcnt(0)\nbuffer_store_dwordx4 v[4:7], v8, s[52:55], s67 offen sc1')
    stamp(6)
    a(f's_lshl_b32 s67, s73, 9\ns_add_u32 s67, s67, {W_ST}\ns_add_u32 s26, s46, s67\ns_addc_u32 s27, s47, 0')
    if stat_at:
        a(f's_mov_b32 s23, {stat_at}')
        wait_tile(0, 4)
    a('L_stp:')
    for q in range(4):
        a(f's_load_dwordx8 s[{(4,12,36,56)[q]}:{(4,12,36,56)[q]+7}], s[26:27], {q*128} glc')
    timeout()
    a('s_waitcnt lgkmcnt(0)')
    a(f's_xor_b32 s67, s5, {TAG}')
    for q in range(4):
        for o in (1, 3, 5, 7):
            if (q, o) != (0, 1):
                a(f's_xor_b32 s75, s{(4,12,36,56)[q]+o}, {TAG}\ns_or_b32 s67, s67, s75')
    a('s_cmp_eq_u32 s67, 0\ns_cbranch_scc1 L_stp_ok\ns_sleep 8\ns_branch L_stp\nL_stp_ok:')
    a(f's_lshl_b32 s67, s73, 13\ns_add_u32 s67, s67, {W_SC}\ns_add_u32 s72, s67, 4096')
    pieces = [q for q in range(8) if (q & 1) < NT]
    for q in pieces:
        a(f'buffer_load_dwordx4 {vr(FR+4*q,4)}, v{28 if (q&1) == NT-1 else 12}, s[52:55], {"s67" if q < 4 else "s72"} offen offset:{(q&3)*1024} sc1')
    a(f's_mov_b32 s75, {fb(LOG2E/16)}')
    for u in range(2):
        for q in range(4):
            a(f'v_mov_b32 v{4+q}, s{(4,12,36,56)[q]+4*u}\nv_mov_b32 v{8+q}, s{(4,12,36,56)[q]+4*u+2}')
        a(f'v_max3_f32 v{16+u}, v4, v5, v6\nv_max_f32 v{16+u}, v{16+u}, v7\nv_mul_f32 v{22+u}, {fb(-LOG2E/16)}, v{16+u}')
        for q in range(4):
            a(f'v_fma_f32 v{4+q}, v{4+q}, s75, v{22+u}')
        for q in range(4):
            a(f'v_exp_f32 v{4+q}, v{4+q}')
        a(f'v_mul_f32 v8, v8, v4\nv_fmac_f32 v8, v9, v5\nv_fmac_f32 v8, v10, v6\nv_fmac_f32 v8, v11, v7\nv_rcp_f32 v{18+u}, v8')
        a(f'v_mov_b32 v{20+u}, v4')
        for q in range(1, 4):
            a(f's_cmp_eq_u32 s22, {q}\ns_cselect_b64 vcc, -1, 0\nv_cndmask_b32 v{20+u}, v{20+u}, v{4+q}, vcc')
    a(f'ds_write_b32 v{VFL}, v20 offset:{FO}\nds_write_b32 v{VFL}, v21 offset:{FO+4}\nds_write_b32 v{VFL}, v18 offset:{FO+8}\nds_write_b32 v{VFL}, v19 offset:{FO+12}')
    a(f'v_add_u32 v11, {PT}, v12')
    for n_, q in enumerate(pieces):
        a(f's_waitcnt vmcnt({len(pieces)-1-n_})')
        for j in range(4):
            r = FR + 4 * q + j
            a(f'v_lshlrev_b32 v{4+2*(j&1)}, 16, v{r}\nv_and_b32 v{5+2*(j&1)}, 0xffff0000, v{r}')
            a(f'v_fma_f32 v{4+2*(j&1)}, v{4+2*(j&1)}, s75, v{22+(j>>1)}\nv_fma_f32 v{5+2*(j&1)}, v{5+2*(j&1)}, s75, v{22+(j>>1)}')
            a(f'v_exp_f32 v{4+2*(j&1)}, v{4+2*(j&1)}\nv_exp_f32 v{5+2*(j&1)}, v{5+2*(j&1)}')
            a(f'v_cvt_pk_bf16_f32 v{r}, v{4+2*(j&1)}, v{5+2*(j&1)}')
        a(f'ds_write_b128 v11, {vr(FR+4*q,4)} offset:{q*1024}')
    a(f'ds_write_b32 v{VFL}, v14 offset:{F_P}')
    stamp(7)
    srd(56, 44, 7168)
    a('s_add_u32 s72, s77, 0x8000')
    if owarm:
        a(f'buffer_load_ushort v29, v{VR4}, s[56:59], s78 offen sc1')
    a(f's_mul_i32 s67, s73, {ctstride}\ns_add_u32 s67, s67, {W_CT}\ns_add_u32 s26, s46, s67\ns_addc_u32 s27, s47, 0')
    a(f's_mov_b32 s23, {64 + NP - LEAD - 1}\nv_add_u32 v11, {CQ}, v{VFL}\ns_mov_b32 s24, 0')
    a('L_claim:')
    a(f's_cmp_lt_i32 s24, {NCH - T1}\ns_cselect_b32 s25, 2, 1')
    if T2 < NCH:
        a(f's_cmp_lt_i32 s24, {NCH - T2}\ns_cselect_b32 s25, 4, s25')
    wait_tile(0, sleep)
    if stamps:
        a('s_memrealtime s[96:97]\ns_waitcnt lgkmcnt(0)')
    a('s_mov_b32 s24, s25\ns_atomic_add s24, s[26:27], 0 glc\ns_waitcnt lgkmcnt(0)')
    if stamps:
        a('s_memrealtime s[98:99]\ns_waitcnt lgkmcnt(0)\ns_sub_u32 s96, s98, s96\ns_max_u32 s92, s92, s96\ns_add_u32 s93, s93, s96\ns_add_u32 s94, s94, 1')
    a('L_claim_put:')
    a(f's_add_u32 s24, s24, 1\ns_cmp_gt_u32 s24, {NCH}\ns_cbranch_scc1 L_claim_end\nv_mov_b32 v4, s24\nds_write_b32 v11, v4')
    a('v_add_u32 v11, 4, v11\ns_add_u32 s23, s23, 1\ns_sub_u32 s25, s25, 1\ns_cmp_lg_u32 s25, 0\ns_cbranch_scc1 L_claim_put')
    a(f's_cmp_lt_u32 s24, {NCH}\ns_cbranch_scc1 L_claim')
    a('L_claim_end:')
    a(f's_add_u32 s24, s23, {LEAD + 1}\nv_mov_b32 v4, s24')
    for j in range(4):
        a(f'ds_write_b32 v11, v4 offset:{4*j}')
    stamp(8)
    if ylate:
        a(f'v_lshlrev_b32 v10, 7, v0\nv_cmp_gt_u32 vcc, 14, v0\nv_mov_b32 v5, 0x1000000\nv_cndmask_b32 v10, v5, v10, vcc\ns_lshl_b32 s75, s74, 11\ns_add_u32 s75, s75, {W_YP}')
        if olate:
            a(f'v_lshlrev_b32 v11, 7, v0\nv_subrev_u32 v11, {W_YP - W_OP + 16*128}, v11\nv_lshrrev_b32 v12, 4, v0\nv_cmp_eq_u32 vcc, 1, v12\nv_add_u32 v10, s75, v10\nv_add_u32 v11, s75, v11\nv_cndmask_b32 v10, v10, v11, vcc\ns_mov_b32 s75, 0')
        a('buffer_load_dword v29, v10, s[52:55], s75 offen sc1\ns_waitcnt vmcnt(0)')
    a(f's_cmp_ge_u32 s79, 28\ns_cbranch_scc1 {fin}')
    tag_setup()
    a('s_barrier')
    stamp(11)
    def look(r):
        a(f'buffer_load_dwordx4 {vr(r,4)}, v{VR3}, s[52:55], s77 offen {hl}\nbuffer_load_dwordx4 {vr(r+4,4)}, v{VR3}, s[52:55], s72 offen {hl}')

    def check(r, n):
        a(f's_waitcnt vmcnt({n+1})')
        tag_get(12, r, 13)
        a(f's_waitcnt vmcnt({n})')
        tag_get(4, r + 4, 5)
        a('v_xor_b32 v12, s34, v12\nv_xor_b32 v4, s34, v4\nv_or_b32 v12, v12, v4\nv_cmp_ne_u32 vcc, 0, v12')
    if mask2:
        a('s_mov_b64 s[14:15], -1\ns_mov_b64 s[16:17], -1')
        a('L_hop2:')
        a(f's_mov_b64 exec, s[14:15]\ns_cbranch_execz L_h2a\nbuffer_load_dwordx4 {vr(FR,4)}, v{VR3}, s[52:55], s77 offen sc1\nL_h2a:')
        a(f's_mov_b64 exec, s[16:17]\ns_cbranch_execz L_h2b\nbuffer_load_dwordx4 {vr(FR+4,4)}, v{VR3}, s[52:55], s72 offen sc1\nL_h2b:')
        a('s_mov_b64 exec, -1')
        timeout()
        a('s_waitcnt vmcnt(0)')
        tag_get(12, FR, 13)
        tag_get(4, FR + 4, 5)
        a('v_cmp_ne_u32 s[14:15], s34, v12\nv_cmp_ne_u32 s[16:17], s34, v4\ns_or_b64 vcc, s[14:15], s[16:17]\ns_cbranch_vccnz L_hop2')
        a(f'v_pk_add_f32 v[8:9], v[{FR}:{FR+1}], v[{FR+4}:{FR+5}]\nv_pk_add_f32 v[10:11], v[{FR+2}:{FR+3}], v[{FR+6}:{FR+7}]')
    elif pipe2:
        sets = [FR + 8 * j for j in range(pipe2)]
        for j in range(pipe2 - 1):
            look(sets[j])
            a(f's_sleep {h2sleep}')
        a('L_hop2:')
        for j in range(pipe2):
            look(sets[(j - 1) % pipe2])
            timeout()
            check(sets[j], 2 * (pipe2 - 1))
            a(f's_cbranch_vccz L_hop2_got{j}')
        a('s_branch L_hop2')
        for j in range(pipe2):
            a(f'L_hop2_got{j}:')
            a(f'v_pk_add_f32 v[8:9], v[{sets[j]}:{sets[j]+1}], v[{sets[j]+4}:{sets[j]+5}]\nv_pk_add_f32 v[10:11], v[{sets[j]+2}:{sets[j]+3}], v[{sets[j]+6}:{sets[j]+7}]')
            if j < pipe2 - 1:
                a('s_branch L_hop2_sum')
        a('L_hop2_sum:')
    else:
        a('L_hop2:')
        look(FR)
        timeout()
        check(FR, 0)
        if 'nowait' not in diag:
            a('s_cbranch_vccnz L_hop2')
        a(f'v_pk_add_f32 v[8:9], v[{FR}:{FR+1}], v[{FR+4}:{FR+5}]\nv_pk_add_f32 v[10:11], v[{FR+2}:{FR+3}], v[{FR+6}:{FR+7}]')
    a('v_add_f32_dpp v4, v8, v8 row_ror:8 row_mask:0xf bank_mask:0x3\nv_add_f32_dpp v5, v9, v9 row_ror:8 row_mask:0xf bank_mask:0x3')
    a('v_add_f32_dpp v4, v10, v10 row_ror:8 row_mask:0xf bank_mask:0xc\nv_add_f32_dpp v5, v11, v11 row_ror:8 row_mask:0xf bank_mask:0xc')
    a('v_add_f32_dpp v6, v4, v4 row_shl:4 row_mask:0xf bank_mask:0x5\nv_add_f32_dpp v6, v5, v5 row_shr:4 row_mask:0xf bank_mask:0xa')
    reduce_rows('add', 6, 7)
    a(f'v_add_f32 v6, v6, v{VXB}\nv_cvt_pk_bf16_f32 v6, v6, v6')
    a(f'buffer_store_short v6, v{VR4}, s[56:59], s78 offen {osc}')
    stamp(10)
    if stamps:
        a('s_waitcnt vmcnt(0)')
        stamp(9)
    if spin is not None:
        sa, sb, sk, sw = spin if isinstance(spin, tuple) else (spin, 0, 1, None)
        a(f's_sub_u32 s96, s{80+sa}, s{80+sb}\ns_mul_i32 s96, s96, {sk}')
        if sw is not None:
            a(f's_cmp_eq_u32 s2, {sw}\ns_cselect_b32 s96, s96, 0')
        a('L_spin:\ns_memrealtime s[98:99]\ns_waitcnt lgkmcnt(0)\ns_sub_u32 s97, s98, s90\ns_cmp_lt_u32 s97, s96\ns_cbranch_scc1 L_spin')
    a(f's_cmp_lg_u32 s74, 0\ns_cbranch_scc1 {fin}')
    a(f'v_mov_b32 v4, {TAG}\ns_mov_b64 exec, 1\nbuffer_store_dword v4, off, s[52:55], 0 sc1')
    a(f's_mov_b64 exec, -1\ns_branch {fin}')

    a('L_consumer:')
    a('s_load_dwordx2 s[24:25], s[0:1], 0\ns_load_dwordx2 s[46:47], s[0:1], 96')
    a('s_load_dwordx2 s[30:31], s[0:1], 32\ns_load_dwordx2 s[40:41], s[0:1], 64')
    a('s_sub_u32 s23, s3, 1')
    a(f'v_lshrrev_b32 v6, 5, v0\nv_and_b32 v7, 31, v0\ns_lshl_b32 s67, s23, 1\nv_add_u32 v6, s67, v6')
    xsh, xo2 = (4, 448) if x16 else (5, 16)
    a(f'v_mul_u32_u24 v8, 896, v6\nv_lshl_add_u32 v8, v7, {xsh}, v8\nv_cmp_gt_u32 vcc, 28, v7')
    a(f'v_mov_b32 v9, 0x10000\nv_cndmask_b32 v8, v9, v8, vcc')
    a('s_mov_b32 s50, 7168\ns_mov_b32 s51, 0x20000')
    a('s_waitcnt lgkmcnt(0)')
    if stamps:
        a('s_mov_b32 s80, s98')
    a('s_mov_b32 s48, s24\ns_mov_b32 s49, s25')
    a(f'buffer_load_dwordx4 {vr(XR,4)}, v8, s[48:51], 0 offen\nbuffer_load_dwordx4 {vr(XR+4,4)}, v8, s[48:51], 0 offen offset:{xo2}')
    a('s_load_dword s64, s[46:47], 0')
    a(f'v_cndmask_b32 v{VMK}, 0, 1.0, vcc')
    a(f'v_mul_u32_u24 v{VXO}, {XS}, v6\nv_lshl_add_u32 v{VXO}, v7, {xsh}, v{VXO}\nv_add_u32 v{VXO}, {XN}, v{VXO}')
    a('s_mov_b64 s[70:71], vcc')
    common_ids()
    a(f's_lshl_b32 s67, s23, 2\nv_add_u32 v15, s67, v{VFL}')
    srd(52, 46, W_STAMP + 0x40000 if stamps else W_END)
    a('v_and_b32 v10, 1, v0\nv_bfe_u32 v11, v0, 1, 2\nv_cmp_eq_u32 vcc, 0, v10')
    a('v_mov_b32 v12, 0x01000c0c\nv_mov_b32 v13, 0x0c0c0100\nv_cndmask_b32 v12, v12, v13, vcc')
    a('v_mov_b32 v10, 0x03020c0c\nv_mov_b32 v13, 0x0c0c0302\nv_cndmask_b32 v13, v10, v13, vcc')
    a('v_mov_b32 v10, 0x0c0c0c0c')
    for i in range(4):
        a(f'v_cmp_eq_u32 vcc, {i}, v11\nv_cndmask_b32 v{SEL+i}, v10, v12, vcc\nv_cndmask_b32 v{SEL+4+i}, v10, v13, vcc')
    a('v_lshrrev_b32 v10, 4, v0\nv_and_b32 v11, 15, v0\ns_lshl_b32 s67, s23, 13\nv_lshlrev_b32 v12, 9, v11\nv_add_u32 v12, s67, v12')
    for j in range(4):
        a(f'v_add_u32 v13, {4*j}, v10\nv_xor_b32 v13, v13, v11\nv_lshl_add_u32 v{KA+j}, v13, 4, v12\nv_add_u32 v{KA+4+j}, 0x10000, v{KA+j}')
    a(f'v_lshlrev_b32 v12, 11, v10\nv_lshl_add_u32 v12, v11, 4, v12\nv_add_u32 v{VA}, s67, v12\nv_add_u32 v{VA+1}, 0x10000, v{VA}')
    a(f'v_mov_b32 v{VM}, 0xff800000')
    a('s_barrier')
    a('s_waitcnt vmcnt(0)')
    stamp(1)
    layernorm(XR, XF, VMK)
    a('s_mov_b64 exec, s[70:71]')
    a(f'ds_write_b128 v{VXO}, {vr(XR,4)} offset:0\nds_write_b128 v{VXO}, {vr(XR+4,4)} offset:{xo2}')
    a('s_mov_b64 exec, -1\ns_waitcnt lgkmcnt(0)')
    set_flag(F_X)
    stamp(2)
    a(f's_cmp_ge_u32 s32, 14\ns_cbranch_scc1 L_noln2')
    layernorm(XR, XF, VMK)
    a('s_mov_b64 exec, s[70:71]')
    a(f'ds_write_b128 v{VXO}, {vr(XR,4)} offset:{YN-XN}\nds_write_b128 v{VXO}, {vr(XR+4,4)} offset:{YN-XN+xo2}')
    a('s_mov_b64 exec, -1')
    set_flag(F_Y)
    a('L_noln2:')
    a('s_waitcnt lgkmcnt(0)\ns_add_u32 s64, s64, 1')

    def kfrag(k, ks):
        return ar(32 + 32 * k + 4 * ks, 4) if k < NDRAIN - 1 else vr(FR + 4 * ks, 4)

    def k_reads(k):
        for ks in range(8):
            a(f'ds_read_b128 {kfrag(k, ks)}, v{KA + (4 if k & 2 else 0) + (ks & 3)} offset:{(k&1)*32768 + (ks>>2)*256}')

    def k_finish(k):
        a(f'v_max3_f32 v{VM}, v{VM}, v{DT}, v{DT+1}\nv_max3_f32 v{VM}, v{VM}, v{DT+2}, v{DT+3}')
        a(f'v_cvt_pk_bf16_f32 v{P+2*k}, v{DT}, v{DT+1}\nv_cvt_pk_bf16_f32 v{P+2*k+1}, v{DT+2}, v{DT+3}')

    for k in range(NDRAIN):
        wait_tile(4 * k, sleep)
        k_reads(k)
        a(f'v_mov_b32 v{T0+1}, {k+1}\ns_waitcnt lgkmcnt(0)\nds_write_b32 v15, v{T0+1} offset:{F_CONS}')
    stamp(3)
    wait_flags(F_Q, 1, sleep)
    stamp(4)
    a(f'v_bfe_u32 v10, v0, 3, 1\nv_lshrrev_b32 v11, 4, v0\nv_lshlrev_b32 v10, 9, v10\nv_lshl_add_u32 v10, v11, 4, v10\nv_add_u32 v10, {QL}, v10')
    for ks in range(8):
        a(f'ds_read_b128 {ar(4*ks,4)}, v10 offset:{ks*64}')
    for k in range(NDRAIN):
        for ks in range(8):
            if k == 0:
                a(f's_waitcnt lgkmcnt({7-ks})')
            c = '0' if ks == 0 else vr(DT, 4)
            a(f'v_mfma_f32_16x16x32_bf16 {vr(DT,4)}, {kfrag(k, ks)}, {ar(4*ks,4)}, {c}')
        k_finish(k)

    for k in range(NDRAIN, 16):
        wait_tile(4 * k, sleep)
        k_reads(k)
        a(f'v_mov_b32 v{T0+1}, {k+1}')
        for ks in range(8):
            a(f's_waitcnt lgkmcnt({7-ks})')
            if ks == 7:
                a(f'ds_write_b32 v15, v{T0+1} offset:{F_CONS}')
            c = '0' if ks == 0 else vr(DT, 4)
            a(f'v_mfma_f32_16x16x32_bf16 {vr(DT,4)}, {vr(FR+4*ks,4)}, {ar(4*ks,4)}, {c}')
        k_finish(k)
        if k == kw2:
            srd(60, 40, 1792 * 896)
            a('s_lshl2_add_u32 s75, s20, s22\ns_lshl2_add_u32 s75, s75, s23\ns_mul_i32 s78, s75, 14')
            a(f'v_lshrrev_b32 v10, 3, v0\nv_and_b32 v11, 7, v0\nv_mul_u32_u24 v10, {2*896}, v10\nv_lshl_add_u32 v{VL}, v11, 4, v10')
            a('s_mul_i32 s76, s78, 896\ns_add_u32 s77, s76, 896')
        if kw2 <= k < kw2 + 4 and not now2:
            for j in range(4 * (k - kw2), min(14, 4 * (k - kw2) + 4)):
                t, cb = divmod(j, 7)
                a(f'buffer_load_dwordx4 {ar(32+4*j,4)}, v{VL}, s[60:63], {"s76" if t == 0 else "s77"} offen offset:{cb*128} {wflags}')
        if k == khp:
            l = lab('hp')
            a(f's_lshl_b32 s67, s21, 13\ns_lshl_b32 s75, s78, 2\ns_add_u32 s67, s67, s75\ns_add_u32 s67, s67, {W_H}')
            a(f'v_lshrrev_b32 v10, 3, v0\nv_cmp_gt_u32 s[68:69], 7, v10\nv_min_u32 v10, 6, v10\nv_lshlrev_b32 v10, 3, v10')
            a(f'{l}:')
            a(f'buffer_load_dwordx2 v[4:5], v10, s[52:55], s67 offen sc1')
            timeout()
            a(f's_waitcnt vmcnt(0)\nv_cmp_ne_u32 vcc, {TAG}, v5')
            if 'noh' not in diag:
                a(f's_cbranch_vccnz {l}')
            a('v_cndmask_b32 v4, 0, v4, s[68:69]')
            build_a(AT, 4, 0)
            build_a(AT + 4, 4, 1)
            for t in range(2):
                for cb in range(7):
                    c = '0' if t == 0 else ar(YA + 4 * cb, 4)
                    a(f'v_mfma_f32_16x16x32_bf16 {ar(YA+4*cb,4)}, {vr(AT+4*t,4)}, {ar(32+4*(t*7+cb),4)}, {c}')
    stamp(5)
    a(f'v_lshrrev_b32 v10, 3, v0\nv_lshlrev_b32 v10, 3, v10\ns_lshl_b32 s67, s23, 6\ns_add_u32 s67, s67, {SC}\nv_add_u32 v10, s67, v10')
    for k in range(NP // 4, 16):
        a(f'ds_write_b64 v10, v[{P+2*k}:{P+2*k+1}] offset:{(k - NP//4)*256}')
    reduce_rows('max', VM, T0)
    rnd(VM)
    a(f'v_bfe_u32 v10, v0, 3, 1\nv_lshl_add_u32 v10, v10, 2, v{VFL}\ns_lshl_b32 s67, s23, 3\nv_add_u32 v11, s67, v10')
    a(f'ds_write_b32 v11, v{VM} offset:{MX}')
    set_flag(F_M)
    wait_flags(F_M, 4)
    a(f'ds_read2_b32 v[4:5], v10 offset0:{MX//4} offset1:{MX//4+2}\nds_read2_b32 v[6:7], v10 offset0:{MX//4+4} offset1:{MX//4+6}')
    a(f's_mov_b32 s75, {fb(LOG2E/16)}\nv_mov_b32 v{VL}, 0\nv_mov_b32 v12, 0')
    a(f's_waitcnt lgkmcnt(0)\nv_max3_f32 v4, v4, v5, v6\nv_max_f32 v{VM}, v4, v7\nv_mul_f32 v13, {fb(-LOG2E/16)}, v{VM}')
    for j in range(0, 32, 2):
        a(f'v_lshlrev_b32 v4, 16, v{P+j}\nv_and_b32 v5, 0xffff0000, v{P+j}\nv_lshlrev_b32 v6, 16, v{P+j+1}\nv_and_b32 v7, 0xffff0000, v{P+j+1}')
        for r in range(4):
            a(f'v_fma_f32 v{4+r}, v{4+r}, s75, v13')
        for r in range(4):
            a(f'v_exp_f32 v{4+r}, v{4+r}')
        a(f'v_add_f32 v{VL}, v{VL}, v4\nv_add_f32 v12, v12, v5\nv_cvt_pk_bf16_f32 v{P+j}, v4, v5')
        a(f'v_add_f32 v{VL}, v{VL}, v6\nv_add_f32 v12, v12, v7\nv_cvt_pk_bf16_f32 v{P+j+1}, v6, v7')
    a(f'v_add_f32 v{VL}, v{VL}, v12')
    reduce_rows('add', VL, T0)
    a(f'ds_write_b32 v11, v{VL} offset:{LS}')
    set_flag(F_L)
    srd(60, 30, 4096 * 896)
    a('s_lshl_b32 s75, s20, 5\ns_lshl2_add_u32 s78, s22, s23\ns_add_u32 s75, s75, s78\ns_mul_i32 s78, s75, 16*896')
    a(f'v_lshrrev_b32 v10, 4, v0\nv_bfe_u32 v11, v0, 3, 1\nv_lshl_add_u32 v10, v11, 6, v10\nv_and_b32 v11, 7, v0\nv_mul_u32_u24 v10, {4*896}, v10\nv_lshl_add_u32 v{VL}, v11, 4, v10')

    def v_mfmas(preg, first, extra, done):
        for r in range(4):
            at = AT + 4 * (r & 1)
            if r == 0 and extra:
                a('s_waitcnt lgkmcnt(8)')
            build_a(at, preg + (r >> 1), r & 1)
            for hf in range(2):
                a(f's_waitcnt lgkmcnt({7-(2*r+hf)})')
                if r == 3 and hf == 1:
                    done()
                c = '0' if (first and r == 0) else vr(OA + 4 * hf, 4)
                a(f'v_mfma_f32_16x16x32_bf16 {vr(OA+4*hf,4)}, {vr(at,4)}, {vr(FR+4*(2*r+hf),4)}, {c}')

    for k in range(NP // 4):
        wait_tile(64 + 4 * k, sleep)
        for r in range(4):
            for hf in range(2):
                a(f'ds_read_b128 {vr(FR+4*(2*r+hf),4)}, v{VA + (1 if k & 2 else 0)} offset:{(k&1)*32768 + r*512 + hf*256}')
        a(f'v_mov_b32 v{T0+1}, {k+17}')
        v_mfmas(P + 2 * k, k == 0, False, lambda: a(f'ds_write_b32 v15, v{T0+1} offset:{F_CONS}'))
        if k < 7 and not nowo:
            sk_ = lab('wob')
            if wob0:
                a(f's_cmp_lg_u32 s21, 0\ns_cbranch_scc1 {sk_}')
            for j in range(4 * k, 4 * k + 4):
                t, cb = divmod(j, 7)
                if j % 7 == 0 or j % 4 == 0:
                    a(f's_add_u32 s67, s78, {t*896}')
                a(f'buffer_load_dwordx4 {ar(4*j,4)}, v{VL}, s[60:63], s67 offen offset:{cb*128} {oflags}')
            a(f'{sk_}:')
    VO1, VO2, VO3, VO4, VO5 = P, P + 1, P + 2, P + 3, P + 4
    a(f'v_lshrrev_b32 v10, 5, v0\nv_and_b32 v11, 15, v0\nv_lshlrev_b32 v10, 10, v10\nv_lshl_add_u32 v10, v11, 5, v10')
    a(f'v_bfe_u32 v11, v0, 4, 1\nv_lshl_add_u32 v{VO3}, v11, 4, v10\nv_mov_b32 v13, 0x1000000')
    a(f'v_lshlrev_b32 v10, 4, v0\nv_add_u32 v{VO1}, {OPL}, v10')
    a(f's_lshl_b32 s68, s74, 11\ns_add_u32 s68, s68, {W_OP}')
    a(f'v_and_b32 v10, 3, v0\nv_bfe_u32 v11, v0, 3, 1\nv_lshl_add_u32 v10, v10, 1, v11\nv_lshrrev_b32 v11, 4, v0\nv_lshlrev_b32 v10, 10, v10\nv_lshl_add_u32 v{VO4}, v11, 4, v10')
    a(f's_lshl_b32 s69, s73, 13\ns_lshl2_add_u32 s67, s22, s23\ns_lshl_b32 s67, s67, 6\ns_add_u32 s69, s69, s67\ns_add_u32 s69, s69, {W_OP}')
    a(f'v_lshrrev_b32 v10, 5, v0\ns_lshl_b32 s67, s23, 1\nv_add_u32 v10, s67, v10\nv_mul_u32_u24 v10, {RS}, v10')
    a(f'v_and_b32 v11, 7, v0\nv_lshl_add_u32 v10, v11, 5, v10\nv_bfe_u32 v11, v0, 4, 1\nv_lshl_add_u32 v10, v11, 4, v10\nv_add_u32 v{VO5}, {RED}, v10')
    VR1, VR2, VQ, VPT, VPP, VVA = P + 5, P + 6, P + 7, P + 8, P + 10, P + 12
    a(f'v_lshrrev_b32 v10, 1, v0\nv_min_u32 v10, 27, v10\ns_mul_i32 s67, s23, 28\nv_add_u32 v10, s67, v10\nv_lshlrev_b32 v10, 4, v10')
    a(f'v_and_b32 v11, 1, v0\nv_mul_u32_u24 v12, {4*RS}, v11\nv_add3_u32 v{VR1}, v10, v12, v{VFL}')
    a(f'v_add_u32 v{VR1}, {RED-FLG}, v{VR1}')
    a(f'v_cmp_gt_u32 vcc, 56, v0\nv_cndmask_b32 v10, v13, v10, vcc\nv_cmp_eq_u32 vcc, 0, v11\nv_cndmask_b32 v{VR2}, v13, v10, vcc')
    a(f's_lshl_b32 s76, s74, 11\ns_add_u32 s76, s76, {W_YP}')
    a(f's_lshl_b32 s67, s23, 2\ns_add_u32 s67, s67, {FLG + CQ}\nv_mov_b32 v{VQ}, s67')
    a(f'v_lshrrev_b32 v10, 3, v0\nv_lshlrev_b32 v10, 3, v10\nv_add_u32 v{VPT}, {PT}, v10')
    VFA, VFB, OF = P + 13, P + 14, P + 16
    a(f'v_lshrrev_b32 v10, 4, v0\nv_bfe_u32 v11, v0, 3, 1\nv_and_b32 v12, 1, v10\nv_lshl_add_u32 v11, v12, 1, v11\nv_xor_b32 v11, s23, v11')
    a(f'v_lshlrev_b32 v11, 5, v11\nv_lshl_add_u32 v11, v10, 10, v11\nv_bfe_u32 v12, v0, 2, 2\nv_lshl_add_u32 v11, v12, 7, v11\nv_and_b32 v12, 3, v0\nv_lshl_add_u32 v{VFA}, v12, 3, v11')
    a(f'v_lshrrev_b32 v11, 5, v0\nv_bfe_u32 v12, v0, 4, 1\nv_lshlrev_b32 v11, 6, v11\nv_lshl_add_u32 v11, v12, 5, v11\nv_bfe_u32 v12, v0, 3, 1\nv_lshl_add_u32 v11, v12, 3, v11')
    a(f'v_add_u32 v{VFB}, {PT + (S - NF)*64}, v11')
    tag_setup()
    VTG = P + 9
    a(f'v_mov_b32 v{VTG}, s34')
    wait_flags(F_P, 1, sleep)
    a(f'v_lshrrev_b32 v10, 5, v0\nv_lshl_add_u32 v10, v10, 2, v{VFL}\nds_read_b32 v11, v10 offset:{FO}')
    a(f'v_bfe_u32 v10, v0, 3, 1\nv_lshl_add_u32 v10, v10, 2, v{VFL}\nds_read_b32 v{VW}, v10 offset:{FO+8}')
    a(f's_add_u32 s72, s23, {64 + NP}\ns_waitcnt vmcnt(0) lgkmcnt(0)')
    for j in range(8):
        a(f'v_mul_f32 v{OA+j}, v{OA+j}, v11')
    stamp(10)
    a('L_pool:')
    a(f'ds_read_b32 v4, v{VQ}\nds_read_b32 v5, v{VFL} offset:{F_LAND}\ns_waitcnt lgkmcnt(0)')
    a(f'v_readfirstlane_b32 s24, v4\nv_readfirstlane_b32 s65, v5\ns_cmp_gt_u32 s24, {NCH}\ns_cbranch_scc1 L_pool_end')
    a('s_cmp_gt_i32 s65, s72\ns_cbranch_scc1 L_pool_go')
    timeout()
    if psleep:
        a(f's_sleep {psleep}')
    a('s_branch L_pool\nL_pool_go:')
    a(f's_cmp_eq_u32 s24, 0\ns_cbranch_scc1 L_pool')
    a('s_sub_u32 s24, s24, 1\ns_bfe_u32 s25, s24, 0x20001\ns_lshl_b32 s25, s25, 11\ns_and_b32 s67, s24, 1\ns_lshr_b32 s24, s24, 3\ns_lshl1_add_u32 s24, s24, s67\ns_lshl_b32 s24, s24, 6\ns_add_u32 s24, s24, s25')
    a(f's_and_b32 s25, s72, 12\ns_lshl_b32 s25, s25, 13\nv_add_u32 v4, s24, v{VPT}\nv_add_u32 v{VVA}, s25, v{VA}')
    a(f'ds_read_b64 v[{VPP}:{VPP+1}], v4')
    for r in range(4):
        for hf in range(2):
            a(f'ds_read_b128 {vr(FR+4*(2*r+hf),4)}, v{VVA} offset:{r*512 + hf*256}')
    a(f's_lshr_b32 s25, s72, 2\ns_add_u32 s25, s25, 1\nv_mov_b32 v{T0+1}, s25\nv_add_u32 v{VQ}, 16, v{VQ}\ns_add_u32 s72, s72, 4')
    v_mfmas(VPP, False, True, lambda: a(f'ds_write_b32 v15, v{T0+1} offset:{F_CONS}'))
    a('s_branch L_pool')
    a('L_pool_end:')
    a('s_sub_u32 s25, s23, s24\ns_and_b32 s25, s25, 3\ns_cmp_eq_u32 s25, 3\ns_cbranch_scc1 L_collect')
    a(f's_lshl_b32 s67, s25, 11\nv_add_u32 v{VO2}, s67, v{VO1}\ns_lshl_b32 s67, s25, 2\nv_add_u32 v4, s67, v{VFL}')
    a(f'ds_write_b128 v{VO2}, {vr(OA,4)}\nds_write_b128 v{VO2}, {vr(OA+4,4)} offset:1024\nds_write_b32 v4, v14 offset:{F_O}')
    stamp(6)
    a('s_branch L_collected')
    a('L_collect:')
    stamp(6)
    a('L_collect_rt:')
    a(f'ds_read_b128 v[4:7], v{VFL} offset:{F_O}')
    for j in range(6):
        a(f'ds_read_b128 {vr(FR+4*j,4)}, v{VO1} offset:{j*1024}')
    timeout()
    a('s_waitcnt lgkmcnt(6)\nv_min3_u32 v4, v4, v5, v6\nv_cmp_eq_u32 vcc, 0, v4\ns_cbranch_vccz L_collect_ok\ns_waitcnt lgkmcnt(0)\ns_branch L_collect_rt\nL_collect_ok:')
    for j in range(6):
        a(f's_waitcnt lgkmcnt({5-j})')
        o = OA + 4 * (j & 1)
        a(f'v_pk_add_f32 v[{o}:{o+1}], v[{o}:{o+1}], v[{FR+4*j}:{FR+4*j+1}]\nv_pk_add_f32 v[{o+2}:{o+3}], v[{o+2}:{o+3}], v[{FR+4*j+2}:{FR+4*j+3}]')
        if j >= 4:
            tag_put(o, VTG)
            a(f'buffer_store_dwordx4 {vr(o,4)}, v{VO3}, s[52:55], s68 offen offset:{512*(j&1)} {hs}')
    a('L_collected:')
    stamp(7)
    G = P + 20
    a('s_mov_b32 s72, s23\ns_mov_b32 s23, s24')
    for f in range(NF):
        wait_tile(f, 0)
        a(f's_add_u32 s25, s23, {f}\ns_and_b32 s25, s25, 15\ns_lshl_b32 s25, s25, 13\nv_add_u32 v{VVA}, s25, v{VFA}')
        for blk in range(2):
            q_, t_ = blocks[2*f + blk]
            a(f'v_add_u32 v{4+blk}, {q_*2048 + (t_ - (64 - NF))*64}, v{VFB}')
            a(f'ds_read2_b64 {vr(FR+16+4*blk,4)}, v{4+blk} offset0:0 offset1:2')
            for hh in range(2):
                a(f'ds_read_b64_tr_b16 {vr(FR+4*blk+2*hh,2)}, v{VVA} offset:{blk*4096 + hh*512}')
        if f == gat:
            a(f'buffer_load_dwordx4 {vr(G,4)}, v{VO4}, s[52:55], s69 offen {hl}')
        for blk in range(2):
            c = '0' if (f == 0 and blk == 0) else vr(OF, 4)
            a(f's_waitcnt lgkmcnt({3 - 3*blk})\nv_mfma_f32_16x16x32_bf16 {vr(OF,4)}, {vr(FR+4*blk,4)}, {vr(FR+16+4*blk,4)}, {c}')
    a('s_mov_b32 s23, s72')
    stamp(3)
    a('s_branch L_hop1_chk')
    a('L_hop1:')
    if mask1:
        a('s_mov_b64 exec, vcc')
    a(f'buffer_load_dwordx4 {vr(G,4)}, v{VO4}, s[52:55], s69 offen {hl}')
    if mask1:
        a('s_mov_b64 exec, -1')
    timeout()
    a('L_hop1_chk:')
    a('s_waitcnt vmcnt(0)')
    tag_get(8, G, 9)
    a('v_cmp_ne_u32 vcc, s34, v8')
    if 'nowait' not in diag:
        a('s_cbranch_vccnz L_hop1')
    stamp(8)
    for r in range(4):
        a(f'v_add_f32_dpp v{4+r}, v{G+r}, v{G+r} quad_perm:[1,0,3,2] row_mask:0xf bank_mask:0xf')
    for r in range(4):
        a(f'v_add_f32_dpp v{4+r}, v{4+r}, v{4+r} quad_perm:[2,3,0,1] row_mask:0xf bank_mask:0xf')
    for r in range(4):
        a(f'v_add_f32 v{4+r}, v{4+r}, v{OF+r}')
    for r in range(4):
        a(f'v_mul_f32 v{4+r}, v{4+r}, v{VW}')
    a('v_cvt_pk_bf16_f32 v4, v4, v5\nv_cvt_pk_bf16_f32 v6, v6, v7')
    if cbmajor:
        A4 = (AT, AT + 4, FR, FR + 4)
        build_a(A4[0], 4, 0)
        a(f'v_mfma_f32_16x16x32_bf16 {ar(YA,4)}, {vr(A4[0],4)}, {ar(0,4)}, {ar(YA,4)}')
        build_a(A4[1], 4, 1)
        a(f'v_mfma_f32_16x16x32_bf16 {ar(YA+4,4)}, {vr(A4[0],4)}, {ar(4,4)}, {ar(YA+4,4)}')
        build_a(A4[2], 6, 0)
        a(f'v_mfma_f32_16x16x32_bf16 {ar(YA,4)}, {vr(A4[1],4)}, {ar(28,4)}, {ar(YA,4)}')
        build_a(A4[3], 6, 1)
        a('s_mov_b32 s24, 0x00ff00ff\ns_mov_b32 s25, 0xff00ff00')
        todo = [(cb, t) for cb in range(7) for t in range(4) if (cb, t) not in ((0, 0), (1, 0), (0, 1))]
        pend = []
        for n_, (cb, t) in enumerate(todo):
            a(f'v_mfma_f32_16x16x32_bf16 {ar(YA+4*cb,4)}, {vr(A4[t],4)}, {ar(4*(t*7+cb),4)}, {ar(YA+4*cb,4)}')
            if t == 3:
                pend.append((cb, n_))
            if pend and n_ - pend[0][1] >= 4:
                c_ = pend.pop(0)[0]
                a(f's_mov_b64 exec, s[24:25]\nds_write_b128 v{VO5}, {ar(YA+4*c_,4)} offset:{c_*256}\ns_mov_b64 exec, -1')
        a('s_mov_b64 exec, s[24:25]')
        for c_, _ in pend:
            a(f'ds_write_b128 v{VO5}, {ar(YA+4*c_,4)} offset:{c_*256}')
    else:
        build_a(AT, 4, 0)
        for t in range(4):
            for cb in range(7):
                a(f'v_mfma_f32_16x16x32_bf16 {ar(YA+4*cb,4)}, {vr(AT+4*(t&1),4)}, {ar(4*(t*7+cb),4)}, {ar(YA+4*cb,4)}')
                if cb == 0 and t < 3:
                    build_a(AT + 4 * ((t + 1) & 1), 4 + 2 * ((t + 1) >> 1), (t + 1) & 1)
        a('s_mov_b32 exec_lo, 0x00ff00ff\ns_mov_b32 exec_hi, 0xff00ff00')
        for cb in range(7):
            a(f'ds_write_b128 v{VO5}, {ar(YA+4*cb,4)} offset:{cb*256}')
    a('s_mov_b64 exec, -1\ns_waitcnt lgkmcnt(0)\ns_barrier')
    for j in range(4):
        a(f'ds_read_b128 {vr(FR+4*j,4)}, v{VR1} offset:{j*RS}')
    a(f's_waitcnt lgkmcnt(2)\nv_pk_add_f32 v[4:5], v[{FR}:{FR+1}], v[{FR+4}:{FR+5}]\nv_pk_add_f32 v[6:7], v[{FR+2}:{FR+3}], v[{FR+6}:{FR+7}]')
    a(f's_waitcnt lgkmcnt(1)\nv_pk_add_f32 v[4:5], v[4:5], v[{FR+8}:{FR+9}]\nv_pk_add_f32 v[6:7], v[6:7], v[{FR+10}:{FR+11}]')
    a(f's_waitcnt lgkmcnt(0)\nv_pk_add_f32 v[4:5], v[4:5], v[{FR+12}:{FR+13}]\nv_pk_add_f32 v[6:7], v[6:7], v[{FR+14}:{FR+15}]')
    for r in range(4):
        a(f'v_add_f32_dpp v{4+r}, v{4+r}, v{4+r} quad_perm:[1,0,3,2] row_mask:0xf bank_mask:0xf')
    tag_put(4, VTG)
    a(f'buffer_store_dwordx4 v[4:7], v{VR2}, s[52:55], s76 offen {hs}')
    stamp(9)
    if stamps:
        a('s_mov_b64 exec, -1')
        a('L_stamp_out:')
        srd(52, 46, W_STAMP + 0x40000)
        a('s_getreg_b32 s95, hwreg(HW_REG_XCC_ID)')
        a(f's_mul_i32 s67, s2, 6\ns_add_u32 s67, s67, s3\ns_lshl_b32 s67, s67, 6\ns_add_u32 s67, s67, {W_STAMP}')
        for k in range(16):
            a(f'v_mov_b32 v{16+k}, s{80+k}')
        a('s_mov_b64 exec, 1')
        for k in range(4 if store_stamps else 0):
            a(f'buffer_store_dwordx4 v[{16+4*k}:{19+4*k}], off, s[52:55], s67 offset:{16*k}')
    a('L_end:')
    a('s_endpgm')
    body = a.finalize()
    head = header or ''
    padtxt = f'.fill {pad//4}, 4, 0xbf800000\n' if pad else ''
    head += f'; @launch grid=(256,1,1) block=(384,1,1) lds={LDS_BYTES}\n'
    head += f'.amdgcn_target "amdgcn-amd-amdhsa--gfx950"\n.text\n{padtxt}.globl {NAME}\n.p2align 8\n.type {NAME},@function\n'
    tail = f'''.section .rodata,"a"
.p2align 6
.amdhsa_kernel {NAME}
  .amdhsa_next_free_vgpr 256
  .amdhsa_next_free_sgpr 102
  .amdhsa_accum_offset 112
  .amdhsa_group_segment_fixed_size 0
  .amdhsa_kernarg_size 104
  .amdhsa_user_sgpr_count 2
  .amdhsa_user_sgpr_kernarg_segment_ptr 1
  .amdhsa_system_sgpr_workgroup_id_x 1
  .amdhsa_float_denorm_mode_32 3
.end_amdhsa_kernel
'''
    return head + body + tail


if __name__ == '__main__':
    ref = open('parallel_sum__gqa_block_cached__mixer_channel_mlp__decode.s.ref').read().split('\n')
    hdr = '\n'.join(l for l in ref if l.startswith(';') and '@launch' not in l and 'Override' not in l and 'grid=ceil' not in l) + '\n'
    kw = eval('dict(' + (sys.argv[2] if len(sys.argv) > 2 else '') + ')')
    out = sys.argv[1] if len(sys.argv) > 1 else 'parallel_sum__gqa_block_cached__mixer_channel_mlp__decode.s'
    open(out, 'w').write(gen(header=hdr, **kw))
    print('wrote', out)
```
